```python
import torch

def _softmax(x, axis=-1):
    return torch.softmax(x, dim=axis)
def _gelu(x):
    return torch.nn.functional.gelu(x, approximate="tanh")
def _silu(x):
    return torch.nn.functional.silu(x)
def _sigmoid(x):
    return torch.sigmoid(x)
def _layernorm(x, axis=-1, eps=1e-5):
    m = x.mean(dim=axis, keepdim=True)
    v = x.var(dim=axis, keepdim=True, unbiased=False)
    return (x - m) / torch.sqrt(v + eps)
def _scatter_add(tgt, idx, src, axis=0):
    return tgt.clone().index_add_(axis, idx, src)
def _segment_sum(src, seg, n):
    out = torch.zeros((n,) + src.shape[1:], dtype=src.dtype)
    return out.index_add_(0, seg, src)
def _pad(x, pw):
    flat = tuple(v for pair in reversed(pw) for v in pair)
    return torch.nn.functional.pad(x, flat)

kernel_name = 'concat_heads__linear_kernel_hedgehog__mha_block__prompt'

def setup_inputs():

    _w = (lambda a: (lambda t: t.to(torch.bfloat16) if t.is_floating_point() else t)(torch.as_tensor(a)))
    def _A_setup():
        B, S, D, H = 1, 2048, 448, 16
        Dh = D // H
        return {
            "x": _w((lambda *s: torch.randn(*s, dtype=torch.bfloat16) * 0.8)(B, S, D)),
            "wqkv": _w((lambda *s: torch.randn(*s, dtype=torch.bfloat16) * 1.6)(D, 3 * D)),
            "w_phi": _w((lambda *s: torch.randn(*s, dtype=torch.bfloat16) * 1.6)(H, Dh, Dh) * (Dh ** -0.5)),
            "wo": _w((lambda *s: torch.randn(*s, dtype=torch.bfloat16) * 0.1)(D, D)),
        }
    _A_in = _A_setup()

    def _B_setup():
        B, S, D, H = 1, 2048, 448, 16
        return {
            "x": _w((lambda *s: torch.randn(*s, dtype=torch.bfloat16) * 0.4)(B, S, D)),
            "wqkv": _w((lambda *s: torch.randn(*s, dtype=torch.bfloat16) * 0.4)(D, 3 * D)),
            "wo": _w((lambda *s: torch.randn(*s, dtype=torch.bfloat16) * 0.05)(D, D)),
        }
    _B_in = _B_setup()

    return {
        "A_x": _A_in["x"],
        "A_wqkv": _A_in["wqkv"],
        "A_w_phi": _A_in["w_phi"],
        "A_wo": _A_in["wo"],
        "B_x": _B_in["x"],
        "B_wqkv": _B_in["wqkv"],
        "B_wo": _B_in["wo"],
    }

def reference(A_x, A_wqkv, A_w_phi, A_wo, B_x, B_wqkv, B_wo):
    def _A_ref(x, wqkv, w_phi, wo):
        B, S, D = x.shape
        H = 16; Dh = D // H
        qkv = (lambda x, *d: x.permute(*d))((x @ wqkv).reshape(B, S, 3, H, Dh), 2, 0, 3, 1, 4)
        q, k, v = qkv[0], qkv[1], qkv[2]
        pq = torch.einsum("bhsd,hdf->bhsf", q, w_phi)
        pk = torch.einsum("bhsd,hdf->bhsf", k, w_phi)
        phi_q = torch.concatenate([_softmax(pq, axis=-1), _softmax(-pq, axis=-1)], axis=-1)
        phi_k = torch.concatenate([_softmax(pk, axis=-1), _softmax(-pk, axis=-1)], axis=-1)
        kv = torch.einsum("bhsf,bhsd->bhfd", phi_k, v)
        z  = torch.einsum("bhsf->bhf", phi_k)
        num = torch.einsum("bhqf,bhfd->bhqd", phi_q, kv)
        den = torch.einsum("bhqf,bhf->bhq", phi_q, z)[..., None] + 1e-6
        o = num / den
        return (lambda x, *d: x.permute(*d))(o, 0, 2, 1, 3).reshape(B, S, D) @ wo

    def _B_ref(x, wqkv, wo):
        B, S, D = x.shape
        H = 16
        Dh = D // H
        qkv = (lambda x, *d: x.permute(*d))((x @ wqkv).reshape(B, S, 3, H, Dh), 2, 0, 3, 1, 4)
        q, k, v = qkv[0], qkv[1], qkv[2]
        scores = torch.einsum("bhqd,bhkd->bhqk", q, k) * (Dh ** -0.5)
        p = _softmax(scores, axis=-1)
        o = torch.einsum("bhqk,bhkd->bhqd", p, v)
        return (lambda x, *d: x.permute(*d))(o, 0, 2, 1, 3).reshape(B, S, D) @ wo

    a = _A_ref(A_x, A_wqkv, A_w_phi, A_wo)
    b = _B_ref(B_x, B_wqkv, B_wo)
    return torch.concatenate([a, b], axis=-1)
```

```python
def vr(b, n=1, p='v'):
    return "%s%d" % (p, b) if n == 1 else "%s[%d:%d]" % (p, b, b + n - 1)
def ar(b, n=1):
    return vr(b, n, 'a')
def sr(b, n=1):
    return vr(b, n, 's')

class Em:
    def __init__(self):
        self.lines = []
        self.vm = []
        self.lg = []
    def __call__(self, s):
        for l in s.split('\n'):
            l = l.strip()
            if l:
                self.lines.append(('' if l.endswith(':') or l.startswith('.') else '  ') + l)
    def c(self, s):
        self.lines.append('  ; ' + s)
    def label(self, s):
        self.lines.append(s + ':')
    def vmem(self, s, tag, optional=False):
        self(s)
        self.vm.append((tag, optional))
    def vm_wait(self, *tags, keep=False):
        idx = -1
        for i, (t, o) in enumerate(self.vm):
            if t in tags:
                idx = i
        if idx < 0:
            return False
        n = sum(1 for (t, o) in self.vm[idx + 1:] if not o)
        self("s_waitcnt vmcnt(%d)" % min(n, 63))
        if n > 63:
            raise ValueError("vmcnt overflow while waiting for %s: %d" % (tags, n))
        if not keep:
            self.vm = self.vm[idx + 1:]
        return True
    def vm_drain(self):
        self("s_waitcnt vmcnt(0)")
        self.vm = []
    def lds(self, s, tag):
        self(s)
        self.lg.append(tag)
    def lg_wait(self, *tags):
        idx = -1
        for i, t in enumerate(self.lg):
            if t in tags:
                idx = i
        if idx < 0:
            return False
        n = len(self.lg) - idx - 1
        if n > 15:
            n = 15
            idx = len(self.lg) - 16
        self("s_waitcnt lgkmcnt(%d)" % n)
        self.lg = self.lg[idx + 1:]
        return True
    def lg_drain(self):
        self("s_waitcnt lgkmcnt(0)")
        self.lg = []
    def text(self):
        return '\n'.join(self.lines) + '\n'

def interleave(primary, filler):
    out = []
    n = len(primary)
    if n == 0:
        return list(filler)
    m = len(filler)
    k = 0
    for i, p in enumerate(primary):
        out.append(p)
        upto = (i + 1) * m // n
        out += filler[k:upto]
        k = upto
    return out
```

```python
import re

REG_RE = re.compile(r'^(-|\|)?(abs\()?([vas])(\d+)\)?\|?$')
RNG_RE = re.compile(r'^(-)?([vas])\[(\d+):(\d+)\]$')

def regs_of(tok):
    tok = tok.strip()
    m = RNG_RE.match(tok)
    if m:
        return [(m.group(2), i) for i in range(int(m.group(3)), int(m.group(4)) + 1)]
    m = REG_RE.match(tok)
    if m:
        return [(m.group(3), int(m.group(4)))]
    if tok in ('vcc',):
        return [('s', 'vcc_lo'), ('s', 'vcc_hi')]
    if tok in ('vcc_lo', 'vcc_hi', 'exec_lo', 'exec_hi', 'm0'):
        return [('s', tok)]
    if tok == 'exec':
        return [('s', 'exec_lo'), ('s', 'exec_hi')]
    return []

TRANS = ('v_exp_f32', 'v_log_f32', 'v_rcp_f32', 'v_rsq_f32', 'v_sqrt_f32', 'v_sin_f32', 'v_cos_f32', 'v_rcp_iflag_f32')

class Ins:
    pass

def parse(line):
    s = line.split(';')[0].strip()
    if not s or s.endswith(':') or s.startswith('.'):
        return None
    parts = s.split(None, 1)
    op = parts[0]
    rest = parts[1] if len(parts) > 1 else ''
    ops = [o.strip() for o in rest.split(',')] if rest else []
    mods = ''
    if ops:
        last = ops[-1].split(None, 1)
        if len(last) > 1:
            ops[-1] = last[0]
            mods = last[1]
    I = Ins()
    I.text = s; I.op = op; I.ops = ops; I.mods = mods
    base = re.sub(r'_(e32|e64|sdwa|dpp)$', '', op)
    I.base = base
    I.reads = []; I.writes = []
    I.kind = 'other'
    R = lambda k: regs_of(ops[k]) if k < len(ops) else []
    if base.startswith('v_mfma'):
        I.kind = 'mfma'
        I.D, I.A, I.B, I.C = R(0), R(1), R(2), R(3)
        I.writes = I.D; I.reads = I.A + I.B + I.C
        I.passes = 8 if '32x32' in base else 4
    elif base.startswith('v_cmp'):
        I.kind = 'valu'; I.writes = R(0); I.reads = R(1) + R(2)
    elif base in ('v_readfirstlane_b32', 'v_readlane_b32'):
        I.kind = 'valu'; I.writes = R(0); I.reads = R(1) + R(2); I.lane = True
    elif base.startswith('v_permlane'):
        I.kind = 'valu'; I.writes = R(0) + R(1); I.reads = R(0) + R(1); I.perm = True
    elif base in ('v_add_co_u32', 'v_sub_co_u32'):
        I.kind = 'valu'; I.writes = R(0) + R(1); I.reads = R(2) + R(3)
    elif base in ('v_addc_co_u32',):
        I.kind = 'valu'; I.writes = R(0) + R(1); I.reads = R(2) + R(3) + R(4)
    elif base.startswith('v_'):
        I.kind = 'valu'; I.writes = R(0)
        I.reads = sum((R(k) for k in range(1, len(ops))), [])
        if base.startswith('v_fmac') or base in ('v_writelane_b32',) or 'UNUSED_PRESERVE' in mods:
            I.reads += R(0)
        if base == 'v_cndmask_b32' and len(ops) == 3:
            I.reads += regs_of('vcc')
        if 'row_' in mods or 'quad_perm' in mods or 'wave_' in mods:
            I.dpp = True
    elif base.startswith('ds_read') or base.startswith('ds_bpermute') or base.startswith('ds_swizzle'):
        I.kind = 'dsr'; I.writes = R(0); I.reads = sum((R(k) for k in range(1, len(ops))), [])
    elif base.startswith('ds_write') or base.startswith('ds_add') or base.startswith('ds_max'):
        I.kind = 'dsw'; I.reads = sum((R(k) for k in range(len(ops))), [])
    elif base.startswith('buffer_load'):
        if ' lds' in (' ' + mods):
            I.kind = 'vdma'; I.reads = R(0) + R(1) + R(2) + [('s', 'm0')]
        else:
            I.kind = 'vld'; I.writes = R(0); I.reads = R(1) + R(2) + R(3)
            if 'd16' in base:
                I.reads += R(0)
    elif base.startswith('buffer_store'):
        I.kind = 'vst'; I.reads = R(0) + R(1) + R(2) + R(3); I.data = R(0)
        I.wide = base.endswith('x4') or base.endswith('x3')
    elif base.startswith('buffer_atomic'):
        I.kind = 'vst'; I.reads = R(0) + R(1) + R(2) + R(3); I.data = R(0); I.wide = False
        if 'sc0' in mods:
            I.writes = R(0); I.kind = 'vld'
    elif base.startswith('s_load') or base in ('s_memtime', 's_memrealtime'):
        I.kind = 'smem'; I.writes = R(0); I.reads = R(1)
    elif base == 's_waitcnt':
        I.kind = 'wait'
        full = ' '.join(ops) + ' ' + mods
        m = re.search(r'vmcnt\((\d+)\)', full); I.vm = int(m.group(1)) if m else None
        m = re.search(r'lgkmcnt\((\d+)\)', full); I.lg = int(m.group(1)) if m else None
    elif base == 's_nop':
        I.kind = 'nop'; I.n = int(ops[0], 0) + 1
    elif base in ('s_barrier', 's_endpgm', 's_branch', 's_setprio', 's_sleep') or base.startswith('s_cbranch'):
        I.kind = 'ctl'
        if base in ('s_cbranch_vccz', 's_cbranch_vccnz'):
            I.reads = regs_of('vcc')
    elif base.startswith('s_cmp') or base.startswith('s_bitcmp'):
        I.kind = 'salu'; I.reads = R(0) + R(1)
    elif base.startswith('s_'):
        I.kind = 'salu'; I.writes = R(0)
        I.reads = sum((R(k) for k in range(1, len(ops))), [])
        if 'saveexec' in base:
            I.writes += regs_of('exec')
    else:
        raise ValueError("unknown instruction: " + s)
    return I

def isv(r):
    return r[0] in 'va'

def check(lines, verbose=True):
    ins = []
    for n, l in enumerate(lines):
        t = l.split(';')[0].strip()
        if t.endswith(':') and not t.startswith('.'):
            I = Ins(); I.kind = 'label'; I.text = t; I.reads = []; I.writes = []; I.base = 'label'; I.line = n
            ins.append(I); continue
        I = parse(l)
        if I is not None:
            I.line = n
            ins.append(I)
    probs = []
    def dist(i, j):
        d = 0
        for k in range(i + 1, j):
            K = ins[k]
            if K.kind == 'label': continue
            d += K.n if K.kind == 'nop' else 1
        return d
    W = 24
    for j, J in enumerate(ins):
        if J.kind in ('label', 'nop', 'wait'): continue
        jr = set(J.reads); jw = set(J.writes)
        acc = 0
        for i in range(j - 1, max(-1, j - 60), -1):
            I = ins[i]
            if I.kind == 'label': continue
            d = acc
            acc += I.n if I.kind == 'nop' else 1
            if d > W: break
            iw = set(I.writes)
            need = 0; why = ''
            def req(n, w):
                nonlocal need, why
                if n > need: need, why = n, w
            if I.kind == 'valu':
                vw = {r for r in iw if isv(r)}
                sw = {r for r in iw if r[0] == 's'}
                if J.kind == 'mfma' and vw & jr: req(2, 'VALU->MFMA operand')
                if J.kind == 'valu' and getattr(J, 'perm', False) and vw & jr: req(2, 'VALU->permlane')
                if J.kind == 'valu' and getattr(J, 'dpp', False) and vw & jr: req(2, 'VALU->DPP')
                if J.kind == 'valu' and getattr(J, 'lane', False) and vw & jr: req(1, 'VALU->readlane')
                if I.base in TRANS and J.kind == 'valu' and J.base not in TRANS and vw & jr: req(1, 'trans->VALU')
                if I.base in TRANS and J.kind in ('mfma',) and vw & jr: req(2, 'trans->MFMA')
                if sw & jr:
                    if J.kind in ('vld', 'vst', 'vdma'): req(5, 'VALU sgpr->VMEM')
                    elif J.kind == 'valu':
                        if not (J.base == 'v_addc_co_u32'): req(2, 'VALU sgpr->VALU const')
            if I.kind == 'mfma':
                D = set(I.D)
                p = I.passes
                if J.kind == 'mfma':
                    if D & set(J.C):
                        if not (set(J.C) == D and J.passes == p): req(p + 2, 'MFMA D->C overlap')
                    if D & (set(J.A) | set(J.B)): req(p + 4, 'MFMA D->A/B')
                    if D & set(J.D) and not (D & set(J.C)): req(p + 2, 'MFMA D->D WAW')
                elif J.kind in ('valu', 'dsr', 'dsw', 'vld', 'vst', 'vdma'):
                    if D & (jr | jw): req(p + 4, 'MFMA D->VALU/MEM')
                    if J.kind == 'valu' and set(I.C) & jw: req(p - 1, 'MFMA C WAR')
            if I.kind == 'vst' and getattr(I, 'wide', False) and J.kind in ('valu', 'mfma') and set(I.data) & jw:
                req(2, 'wide store data WAR')
            if I.kind == 'salu' and ('s', 'm0') in iw and J.kind == 'vdma': req(1, 'M0->DMA')
            if need > d:
                probs.append("line %d: %s  <- line %d: %s : %s needs %d has %d" % (J.line + 1, J.text, I.line + 1, I.text, why, need, d))
    vq = []; lq = []; smem_pending = []
    for J in ins:
        if J.kind == 'label':
            continue
        if J.kind == 'wait':
            if J.vm is not None:
                while len(vq) > J.vm: vq.pop(0)
            if J.lg is not None:
                if J.lg == 0: smem_pending = []
                while len(lq) > J.lg: lq.pop(0)
            continue
        touched = set(J.reads) | set(J.writes)
        for q, nm in ((vq, 'vmem'), (lq, 'lds')):
            for P in q:
                pw = set(P.writes)
                if pw & touched:
                    if 'd16' in getattr(P, 'base', '') and 'd16' in J.base: continue
                    probs.append("line %d: %s touches regs of pending %s load line %d: %s" % (J.line + 1, J.text, nm, P.line + 1, P.text))
                    break
        for P in smem_pending:
            if set(P.writes) & touched:
                probs.append("line %d: %s touches pending smem line %d" % (J.line + 1, J.text, P.line + 1))
        if J.kind in ('vld', 'vst', 'vdma'):
            vq.append(J)
            if len(vq) > 63 + 40:
                pass
        elif J.kind in ('dsr', 'dsw'):
            lq.append(J)
        elif J.kind == 'smem':
            smem_pending.append(J)
    return probs

if __name__ == '__main__':
    import sys
    p = check(open(sys.argv[1]).read().split('\n'))
    for x in p[:100]: print(x)
    print(len(p), 'problems')
```

```python
import sys, os, math, struct
sys.path.insert(0, os.path.dirname(os.path.abspath(__file__)))
from core import *

NAME = "concat_heads__linear_kernel_hedgehog__mha_block__prompt"

def f2u(x):
    return struct.unpack('<I', struct.pack('<f', x))[0]

G_OFF, F1_OFF, F2_OFF = 0, 0x1000, 0x2000
KV_OFF, PART_OFF, OA_OFF, OB_OFF, WOF_OFF, WS_SIZE = 0x100000, 0x500000, 0x700000, 0x900000, 0xB00000, 0xD00000
STAMP_OFF = 0xC00000
SLOT = 28672
QX = 143360
PHI_P, PHI_N, VX = 0, 9216, 18432
CB, VERD, KVX, OST_B, OST_A = 32768, 81920, 82944, 90112, 122880
MX = 0
LDS_SIZE = 155648
sXB, sWB, sXA, sWA, sPH, sWO, sWS, sOUT, sPC = 24, 28, 32, 36, 40, 44, 48, 52, 56
sH, sJ, sW, sNONCE = 60, 61, 62, 63
sXROW, sWCOL, sLX, sLW, sSX, sSW = 64, 65, 66, 67, 68, 69
sC = 70
sL2E, sNL2E = 72, 73
sT = 74
sKV = 80
sCNT = 81
sT2 = 82
sSTAMP = 90
vLANE, vL16 = 0, 1
vXD, vWD = 2, 6
vXR, vWR = 9, 21
vT = 24
vF = 32
accB, accA = 96, 144
vPH, vWG = 192, 200
vQ = 204
vPQ = 240
vS, vP, vO = 32, 64, 96
vPST, vPAC = 160, 192
NSETS = 6
aKV, aWOA, aWOB = 0, 0, 128

SCALE = (28.0 ** -0.5) * math.log2(math.e)
OFFS = 64.0
LIMIT = 2.0 ** 90

class Gen:
    def __init__(self, opt):
        self.o = opt
        self.e = Em()
        self.ool = Em()
        self.nlab = 0
        self.nstamp = 0
    def lab(self, p):
        self.nlab += 1
        return "L_%s_%d" % (p, self.nlab)
    def stamp(self, name):
        if not self.o.get('stamps'):
            return
        e = self.e
        k = self.nstamp
        self.nstamp += 1
        self.stamp_names = getattr(self, 'stamp_names', []) + [name]
        e("s_memrealtime s[%d:%d]" % (sT2 + 6, sT2 + 7))
        e("s_waitcnt lgkmcnt(0)")
        e.lg = []
        e("v_writelane_b32 v239, s%d, %d" % (sT2 + 6, k))

    def prologue(self):
        e = self.e
        e("s_getpc_b64 s[%d:%d]" % (sPC, sPC + 1))
        e.label("L_pc")
        e("s_load_dwordx16 s[4:19], s[0:1], 0")
        e("s_load_dwordx4 s[20:23], s[0:1], 64")
        e("s_cmp_ge_u32 s2, 256")
        e("s_cbranch_scc1 L_end")
        e("s_mov_b32 s%d, L_codeend-L_pc" % (sPC + 2))
        e("s_mov_b32 s%d, 0x20000" % (sPC + 3))
        e("v_lshlrev_b32 v%d, 7, v0" % vT)
        e("v_lshrrev_b32 v%d, 6, v0" % (vT + 1))
        e.vmem("buffer_load_dword v%d, v%d, s[%d:%d], 0 offen" % (vT + 2, vT, sPC, sPC + 3), 'pf')
        e("v_readfirstlane_b32 s%d, v%d" % (sW, vT + 1))
        e("v_and_b32 v0, 63, v0")
        if self.o.get('stamps'):
            e("v_mov_b32 v239, 0")
            self.stamp('start')
        m = self.o.get('map', 4)
        e("s_and_b32 s%d, s2, 7" % sT)
        e("s_lshr_b32 s%d, s2, 3" % (sT + 1))
        if m == 4:
            e("s_and_b32 s%d, s%d, 3" % (sH, sT))
            e("s_lshl_b32 s%d, s%d, 2" % (sH, sH))
            e("s_and_b32 s%d, s%d, 3" % (sT + 2, sT + 1))
            e("s_add_u32 s%d, s%d, s%d" % (sH, sH, sT + 2))
            e("s_lshr_b32 s%d, s%d, 2" % (sJ, sT))
            e("s_lshl_b32 s%d, s%d, 3" % (sJ, sJ))
            e("s_lshr_b32 s%d, s%d, 2" % (sT + 2, sT + 1))
            e("s_add_u32 s%d, s%d, s%d" % (sJ, sJ, sT + 2))
        elif m == 2:
            e("s_lshl_b32 s%d, s%d, 1" % (sH, sT))
            e("s_and_b32 s%d, s%d, 1" % (sT + 2, sT + 1))
            e("s_add_u32 s%d, s%d, s%d" % (sH, sH, sT + 2))
            e("s_lshr_b32 s%d, s%d, 1" % (sJ, sT + 1))
        elif m == 8:
            e("s_and_b32 s%d, s%d, 1" % (sH, sT))
            e("s_lshl_b32 s%d, s%d, 3" % (sH, sH))
            e("s_and_b32 s%d, s%d, 7" % (sT + 2, sT + 1))
            e("s_add_u32 s%d, s%d, s%d" % (sH, sH, sT + 2))
            e("s_lshr_b32 s%d, s%d, 1" % (sJ, sT))
            e("s_lshl_b32 s%d, s%d, 2" % (sJ, sJ))
            e("s_lshr_b32 s%d, s%d, 3" % (sT + 2, sT + 1))
            e("s_add_u32 s%d, s%d, s%d" % (sJ, sJ, sT + 2))
        e("s_lshl_b32 s%d, s%d, 2" % (sT, sJ))
        e("s_add_u32 s%d, s%d, s%d" % (sT, sT, sW))
        e("s_mul_i32 s%d, s%d, %d" % (sXROW, sT, 32 * 896))
        e("s_mul_i32 s%d, s%d, %d" % (sWCOL, sW, 16 * 2688))
        e("s_mul_i32 s%d, s%d, 56" % (sT + 1, sH))
        e("s_add_u32 s%d, s%d, s%d" % (sWCOL, sWCOL, sT + 1))
        e("s_lshl_b32 s%d, s%d, 12" % (sLX, sW))
        e("s_lshl_b32 s%d, s%d, 10" % (sLW, sW))
        t0, t1, t2, t3 = vT + 3, vT + 4, vT + 5, vT + 6
        e("v_lshlrev_b32 v%d, 4, v0" % vL16)
        e("v_lshrrev_b32 v%d, 3, v0" % t0)
        e("v_mul_u32_u24 v%d, 896, v%d" % (t0, t0))
        e("v_lshrrev_b32 v%d, 4, v0" % t1)
        e("v_and_b32 v%d, 7, v0" % t2)
        for i in range(4):
            if i < 2:
                e("v_add_u32 v%d, %d, v%d" % (t3, 4 * i, t1))
                e("v_xor_b32 v%d, v%d, v%d" % (t3, t3, t2))
                e("v_lshl_add_u32 v%d, v%d, 4, v%d" % (vXD + i, t3, t0))
                if i:
                    e("v_add_u32 v%d, %d, v%d" % (vXD + i, 8 * 896 * i, vXD + i))
            else:
                e("v_add_u32 v%d, %d, v%d" % (vXD + i, 16 * 896, vXD + i - 2))
        e("v_lshrrev_b32 v%d, 2, v0" % t0)
        e("v_mul_u32_u24 v%d, 2688, v%d" % (t0, t0))
        e("v_and_b32 v%d, 3, v0" % t2)
        e("v_lshl_add_u32 v%d, v%d, 4, v%d" % (vWD, t2, t0))
        e("v_add_u32 v%d, 896, v%d" % (vWD + 1, vWD))
        e("v_add_u32 v%d, 1792, v%d" % (vWD + 2, vWD))
        e("s_waitcnt lgkmcnt(0)")
        def srd(s, p, n):
            e("s_mov_b32 s%d, s%d" % (s, p))
            e("s_and_b32 s%d, s%d, 0xffff" % (s + 1, p + 1))
            e("s_mov_b32 s%d, %d" % (s + 2, n))
            e("s_mov_b32 s%d, 0x20000" % (s + 3))
        srd(sXB, 12, 2048 * 896)
        srd(sWB, 14, 448 * 2688)
        for ch in range(4):
            for it in self.dma(ch):
                it()
            if ch == 0:
                srd(sWS, 22, WS_SIZE)
                e("s_load_dword s%d, s[22:23], %d" % (sNONCE, G_OFF))
        srd(sXA, 4, 2048 * 896)
        srd(sWA, 6, 448 * 2688)
        srd(sPH, 8, 16 * 28 * 28 * 2)
        srd(sOUT, 18, 2048 * 896 * 2)
        e("v_and_b32 v%d, 31, v0" % t0)
        e("v_lshrrev_b32 v%d, 5, v0" % t1)
        e("v_lshlrev_b32 v%d, 7, v%d" % (t2, t0))
        e("v_add_u32 v%d, s%d, v%d" % (t2, sLX, t2))
        e("v_bfe_u32 v%d, v0, 1, 3" % t3)
        e("v_xor_b32 v%d, v%d, v%d" % (t3, t3, t1))
        for s in range(4):
            e("v_xor_b32 v%d, %d, v%d" % (vT + 7, 2 * s, t3))
            e("v_lshl_add_u32 v%d, v%d, 4, v%d" % (vXR + s, vT + 7, t2))
        for r in (1, 2):
            for s in range(4):
                e("v_add_u32 v%d, %d, v%d" % (vXR + 4 * r + s, 57344 * r, vXR + s))
        e("v_lshlrev_b32 v%d, 3, v%d" % (t2, t1))
        e("v_bfe_u32 v%d, v0, 2, 2" % t3)
        e("v_add_u32 v%d, v%d, v%d" % (t2, t2, t3))
        e("v_lshlrev_b32 v%d, 6, v%d" % (t2, t2))
        e("v_bfe_u32 v%d, v0, 4, 1" % t3)
        e("v_lshl_add_u32 v%d, v%d, 5, v%d" % (t2, t3, t2))
        e("v_and_b32 v%d, 3, v0" % t3)
        e("v_lshl_add_u32 v%d, v%d, 3, v%d" % (t2, t3, t2))
        e("v_add_u32 v%d, 16384, v%d" % (vWR, t2))
        e("v_add_u32 v%d, %d, v%d" % (vWR + 1, 16384 + 57344, t2))
        e("v_add_u32 v%d, %d, v%d" % (vWR + 2, 16384 + 114688, t2))
        e("s_mov_b32 s%d, 0x%08x" % (sC, f2u(SCALE)))
        e("s_mov_b32 s%d, 0x%08x" % (sC + 1, f2u(SCALE)))
        e("s_mov_b32 s%d, 0x%08x" % (sL2E, f2u(math.log2(math.e))))
        e("s_mov_b32 s%d, 0x%08x" % (sNL2E, f2u(-math.log2(math.e))))
        e("v_min_u32 v%d, 27, v%d" % (t2, t0))
        e("v_mul_u32_u24 v%d, %d, v%d" % (t3, 4 * 28, t1))
        e("v_add_u32 v%d, v%d, v%d" % (t2, t2, t3))
        e("v_lshlrev_b32 v%d, 1, v%d" % (t2, t2))
        e("s_mul_i32 s%d, s%d, 1568" % (sT, sH))
        for mf in range(2):
            for j in range(8):
                d = 16 * mf + (j & 3) + 8 * (j >> 2)
                e.vmem("buffer_load_ushort v%d, v%d, s[%d:%d], s%d offen offset:%d" % (accA + 8 * mf + j, t2, sPH, sPH + 3, sT, d * 56), 'wphi')
        e("s_lshl_b32 s%d, s2, 2" % sT)
        e("s_add_u32 s%d, s%d, s%d" % (sT, sT, sW))
        e("s_lshr_b32 s%d, s%d, 9" % (sT + 1, sT))
        e("s_cmp_eq_u32 s%d, 0" % (sT + 1))
        e("s_cselect_b32 s%d, s10, s16" % sWO)
        e("s_cselect_b32 s%d, s11, s17" % (sWO + 1))
        e("s_and_b32 s%d, s%d, 0xffff" % (sWO + 1, sWO + 1))
        e("s_mov_b32 s%d, %d" % (sWO + 2, 448 * 896))
        e("s_mov_b32 s%d, 0x20000" % (sWO + 3))
        e("s_bfe_u32 s%d, s%d, 0x40005" % (sT + 1, sT))
        e("s_bfe_u32 s%d, s%d, 0x40001" % (sT + 2, sT))
        e("s_and_b32 s%d, s%d, 1" % (sT + 3, sT))
        e("s_mul_i32 s%d, s%d, 28" % (sT + 2, sT + 2))
        e("s_lshl_b32 s%d, s%d, 4" % (sT + 4, sT + 3))
        e("s_add_u32 s%d, s%d, s%d" % (sT + 2, sT + 2, sT + 4))
        e("s_mul_i32 s%d, s%d, 896" % (sT + 2, sT + 2))
        e("s_mul_i32 s%d, s%d, 56" % (sT + 1, sT + 1))
        e("s_add_u32 s%d, s%d, s%d" % (sT + 2, sT + 2, sT + 1))
        e("v_mul_u32_u24 v%d, %d, v%d" % (t3, 4 * 896, t1))
        e("v_lshl_add_u32 v%d, v%d, 1, v%d" % (t3, t0, t3))
        e("s_lshl_b32 s%d, s%d, 30" % (sT + 3, sT + 3))
        e("v_mul_lo_u32 v%d, v%d, s%d" % (t2, t1, sT + 3))
        e("v_add_u32 v%d, v%d, v%d" % (t2, t2, t3))
        e("v_add_u32 v%d, %d, v%d" % (t2, 8 * 896, t2))
        for j in range(8):
            d = (j & 3) + 8 * (j >> 2)
            if j < 4:
                e.vmem("buffer_load_ushort v%d, v%d, s[%d:%d], s%d offen offset:%d" % (accA + 16 + j, t3, sWO, sWO + 3, sT + 2, d * 896), 'wog')
            else:
                e.vmem("buffer_load_ushort v%d, v%d, s[%d:%d], s%d offen offset:%d" % (accA + 16 + j, t2, sWO, sWO + 3, sT + 2, (d - 8) * 896), 'wog')
        for k in range(4):
            e("v_mov_b32 v%d, -1" % (vT + 4 + k))
        e("s_lshl_b32 s%d, s%d, 2" % (sT, sJ))
        e("s_add_u32 s%d, s%d, s%d" % (sT, sT, sW))
        e("s_lshl_b32 s%d, s%d, 4" % (sT, sT))
        e("s_add_u32 s%d, s%d, s%d" % (sT, sT, sH))
        e("s_lshl_b32 s%d, s%d, 11" % (sT, sT))
        e("s_add_u32 s%d, s%d, %d" % (sT + 1, sT, OA_OFF))
        e("s_add_u32 s%d, s%d, %d" % (sT + 2, sT, OB_OFF))
        for so in (sT + 1, sT + 2):
            for mf in range(2):
                e.vmem("buffer_store_dwordx4 v[%d:%d], v%d, s[%d:%d], s%d offen offset:%d sc1" % (vT + 4, vT + 7, vL16, sWS, sWS + 3, so, mf * 1024), 'sent')

    def merge_gathers(self):
        e = self.e
        e.vm_wait('wphi', 'wog')
        for i in range(8):
            e("v_lshl_or_b32 v%d, v%d, 16, v%d" % (vPH + i, accA + 2 * i + 1, accA + 2 * i))
        for i in range(4):
            e("v_lshl_or_b32 v%d, v%d, 16, v%d" % (vWG + i, accA + 16 + 2 * i + 1, accA + 16 + 2 * i))

    def dma(self, ch):
        e = self.e
        br, cl = (0, ch) if ch < 7 else (1, ch - 7)
        sx = sXB if br == 0 else sXA
        sw_ = sWB if br == 0 else sWA
        base = (ch % 5) * SLOT
        items = []
        def x(i):
            def f():
                e("s_add_u32 m0, s%d, %d" % (sLX, base + 1024 * i))
                if i == 0:
                    e("s_add_u32 s%d, s%d, %d" % (sSX, sXROW, cl * 128))
                else:
                    e("s_nop 0")
                e.vmem("buffer_load_dwordx4 v%d, s[%d:%d], s%d offen lds" % (vXD + i, sx, sx + 3, sSX), 'ch%d' % ch)
            return f
        def w(ty):
            def f():
                e("s_add_u32 m0, s%d, %d" % (sLW, base + 16384 + 4096 * ty))
                if ty == 0:
                    e("s_add_u32 s%d, s%d, %d" % (sSW, sWCOL, cl * 64 * 2688))
                else:
                    e("s_nop 0")
                e.vmem("buffer_load_dwordx4 v%d, s[%d:%d], s%d offen lds" % (vWD + ty, sw_, sw_ + 3, sSW), 'ch%d' % ch)
            return f
        for i in range(4): items.append(x(i))
        for ty in range(3): items.append(w(ty))
        return items

    def dma_split(self, ch):
        e = self.e
        br, cl = (0, ch) if ch < 7 else (1, ch - 7)
        sx = sXB if br == 0 else sXA
        sw_ = sWB if br == 0 else sWA
        base = (ch % 5) * SLOT
        out = []
        for i in range(4):
            def su(i=i):
                e("s_add_u32 m0, s%d, %d" % (sLX, base + 1024 * i))
                if i == 0:
                    e("s_add_u32 s%d, s%d, %d" % (sSX, sXROW, cl * 128))
            def ld(i=i):
                e.vmem("buffer_load_dwordx4 v%d, s[%d:%d], s%d offen lds" % (vXD + i, sx, sx + 3, sSX), 'ch%d' % ch)
            out.append((su, ld))
        for ty in range(3):
            def su(ty=ty):
                e("s_add_u32 m0, s%d, %d" % (sLW, base + 16384 + 4096 * ty))
                if ty == 0:
                    e("s_add_u32 s%d, s%d, %d" % (sSW, sWCOL, cl * 64 * 2688))
            def ld(ty=ty):
                e.vmem("buffer_load_dwordx4 v%d, s[%d:%d], s%d offen lds" % (vWD + ty, sw_, sw_ + 3, sSW), 'ch%d' % ch)
            out.append((su, ld))
        return out

    def frag_reads(self, ch, s):
        e = self.e
        slot = ch % 5
        rng = slot // 2
        rel = (slot % 2) * SLOT
        F = vF + 16 * s
        tag = 'f%d_%d' % (ch, s)
        items = []
        items.append(lambda: e.lds("ds_read_b128 %s, v%d offset:%d" % (vr(F, 4), vXR + 4 * rng + s, rel), tag))
        for ty in range(3):
            for hf in range(2):
                off = rel + ty * 4096 + s * 1024 + 256 * hf
                items.append(lambda ty=ty, hf=hf, off=off: e.lds("ds_read_b64_tr_b16 %s, v%d offset:%d" % (vr(F + 4 + 4 * ty + 2 * hf, 2), vWR + rng, off), tag))
        return items

    def mfmas(self, ch, s):
        e = self.e
        acc = accB if ch < 7 else accA
        F = vF + 16 * s
        first = (ch % 7 == 0 and s == 0)
        items = []
        for ty in range(3):
            D = vr(acc + 16 * ty, 16)
            C = "0" if first else D
            if ty < 2:
                items.append(lambda D=D, C=C, ty=ty: e("v_mfma_f32_32x32x16_bf16 %s, %s, %s, %s" % (D, vr(F + 4 + 4 * ty, 4), vr(F, 4), C)))
            else:
                items.append(lambda D=D, C=C: e("v_mfma_f32_32x32x16_bf16 %s, %s, %s, %s" % (D, vr(F, 4), vr(F + 12, 4), C)))
        return items

    def step(self, mf, reads, extra):
        fill = list(reads)
        ex = list(extra)
        seq = []
        nf = len(fill)
        parts = [fill[0:3], fill[3:5], fill[5:7]] if nf == 7 else [[], [], []]
        exparts = [ex[i::3] for i in range(3)]
        for k in range(3):
            if k < len(mf): seq.append(mf[k])
            if exparts[k]:
                su, ld = exparts[k][0]
                seq.append(su)
                if parts[k]:
                    seq.append(parts[k][0]); seq.append(ld); seq += parts[k][1:]
                else:
                    seq.append(lambda: self.e("s_nop 0")); seq.append(ld)
                for su2, ld2 in exparts[k][1:]:
                    seq.append(su2); seq.append(lambda: self.e("s_nop 0")); seq.append(ld2)
            else:
                seq += parts[k]
        for f in seq: f()

    def body(self, ch, mid=None, top=None):
        e = self.e
        e.c("---- GEMM chunk %d ----" % ch)
        tags = ['ch%d' % ch]
        if ch == 11: tags.append('pub')
        e.vm_wait(*tags)
        e.lg_drain()
        e("s_barrier")
        if top: top()
        d = self.dma_split(ch + 4) if ch + 4 < 14 else []
        prev = ch - 1
        mA = self.mfmas(prev, 2) if ch > 0 else []
        mB = self.mfmas(prev, 3) if ch > 0 else []
        self.step(mA, self.frag_reads(ch, 0), d[0:2])
        self.step(mB, self.frag_reads(ch, 1), d[2:4])
        e.lg_wait('f%d_0' % ch)
        self.step(self.mfmas(ch, 0), self.frag_reads(ch, 2), d[4:6])
        if mid: mid()
        e.lg_wait('f%d_1' % ch)
        self.step(self.mfmas(ch, 1), self.frag_reads(ch, 3), d[6:7])

    def upper_only(self, on):
        self.e("s_mov_b32 exec_lo, %s" % ("0" if on else "-1"))

    def cross_half(self, op, regs):
        e = self.e
        for v, t in regs:
            e("v_mov_b32 v%d, v%d" % (t, v))
        e("s_nop %d" % (1 if len(regs) == 1 else 0))
        for v, t in regs:
            e("v_permlane32_swap_b32 v%d, v%d" % (v, t))
        for (v, t), o in zip(regs, op):
            e("%s v%d, v%d, v%d" % (o, v, v, t))

    def b_epilogue(self):
        e = self.e
        e.c("---- B epilogue: pack Q/K/V, stand-in row max, publish K/V ----")
        q, k, v = accB, accB + 16, accB + 32
        Q, K, V = accB, accB + 16, accB + 32
        for i in range(8):
            e("v_pk_mul_f32 %s, %s, s[%d:%d]" % (vr(q + 2 * i, 2), vr(q + 2 * i, 2), sC, sC + 1))
        for i in range(8):
            e("v_cvt_pk_bf16_f32 v%d, v%d, v%d" % (K + i, k + 2 * i, k + 2 * i + 1))
        for i in range(8):
            e("v_cvt_pk_bf16_f32 v%d, v%d, v%d" % (Q + i, q + 2 * i, q + 2 * i + 1))
        for i in range(8):
            e("v_cvt_pk_bf16_f32 v%d, v%d, v%d" % (V + i, v + 2 * i, v + 2 * i + 1))
        self.upper_only(True)
        e("v_mov_b32 v%d, 0" % (Q + 6))
        e("v_mov_b32 v%d, 0" % (Q + 7))
        e("v_mov_b32 v%d, 0x3f80" % (K + 6))
        e("v_mov_b32 v%d, 0" % (K + 7))
        e("s_mov_b32 exec_lo, 0x10000000")
        e("s_mov_b32 exec_hi, 0x10000000")
        for i in range(8):
            e("v_mov_b32 v%d, 0x3f803f80" % (V + i))
        e("s_mov_b64 exec, -1")
        St = vQ
        e("v_mfma_f32_32x32x16_bf16 %s, %s, %s, 0" % (vr(St, 16), vr(K, 4), vr(Q, 4)))
        e("v_mfma_f32_32x32x16_bf16 %s, %s, %s, %s" % (vr(St, 16), vr(K + 4, 4), vr(Q + 4, 4), vr(St, 16)))
        e("s_lshl_b32 s%d, s%d, 2" % (sT, sJ))
        e("s_add_u32 s%d, s%d, s%d" % (sT, sT, sW))
        e("s_lshl_b32 s%d, s%d, 12" % (sT, sT))
        e("s_lshl_b32 s%d, s%d, 18" % (sT + 1, sH))
        e("s_add_u32 s%d, s%d, s%d" % (sT, sT, sT + 1))
        e("s_add_u32 s%d, s%d, %d" % (sT, sT, KV_OFF))
        e.vmem("buffer_store_dwordx4 %s, v%d, s[%d:%d], s%d offen sc1" % (vr(K, 4), vL16, sWS, sWS + 3, sT), 'pub')
        e.vmem("buffer_store_dwordx4 %s, v%d, s[%d:%d], s%d offen offset:1024 sc1" % (vr(K + 4, 4), vL16, sWS, sWS + 3, sT), 'pub')
        e.vmem("buffer_store_dwordx4 %s, v%d, s[%d:%d], s%d offen offset:2048 sc1" % (vr(V, 4), vL16, sWS, sWS + 3, sT), 'pub')
        e.vmem("buffer_store_dwordx4 %s, v%d, s[%d:%d], s%d offen offset:3072 sc1" % (vr(V + 4, 4), vL16, sWS, sWS + 3, sT), 'pub')
        e.vm_wait('wog')
        e("s_lshl_b32 s%d, s2, 2" % sT)
        e("s_add_u32 s%d, s%d, s%d" % (sT, sT, sW))
        e("s_lshl_b32 s%d, s%d, 10" % (sT, sT))
        e("s_add_u32 s%d, s%d, %d" % (sT, sT, WOF_OFF))
        e.vmem("buffer_store_dwordx4 %s, v%d, s[%d:%d], s%d offen sc1" % (vr(vWG, 4), vL16, sWS, sWS + 3, sT), 'pub')
        m, t = vT, vT + 1
        e("v_max3_f32 v%d, v%d, v%d, v%d" % (m, St, St + 1, St + 2))
        for i in range(6):
            e("v_max3_f32 v%d, v%d, v%d, v%d" % (m, m, St + 3 + 2 * i, St + 4 + 2 * i))
        e("v_max_f32 v%d, v%d, v%d" % (m, m, St + 15))
        self.cross_half(["v_max_f32"], [(m, t)])
        e("v_sub_f32 v%d, 0x%08x, v%d" % (m, f2u(-OFFS), m))
        self.upper_only(True)
        e("v_cvt_pk_bf16_f32 v%d, v%d, 0" % (Q + 6, m))
        self.upper_only(False)
        e("v_add_u32 v%d, s%d, v%d" % (t, sLW, vL16))
        e("v_add_u32 v%d, s%d, v%d" % (t, sLW, t))
        e("v_add_u32 v%d, %d, v%d" % (t, QX, t))
        e.lds("ds_write_b128 v%d, %s" % (t, vr(Q, 4)), 'qx')
        e.lds("ds_write_b128 v%d, %s offset:1024" % (t, vr(Q + 4, 4)), 'qx')

    def read_q(self):
        e = self.e
        for t in range(4):
            e("s_add_u32 s%d, s%d, %d" % (sT, sW, t))
            e("s_and_b32 s%d, s%d, 3" % (sT, sT))
            e("s_lshl_b32 s%d, s%d, 11" % (sT, sT))
            e("s_add_u32 s%d, s%d, %d" % (sT, sT, QX))
            e("v_add_u32 v%d, s%d, v%d" % (vT + t, sT, vL16))
        for t in range(4):
            e.lds("ds_read_b128 %s, v%d" % (vr(vQ + 8 * t, 4), vT + t), 'q')
            e.lds("ds_read_b128 %s, v%d offset:1024" % (vr(vQ + 8 * t + 4, 4), vT + t), 'q')

    def signal(self, off_expr_setup, who):
        e = self.e
        L = self.lab('sig')
        e("s_cmp_lg_u32 s%d, %d" % (sW, who))
        e("s_cbranch_scc1 %s" % L)
        off_expr_setup()
        e("v_mov_b32 v%d, s%d" % (vT + 6, sT))
        e("v_mov_b32 v%d, s%d" % (vT + 7, sNONCE))
        e("s_mov_b64 exec, 1")
        e.vmem("buffer_store_dword v%d, v%d, s[%d:%d], 0 offen sc1" % (vT + 7, vT + 6, sWS, sWS + 3), 'flag', optional=True)
        e("s_mov_b64 exec, -1")
        e.label(L)

    def features(self, acc, outp, outn):
        e = self.e
        X, Pm, Ep, En = 32, 40, 56, 72
        mx, mn, t0, t1, ap, an = 88, 89, 90, 91, 92, 93
        for i in range(8):
            e("v_cvt_pk_bf16_f32 v%d, v%d, v%d" % (X + i, acc + 2 * i, acc + 2 * i + 1))
        self.upper_only(True)
        e("v_mov_b32 v%d, 0" % (X + 6))
        e("v_mov_b32 v%d, 0" % (X + 7))
        self.upper_only(False)
        e("s_nop 0")
        e("v_mfma_f32_32x32x16_bf16 %s, %s, %s, 0" % (vr(Pm, 16), vr(vPH, 4), vr(X, 4)))
        e("v_mfma_f32_32x32x16_bf16 %s, %s, %s, %s" % (vr(Pm, 16), vr(vPH + 4, 4), vr(X + 4, 4), vr(Pm, 16)))
        e("s_nop 11")
        for op, r in (("v_max3_f32", mx), ("v_min3_f32", mn)):
            e("%s v%d, v%d, v%d, v%d" % (op, r, Pm, Pm + 1, Pm + 2))
            for i in range(6):
                e("%s v%d, v%d, v%d, v%d" % (op, r, r, Pm + 3 + 2 * i, Pm + 4 + 2 * i))
            e("%s v%d, v%d, v%d" % (op.replace('3_', '_'), r, r, Pm + 15))
        self.cross_half(["v_max_f32", "v_min_f32"], [(mx, t0), (mn, t1)])
        e("v_mul_f32 v%d, s%d, v%d" % (ap, sNL2E, mx))
        e("v_mul_f32 v%d, s%d, v%d" % (an, sL2E, mn))
        for r in range(16):
            e("v_fma_f32 v%d, v%d, s%d, v%d" % (Ep + r, Pm + r, sL2E, ap))
            e("v_fma_f32 v%d, -v%d, s%d, v%d" % (En + r, Pm + r, sL2E, an))
        for r in range(16):
            e("v_exp_f32 v%d, v%d" % (Ep + r, Ep + r))
        for r in range(16):
            e("v_exp_f32 v%d, v%d" % (En + r, En + r))
        self.upper_only(True)
        for r in range(12, 16):
            e("v_mov_b32 v%d, 0" % (Ep + r))
            e("v_mov_b32 v%d, 0" % (En + r))
        self.upper_only(False)
        for E, s in ((Ep, mx), (En, mn)):
            A = Pm if E == Ep else Pm + 8
            for i in range(4):
                e("v_pk_add_f32 %s, %s, %s" % (vr(A + 2 * i, 2), vr(E + 4 * i, 2), vr(E + 4 * i + 2, 2)))
            e("v_pk_add_f32 %s, %s, %s" % (vr(A, 2), vr(A, 2), vr(A + 2, 2)))
            e("v_pk_add_f32 %s, %s, %s" % (vr(A + 4, 2), vr(A + 4, 2), vr(A + 6, 2)))
            e("v_pk_add_f32 %s, %s, %s" % (vr(A, 2), vr(A, 2), vr(A + 4, 2)))
            e("v_add_f32 v%d, v%d, v%d" % (s, A, A + 1))
        self.cross_half(["v_add_f32", "v_add_f32"], [(mx, t0), (mn, t1)])
        e("v_rcp_f32 v%d, v%d" % (ap, mx))
        e("v_rcp_f32 v%d, v%d" % (t0, mn))
        e("s_nop 0")
        for i in range(8):
            e("v_pk_mul_f32 %s, %s, %s op_sel_hi:[1,0]" % (vr(Ep + 2 * i, 2), vr(Ep + 2 * i, 2), vr(ap, 2)))
        for i in range(8):
            e("v_pk_mul_f32 %s, %s, %s op_sel_hi:[1,0]" % (vr(En + 2 * i, 2), vr(En + 2 * i, 2), vr(t0, 2)))
        for i in range(8):
            e("v_cvt_pk_bf16_f32 v%d, v%d, v%d" % (outp + i, Ep + 2 * i, Ep + 2 * i + 1))
        for i in range(8):
            e("v_cvt_pk_bf16_f32 v%d, v%d, v%d" % (outn + i, En + 2 * i, En + 2 * i + 1))

    def poll_block(self, name, load, check_regs, back):
        o = self.ool
        L = "L_spin_" + name
        o.label(L)
        o("s_mov_b32 s%d, 0x8000" % sCNT)
        o.label(L + "_loop")
        o(load)
        o("s_waitcnt vmcnt(0)")
        self.flag_compare(o, check_regs)
        o("s_cbranch_vccz %s" % back)
        o("s_sub_u32 s%d, s%d, 1" % (sCNT, sCNT))
        o("s_cmp_lg_u32 s%d, 0" % sCNT)
        o("s_cbranch_scc1 %s_loop" % L)
        o("s_branch %s" % back)
        return L

    def flag_compare(self, e, regs):
        t = vT + 4
        r = list(regs)
        if len(r) == 1:
            e("v_cmp_ne_u32 vcc, s%d, v%d" % (sNONCE, r[0]))
        else:
            for x in r:
                e("v_xor_b32 v%d, s%d, v%d" % (x, sNONCE, x))
            e("v_or3_b32 v%d, v%d, v%d, v%d" % (r[0], r[0], r[1], r[2]))
            e("v_or_b32 v%d, v%d, v%d" % (r[0], r[0], r[3]))
            e("v_cmp_ne_u32 vcc, 0, v%d" % r[0])
        e("s_nop 1")

    def flag_issue(self, name, dst, n, vaddr, soff):
        op = "buffer_load_dwordx4 %s" % vr(dst, 4) if n == 4 else "buffer_load_dword v%d" % dst
        ld = "%s, v%d, s[%d:%d], s%d offen sc1" % (op, vaddr, sWS, sWS + 3, soff)
        self.e.vmem(ld, name)
        return ld

    def flag_check(self, name, ld, dst, n):
        e = self.e
        e.vm_wait(name)
        back = self.lab('back_' + name)
        self.flag_compare(e, range(dst, dst + n))
        L = self.poll_block(name, ld, range(dst, dst + n), back)
        e("s_cbranch_vccnz %s" % L)
        e.label(back)

    def a_epilogue(self):
        e = self.e
        q, k, v = accA, accA + 16, accA + 32
        e.c("---- A epilogue: query features ----")
        e.vm_wait('wphi')
        e("s_lshl_b32 s%d, s%d, 7" % (sT2, sH))
        e("s_lshl_b32 s%d, s%d, 4" % (sT2 + 1, sW))
        e("s_add_u32 s%d, s%d, s%d" % (sT2, sT2, sT2 + 1))
        e("s_add_u32 s%d, s%d, %d" % (sT2, sT2, F1_OFF))
        e("v_mov_b32 v%d, 0" % (vT + 3))
        ld = self.flag_issue('f1', vWG, 4, vT + 3, sT2)
        self.features(q, vPQ, vPQ + 8)
        self.stamp('qfeat')
        self.flag_check('f1', ld, vWG, 4)
        self.stamp('f1ok')
        e("s_lshl_b32 s%d, s%d, 18" % (sKV, sH))
        e("s_lshl_b32 s%d, s%d, 16" % (sT, sW))
        e("s_add_u32 s%d, s%d, s%d" % (sKV, sKV, sT))
        e("s_add_u32 s%d, s%d, %d" % (sKV, sKV, KV_OFF))
        for kt in range(NSETS - 1):
            for f in self.kv_loads(kt): f()
        e.c("---- A epilogue: key features, kv partial ----")
        PK = vPST
        self.features(k, PK, PK + 8)
        for i in range(8):
            e("v_cvt_pk_bf16_f32 v%d, v%d, v%d" % (v + i, v + 2 * i, v + 2 * i + 1))
        e("s_mov_b32 exec_lo, 0x10000000")
        e("s_mov_b32 exec_hi, 0x10000000")
        for i in range(8):
            e("v_mov_b32 v%d, 0x3f803f80" % (v + i))
        e("s_mov_b64 exec, -1")
        t0, t1, t2 = vT, vT + 1, vT + 2
        e("v_and_b32 v%d, 31, v0" % t0)
        e("s_lshl_b32 s%d, s%d, 5" % (sT, sW))
        e("v_add_u32 v%d, s%d, v%d" % (t0, sT, t0))
        e("v_mul_u32_u24 v%d, 72, v%d" % (t0, t0))
        e("v_lshrrev_b32 v%d, 5, v0" % t1)
        e("v_lshl_add_u32 v%d, v%d, 3, v%d" % (t0, t1, t0))
        for sg, base in ((0, PHI_P), (1, PHI_N)):
            for g in range(4):
                e.lds("ds_write_b64 v%d, %s offset:%d" % (t0, vr(PK + 8 * sg + 2 * g, 2), base + 16 * g), 'phi')
        e("v_add_u32 v%d, s%d, v%d" % (t1, sLW, vL16))
        e("v_add_u32 v%d, s%d, v%d" % (t1, sLW, t1))
        e.lds("ds_write_b128 v%d, %s offset:%d" % (t1, vr(v, 4), VX), 'phi')
        e.lds("ds_write_b128 v%d, %s offset:%d" % (t1, vr(v + 4, 4), VX + 1024), 'phi')
        e.lg_drain()
        e("s_barrier")
        self.stamp('kfeat')
        L = self.lab('nokv')
        e("s_cmp_ge_u32 s%d, 2" % sW)
        e("s_cbranch_scc1 %s" % L)
        e("v_lshrrev_b32 v%d, 5, v0" % t0)
        e("v_lshlrev_b32 v%d, 2, v%d" % (t0, t0))
        e("v_bfe_u32 v%d, v0, 2, 2" % t1)
        e("v_add_u32 v%d, v%d, v%d" % (t0, t0, t1))
        e("v_mul_u32_u24 v%d, 72, v%d" % (t0, t0))
        e("v_bfe_u32 v%d, v0, 4, 1" % t1)
        e("v_lshl_add_u32 v%d, v%d, 5, v%d" % (t0, t1, t0))
        e("v_and_b32 v%d, 3, v0" % t1)
        e("v_lshl_add_u32 v%d, v%d, 3, v%d" % (t0, t1, t0))
        e("s_mul_i32 s%d, s%d, %d" % (sT, sW, PHI_N - PHI_P))
        e("v_add_u32 v%d, s%d, v%d" % (t0, sT, t0))
        A, B, Dk = 32, 64, accA
        for T in range(4):
            for mf in range(2):
                i = 2 * T + mf
                row = 32 * T + 16 * mf
                e.lds("ds_read_b64_tr_b16 %s, v%d offset:%d" % (vr(A + 4 * i, 2), t0, row * 72), 'c%d' % i)
                e.lds("ds_read_b64_tr_b16 %s, v%d offset:%d" % (vr(A + 4 * i + 2, 2), t0, (row + 8) * 72), 'c%d' % i)
                e.lds("ds_read_b128 %s, v%d offset:%d" % (vr(B + 4 * i, 4), vL16, VX + i * 1024), 'c%d' % i)
                if i >= 3:
                    jj = i - 3
                    e.lg_wait('c%d' % jj)
                    e("v_mfma_f32_32x32x16_bf16 %s, %s, %s, %s" % (vr(Dk, 16), vr(A + 4 * jj, 4), vr(B + 4 * jj, 4), "0" if jj == 0 else vr(Dk, 16)))
        for jj in range(5, 8):
            e.lg_wait('c%d' % jj)
            e("v_mfma_f32_32x32x16_bf16 %s, %s, %s, %s" % (vr(Dk, 16), vr(A + 4 * jj, 4), vr(B + 4 * jj, 4), vr(Dk, 16)))
        e("s_lshl_b32 s%d, s%d, 4" % (sT, sH))
        e("s_add_u32 s%d, s%d, s%d" % (sT, sT, sJ))
        e("s_lshl_b32 s%d, s%d, 13" % (sT, sT))
        e("s_lshl_b32 s%d, s%d, 12" % (sT + 1, sW))
        e("s_add_u32 s%d, s%d, s%d" % (sT, sT, sT + 1))
        e("s_add_u32 s%d, s%d, %d" % (sT, sT, PART_OFF))
        e("s_nop 7")
        for g in range(4):
            e.vmem("buffer_store_dwordx4 %s, v%d, s[%d:%d], s%d offen offset:%d sc1" % (vr(Dk + 4 * g, 4), vL16, sWS, sWS + 3, sT, g * 1024), 'part', optional=True)
        e.label(L)

    def kv_loads(self, kt):
        e = self.e
        base = aKV + 16 * (kt % NSETS)
        items = []
        def first():
            e("s_add_u32 s%d, s%d, %d" % (sSX, sKV, kt * 4096))
            e.vmem("buffer_load_dwordx4 %s, v%d, s[%d:%d], s%d offen sc1" % (ar(base, 4), vL16, sWS, sWS + 3, sSX), 'kv%d' % kt)
        items.append(first)
        for i in range(1, 4):
            items.append(lambda i=i: e.vmem("buffer_load_dwordx4 %s, v%d, s[%d:%d], s%d offen offset:%d sc1" % (ar(base + 4 * i, 4), vL16, sWS, sWS + 3, sSX, 1024 * i), 'kv%d' % kt))
        return items

    def qk(self, i):
        kt, t = i >> 2, i & 3
        S = vS + 16 * (i & 1)
        K = aKV + 16 * (kt % NSETS)
        return ["v_mfma_f32_32x32x16_bf16 %s, %s, %s, 0" % (vr(S, 16), ar(K, 4), vr(vQ + 8 * t, 4)),
                "v_mfma_f32_32x32x16_bf16 %s, %s, %s, %s" % (vr(S, 16), ar(K + 4, 4), vr(vQ + 8 * t + 4, 4), vr(S, 16))]
    def pv(self, i):
        kt, t = i >> 2, i & 3
        P = vP + 8 * (i & 1)
        V = aKV + 16 * (kt % NSETS) + 8
        O = vO + 16 * t
        return ["v_mfma_f32_32x32x16_bf16 %s, %s, %s, %s" % (vr(O, 16), ar(V, 4), vr(P, 4), "0" if kt == 0 else vr(O, 16)),
                "v_mfma_f32_32x32x16_bf16 %s, %s, %s, %s" % (vr(O, 16), ar(V + 4, 4), vr(P + 4, 4), vr(O, 16))]

    def attention(self):
        e = self.e
        e.c("---- attention ----")
        e.lg_wait('q')
        e.vm_wait('kv0')
        for m in self.qk(0): e(m)
        e("s_nop 10")
        extras = self.attn_extras()
        N = 64
        for i in range(N):
            kt, t = i >> 2, i & 3
            S = vS + 16 * (i & 1)
            P = vP + 8 * (i & 1)
            if t == 3 and kt + 1 < 16:
                e.vm_wait('kv%d' % (kt + 1))
            mq = self.qk(i + 1) if i + 1 < N else [None, None]
            mp = self.pv(i - 1) if i > 0 else [None, None]
            ex = lambda r: e("v_exp_f32 v%d, v%d" % (S + r, S + r))
            cv = lambda c: e("v_cvt_pk_bf16_f32 v%d, v%d, v%d" % (P + c, S + 2 * c, S + 2 * c + 1))
            fill = list(extras.get(i, []))
            if t == 1 and kt + NSETS - 1 < 16:
                fill = self.kv_loads(kt + NSETS - 1) + fill
            nfl = len(fill)
            fl = [fill[g * nfl // 4:(g + 1) * nfl // 4] for g in range(4)]
            def grp(g, m, seq):
                if m: e(m)
                for f in fl[g]: f()
                for s in seq:
                    (ex if s[0] == 'e' else cv)(s[1])
            grp(0, mq[0], [('e', 0), ('e', 1), ('e', 2), ('e', 3), ('c', 0)])
            grp(1, mq[1], [('e', 4), ('e', 5), ('c', 1), ('e', 6), ('e', 7), ('c', 2)])
            grp(2, mp[0], [('e', 8), ('e', 9), ('c', 3), ('e', 10), ('e', 11), ('c', 4)])
            grp(3, mp[1], [('e', 12), ('e', 13), ('c', 5), ('e', 14), ('e', 15), ('c', 6), ('c', 7)])
        e("s_nop 0")
        for m in self.pv(N - 1): e(m)

    def attn_extras(self):
        e = self.e
        X = {}
        def add(slot, f): X.setdefault(slot, []).append(f)
        t_all, t_f2 = vT, vT + 4
        def sig2():
            L = self.lab('sig2')
            e("s_cmp_ge_u32 s%d, 2" % sW)
            e("s_cbranch_scc1 %s" % L)
            e.vm_wait('part', keep=True)
            e("s_lshl_b32 s%d, s%d, 7" % (sT, sH))
            e("s_lshl_b32 s%d, s%d, 3" % (sT + 1, sJ))
            e("s_add_u32 s%d, s%d, s%d" % (sT, sT, sT + 1))
            e("s_lshl_b32 s%d, s%d, 2" % (sT + 1, sW))
            e("s_add_u32 s%d, s%d, s%d" % (sT, sT, sT + 1))
            e("s_add_u32 s%d, s%d, %d" % (sT, sT, F2_OFF))
            e("v_mov_b32 v%d, s%d" % (vT + 6, sT))
            e("v_mov_b32 v%d, s%d" % (vT + 7, sNONCE))
            e("s_mov_b64 exec, 1")
            e.vmem("buffer_store_dword v%d, v%d, s[%d:%d], 0 offen sc1" % (vT + 7, vT + 6, sWS, sWS + 3), 'flag', optional=True)
            e("s_mov_b64 exec, -1")
            e.label(L)
        add(11, sig2)
        st = {}
        def all_issue():
            e("v_lshrrev_b32 v%d, 2, v0" % (vT + 5))
            e("v_lshlrev_b32 v%d, 7, v%d" % (vT + 5, vT + 5))
            e("v_and_b32 v%d, 3, v0" % (vT + 6))
            e("v_lshl_add_u32 v%d, v%d, 4, v%d" % (vT + 5, vT + 6, vT + 5))
            e("s_mov_b32 s%d, %d" % (sT2 + 1, F1_OFF))
            st['all'] = self.flag_issue('fall', t_all, 4, vT + 5, sT2 + 1)
        add(12, all_issue)
        add(20, lambda: self.flag_check('fall', st['all'], t_all, 4))
        def wo_setup():
            e("s_lshr_b32 s%d, s%d, 2" % (sT2 + 2, sH))
            e("s_lshl_b32 s%d, s%d, 2" % (sT2 + 2, sT2 + 2))
            e("s_add_u32 s%d, s%d, s%d" % (sT2 + 2, sT2 + 2, sW))
            e("s_lshl_b32 s%d, s%d, 15" % (sT2 + 2, sT2 + 2))
            e("s_add_u32 s%d, s%d, %d" % (sT2 + 2, sT2 + 2, WOF_OFF))
        add(21, wo_setup)
        for ks in range(32):
            def ld(ks=ks):
                if ks % 4 == 0:
                    e("s_add_u32 s%d, s%d, %d" % (sT2 + 3, sT2 + 2, 512 * 1024 + ks * 1024))
                e.vmem("buffer_load_dwordx4 %s, v%d, s[%d:%d], s%d offen offset:%d sc1" % (ar(aWOB + 4 * ks, 4), vL16, sWS, sWS + 3, sT2 + 3, (ks % 4) * 1024), 'wob')
            add(22 + 4 * (ks // 4) + (0 if ks % 4 < 2 else 1), ld)
        def f2_issue():
            e("v_and_b32 v%d, 31, v0" % (vT + 5))
            e("v_lshlrev_b32 v%d, 2, v%d" % (vT + 5, vT + 5))
            e("s_lshl_b32 s%d, s%d, 7" % (sT2 + 4, sH))
            e("s_add_u32 s%d, s%d, %d" % (sT2 + 4, sT2 + 4, F2_OFF))
            st['f2'] = self.flag_issue('f2', t_f2, 1, vT + 5, sT2 + 4)
        add(28, f2_issue)
        def f2_check():
            self.flag_check('f2', st['f2'], t_f2, 1)
            e("s_lshl_b32 s%d, s%d, 17" % (sT2 + 4, sH))
            e("s_lshl_b32 s%d, s%d, 11" % (sT, sW))
            e("s_add_u32 s%d, s%d, s%d" % (sT2 + 4, sT2 + 4, sT))
            e("s_add_u32 s%d, s%d, %d" % (sT2 + 4, sT2 + 4, PART_OFF))
        add(36, f2_check)
        for b in range(4):
            s0 = 37 + 6 * b
            for jj in range(4):
                def ld(b=b, jj=jj):
                    e("s_add_u32 s%d, s%d, %d" % (sT, sT2 + 4, (4 * b + jj) * 8192))
                    e.vmem("buffer_load_dwordx4 %s, v%d, s[%d:%d], s%d offen sc1" % (vr(vPST + 8 * jj, 4), vL16, sWS, sWS + 3, sT), 'p%d' % b)
                    e.vmem("buffer_load_dwordx4 %s, v%d, s[%d:%d], s%d offen offset:1024 sc1" % (vr(vPST + 8 * jj + 4, 4), vL16, sWS, sWS + 3, sT), 'p%d' % b)
                add(s0 + (jj // 2), ld)
            add(s0 + 4, lambda b=b: e.vm_wait('p%d' % b))
            for jj in range(4):
                for r in range(8):
                    def ad(b=b, jj=jj, r=r):
                        if b == 0 and jj == 0:
                            e("v_mov_b32 v%d, v%d" % (vPAC + r, vPST + r))
                        else:
                            e("v_add_f32 v%d, v%d, v%d" % (vPAC + r, vPAC + r, vPST + 8 * jj + r))
                    add(s0 + 4 + (jj // 2), ad)
        return X

    def combine(self):
        e = self.e
        e.c("---- combine the four key ranges ----")
        t0, t1 = vT, vT + 1
        for t in range(1, 4):
            e("s_add_u32 s%d, s%d, %d" % (sT, sW, t))
            e("s_and_b32 s%d, s%d, 3" % (sT, sT))
            e("s_mul_i32 s%d, s%d, 12288" % (sT, sT))
            e("s_add_u32 s%d, s%d, %d" % (sT, sT, CB + (t - 1) * 4096))
            e("v_add_u32 v%d, s%d, v%d" % (vT + t, sT, vL16))
        e("s_mul_i32 s%d, s%d, 12288" % (sT, sW))
        e("s_add_u32 s%d, s%d, %d" % (sT, sT, CB))
        e("v_add_u32 v%d, s%d, v%d" % (vT + 4, sT, vL16))
        for t in range(1, 4):
            if t == 3: e("s_nop 3")
            for g in range(4):
                e.lds("ds_write_b128 v%d, %s offset:%d" % (vT + t, vr(vO + 16 * t + 4 * g, 4), g * 1024), 'cw')
        e("v_max3_f32 v%d, v%d, v%d, v%d" % (t0, vO + 12, vO + 28, vO + 44))
        e("v_max_f32 v%d, v%d, v%d" % (t0, t0, vO + 60))
        e("v_mov_b32 v%d, 0x%08x" % (vT + 5, f2u(LIMIT)))
        self.upper_only(True)
        e("v_cmp_nle_f32 vcc, v%d, v%d" % (t0, vT + 5))
        self.upper_only(False)
        e("s_nop 0")
        e("s_cmp_lg_u32 vcc_hi, 0")
        e("s_cselect_b32 s%d, 1, 0" % sT)
        e("v_mov_b32 v%d, s%d" % (vT + 5, sT))
        e("s_lshl_b32 s%d, s%d, 2" % (sT + 1, sW))
        e("s_add_u32 s%d, s%d, %d" % (sT + 1, sT + 1, VERD))
        e("v_mov_b32 v%d, s%d" % (vT + 6, sT + 1))
        e.lds("ds_write_b32 v%d, v%d" % (vT + 6, vT + 5), 'cw')
        e.lg_drain()
        e("s_barrier")
        R = vS
        for idx in range(3):
            for g in range(4):
                e.lds("ds_read_b128 %s, v%d offset:%d" % (vr(R + 16 * idx + 4 * g, 4), vT + 4, idx * 4096 + g * 1024), 'cr%d' % idx)
        e("v_mov_b32 v%d, %d" % (vT + 6, VERD))
        e.lds("ds_read_b128 %s, v%d" % (vr(vT, 4), vT + 6), 'verd')
        for idx in range(3):
            e.lg_wait('cr%d' % idx)
            for i in range(8):
                e("v_pk_add_f32 %s, %s, %s" % (vr(vO + 2 * i, 2), vr(vO + 2 * i, 2), vr(R + 16 * idx + 2 * i, 2)))
        e.lg_wait('verd')
        e("v_or3_b32 v%d, v%d, v%d, v%d" % (vT, vT, vT + 1, vT + 2))
        e("v_or_b32 v%d, v%d, v%d" % (vT, vT, vT + 3))
        e("s_nop 0")
        e("v_readfirstlane_b32 s%d, v%d" % (sT, vT))
        e("s_nop 0")
        e("s_cmp_lg_u32 s%d, 0" % sT)
        e("s_cbranch_scc1 L_fallback")
        e.label("L_fallback_done")
        self.normalize_store(vO, 0.0, OB_OFF, 'ob')

    def normalize_store(self, O, eps, off, tag):
        e = self.e
        t, u = vT, vT + 1
        e("v_mov_b32 v%d, v%d" % (t, O + 12))
        e("v_mov_b32 v%d, v%d" % (u, O + 12))
        e("s_nop 1")
        e("v_permlane32_swap_b32 v%d, v%d" % (t, u))
        if eps:
            e("v_add_f32 v%d, 0x%08x, v%d" % (u, f2u(eps), u))
        e("v_rcp_f32 v%d, v%d" % (vT + 2, u))
        e("s_nop 0")
        for i in range(8):
            e("v_pk_mul_f32 %s, %s, %s op_sel_hi:[1,0]" % (vr(O + 2 * i, 2), vr(O + 2 * i, 2), vr(vT + 2, 2)))
        for i in range(8):
            e("v_cvt_pk_bf16_f32 v%d, v%d, v%d" % (O + i, O + 2 * i, O + 2 * i + 1))
        self.upper_only(True)
        e("v_mov_b32 v%d, 0" % (O + 6))
        e("v_mov_b32 v%d, 0" % (O + 7))
        self.upper_only(False)
        e("s_lshl_b32 s%d, s%d, 2" % (sT, sJ))
        e("s_add_u32 s%d, s%d, s%d" % (sT, sT, sW))
        e("s_lshl_b32 s%d, s%d, 4" % (sT, sT))
        e("s_add_u32 s%d, s%d, s%d" % (sT, sT, sH))
        e("s_lshl_b32 s%d, s%d, 11" % (sT, sT))
        e("s_add_u32 s%d, s%d, %d" % (sT, sT, off))
        e.vmem("buffer_store_dwordx4 %s, v%d, s[%d:%d], s%d offen sc1" % (vr(O, 4), vL16, sWS, sWS + 3, sT), tag)
        e.vmem("buffer_store_dwordx4 %s, v%d, s[%d:%d], s%d offen offset:1024 sc1" % (vr(O + 4, 4), vL16, sWS, sWS + 3, sT), tag)

    def wo_a_loads(self):
        e = self.e
        for ks in range(32):
            if ks % 4 == 0:
                e("s_add_u32 s%d, s%d, %d" % (sT2 + 3, sT2 + 2, ks * 1024))
            e.vmem("buffer_load_dwordx4 %s, v%d, s[%d:%d], s%d offen offset:%d sc1" % (ar(aWOA + 4 * ks, 4), vL16, sWS, sWS + 3, sT2 + 3, (ks % 4) * 1024), 'woa')

    def a2(self):
        e = self.e
        e.c("---- A: reduce kv, numerator / denominator ----")
        K = vS
        for i in range(4):
            e("v_cvt_pk_bf16_f32 v%d, v%d, v%d" % (vPAC + i, vPAC + 2 * i, vPAC + 2 * i + 1))
        e("v_add_u32 v%d, s%d, v%d" % (vT, sLW, vL16))
        e("v_add_u32 v%d, %d, v%d" % (vT, KVX, vT))
        e("v_add_u32 v%d, %d, v%d" % (vT + 1, KVX, vL16))
        e.lds("ds_write_b128 v%d, %s" % (vT, vr(vPAC, 4)), 'kvx')
        e.lg_drain()
        e("s_barrier")
        for i in range(4):
            e.lds("ds_read_b128 %s, v%d offset:%d" % (vr(K + 4 * i, 4), vT + 1, i * 1024), 'kr%d' % i)
        D = vO + 16
        for i in range(4):
            e.lg_wait('kr%d' % i)
            e("v_mfma_f32_32x32x16_bf16 %s, %s, %s, %s" % (vr(D, 16), vr(K + 4 * i, 4), vr(vPQ + 4 * i, 4), "0" if i == 0 else vr(D, 16)))
        e("s_nop 11")
        self.normalize_store(D, 1e-6, OA_OFF, 'oa')

    def outproj(self, name, off, ost, aW, colbase):
        e = self.e
        e.c("---- output projection %s ----" % name)
        R = vS
        e("s_lshl_b32 s%d, s%d, 2" % (sT2 + 5, sJ))
        e("s_and_b32 s%d, s%d, 3" % (sT, sH))
        e("s_add_u32 s%d, s%d, s%d" % (sT2 + 5, sT2 + 5, sT))
        e("s_lshl_b32 s%d, s%d, 15" % (sT, sT2 + 5))
        e("s_lshl_b32 s%d, s%d, 13" % (sT + 1, sW))
        e("s_add_u32 s%d, s%d, s%d" % (sT, sT, sT + 1))
        e("s_add_u32 s%d, s%d, %d" % (sT, sT, off))
        e("s_add_u32 s%d, s%d, 4096" % (sT + 1, sT))
        back = self.lab('oback')
        loop = self.lab('oloop')
        def loads(em, track):
            for i in range(8):
                s = "buffer_load_dwordx4 %s, v%d, s[%d:%d], s%d offen offset:%d sc1" % (vr(R + 4 * i, 4), vL16, sWS, sWS + 3, sT + (i // 4), (i % 4) * 1024)
                if track: em.vmem(s, 'o' + name)
                else: em(s)
        def check(em):
            em("v_max3_u32 v%d, v%d, v%d, v%d" % (vT, R, R + 1, R + 2))
            for i in range(14):
                em("v_max3_u32 v%d, v%d, v%d, v%d" % (vT, vT, R + 3 + 2 * i, R + 4 + 2 * i))
            em("v_max_u32 v%d, v%d, v%d" % (vT, vT, R + 31))
            em("v_cmp_eq_u32 vcc, -1, v%d" % vT)
            em("s_nop 1")
        loads(e, True)
        e("s_lshl_b32 s%d, s%d, 13" % (sT + 2, sW))
        e("s_add_u32 s%d, s%d, %d" % (sT + 2, sT + 2, ost))
        e("v_add_u32 v%d, s%d, v%d" % (vT + 1, sT + 2, vL16))
        e("v_add_u32 v%d, %d, v%d" % (vT + 2, ost, vL16))
        e.vm_wait('o' + name)
        check(e)
        e("s_cbranch_vccnz %s" % loop)
        e.label(back)
        o = self.ool
        o.label(loop)
        o("s_mov_b32 s%d, 0x8000" % sCNT)
        o.label(loop + "_l")
        loads(o, False)
        o("s_waitcnt vmcnt(0)")
        check(o)
        o("s_cbranch_vccz %s" % back)
        o("s_sub_u32 s%d, s%d, 1" % (sCNT, sCNT))
        o("s_cmp_lg_u32 s%d, 0" % sCNT)
        o("s_cbranch_scc1 %s_l" % loop)
        o("s_branch %s" % back)
        for i in range(8):
            e.lds("ds_write_b128 v%d, %s offset:%d" % (vT + 1, vr(R + 4 * i, 4), i * 1024), 'ow')
        e.lg_drain()
        e("s_barrier")
        self.stamp('o%s_in' % name)
        e.vm_wait('wo' + name.lower())
        D = vO + 32
        NB = 8
        def rd(ks):
            e.lds("ds_read_b128 %s, v%d offset:%d" % (vr(R + 4 * (ks % NB), 4), vT + 2, ks * 1024), 'of%d' % ks)
        for ks in range(NB - 1): rd(ks)
        for ks in range(32):
            e.lg_wait('of%d' % ks)
            e("v_mfma_f32_32x32x16_bf16 %s, %s, %s, %s" % (vr(D, 16), ar(aW + 4 * ks, 4), vr(R + 4 * (ks % NB), 4), "0" if ks == 0 else vr(D, 16)))
            if ks + NB - 1 < 32: rd(ks + NB - 1)
        e("v_and_b32 v%d, 31, v0" % vT)
        e("s_lshl_b32 s%d, s%d, 5" % (sT, sT2 + 5))
        e("v_add_u32 v%d, s%d, v%d" % (vT, sT, vT))
        e("v_mul_u32_u24 v%d, 1792, v%d" % (vT, vT))
        e("v_lshrrev_b32 v%d, 5, v0" % (vT + 1))
        e("v_lshl_add_u32 v%d, v%d, 3, v%d" % (vT, vT + 1, vT))
        e("s_lshr_b32 s%d, s%d, 2" % (sT, sH))
        e("s_lshl_b32 s%d, s%d, 2" % (sT, sT))
        e("s_add_u32 s%d, s%d, s%d" % (sT, sT, sW))
        e("s_mul_i32 s%d, s%d, 56" % (sT, sT))
        e("s_add_u32 s%d, s%d, %d" % (sT, sT, colbase * 2))
        e("s_nop 3")
        for i in range(8):
            e("v_cvt_pk_bf16_f32 v%d, v%d, v%d" % (D + i, D + 2 * i, D + 2 * i + 1))
        for g in range(4):
            if g == 3: e("s_mov_b32 exec_hi, 0")
            e.vmem("buffer_store_dwordx2 %s, v%d, s[%d:%d], s%d offen offset:%d" % (vr(D + 2 * g, 2), vT, sOUT, sOUT + 3, sT, 16 * g), 'out')
        e("s_mov_b32 exec_hi, -1")

    def fallback(self):
        o = self.ool
        o.label("L_fallback")
        o("s_branch L_fallback_done")

    def finish(self):
        e = self.e
        L = self.lab('gen')
        e("s_cmp_lg_u32 s2, 0")
        e("s_cbranch_scc1 %s" % L)
        e("s_cmp_lg_u32 s%d, 0" % sW)
        e("s_cbranch_scc1 %s" % L)
        e("v_mov_b32 v%d, s%d" % (vT + 7, sNONCE))
        e("v_mov_b32 v%d, %d" % (vT + 6, G_OFF))
        e("s_mov_b64 exec, 1")
        e.vmem("buffer_store_dword v%d, v%d, s[%d:%d], 0 offen" % (vT + 7, vT + 6, sWS, sWS + 3), 'gen', optional=True)
        e("s_mov_b64 exec, -1")
        e.label(L)
        if self.o.get('stamps'):
            self.stamp('end')
            e("s_lshl_b32 s%d, s2, 2" % sT)
            e("s_add_u32 s%d, s%d, s%d" % (sT, sT, sW))
            e("s_lshl_b32 s%d, s%d, 7" % (sT, sT))
            e("s_add_u32 s%d, s%d, %d" % (sT, sT, STAMP_OFF))
            e("v_lshlrev_b32 v%d, 2, v0" % vT)
            e("s_mov_b32 exec_hi, 0")
            e.vmem("buffer_store_dword v239, v%d, s[%d:%d], s%d offen" % (vT, sWS, sWS + 3, sT), 'st')
            e("s_mov_b32 exec_hi, -1")

    def build(self):
        e = self.e
        self.prologue()
        def top0():
            e("s_mul_i32 s%d, s%d, 0x9E3779B1" % (sNONCE, sNONCE))
            e("s_add_u32 s%d, s%d, 0x7F4A7C15" % (sNONCE, sNONCE))
        self.body(0, top=top0)
        self.stamp('ch0')
        for ch in range(1, 7):
            self.body(ch, top=self.merge_gathers if ch == 5 else None)
        self.stamp('bgemm')
        self.body(7, mid=self.b_epilogue)
        self.stamp('bepi')
        self.body(8, top=self.read_q)
        for ch in (9, 10):
            self.body(ch)
        def sig1():
            def off():
                e("s_lshl_b32 s%d, s%d, 7" % (sT, sH))
                e("s_lshl_b32 s%d, s%d, 2" % (sT + 1, sJ))
                e("s_add_u32 s%d, s%d, s%d" % (sT, sT, sT + 1))
                e("s_add_u32 s%d, s%d, %d" % (sT, sT, F1_OFF))
            self.signal(off, 0)
        self.body(11, top=sig1)
        self.body(12)
        self.body(13)
        e.lg_wait('f13_2')
        for m in self.mfmas(13, 2): m()
        e.lg_wait('f13_3')
        for m in self.mfmas(13, 3): m()
        e("s_nop 7")
        self.stamp('agemm')
        self.a_epilogue()
        self.stamp('aepi')
        self.attention()
        self.stamp('attn')
        self.combine()
        self.wo_a_loads()
        self.stamp('comb')
        self.a2()
        self.stamp('a2')
        self.outproj('B', OB_OFF, OST_B, aWOB, 448)
        self.stamp('opb')
        self.outproj('A', OA_OFF, OST_A, aWOA, 0)
        self.finish()
        self.fallback()

    def text(self):
        self.build()
        hdr = open(os.path.join(os.path.dirname(os.path.abspath(__file__)), '..', 'cdna_kernels', NAME + '.s.ref')).read().split('\n')
        top = [l for l in hdr if l.startswith(';') and '@launch' not in l and 'Override launch' not in l and 'grid=ceil' not in l]
        out = '\n'.join(top) + '\n'
        out += "; @launch grid=(256,1,1) block=(256,1,1) lds=%d\n" % LDS_SIZE
        out += '.amdgcn_target "amdgcn-amd-amdhsa--gfx950"\n.text\n.globl %s_kernel\n.p2align 8\n.type %s_kernel,@function\n%s_kernel:\n' % (NAME, NAME, NAME)
        out += self.e.text()
        out += "L_end:\n  s_endpgm\n"
        out += self.ool.text()
        out += "L_codeend:\n  s_endpgm\n"
        out += """.section .rodata,"a"
.p2align 6
.amdhsa_kernel %s_kernel
  .amdhsa_next_free_vgpr 512
  .amdhsa_next_free_sgpr 102
  .amdhsa_accum_offset 256
  .amdhsa_group_segment_fixed_size 0
  .amdhsa_kernarg_size 80
  .amdhsa_user_sgpr_count 2
  .amdhsa_user_sgpr_kernarg_segment_ptr 1
  .amdhsa_system_sgpr_workgroup_id_x 1
.end_amdhsa_kernel
""" % NAME
        return out

if __name__ == '__main__':
    import argparse, hazard
    ap = argparse.ArgumentParser()
    ap.add_argument('-o', default=os.path.join(os.path.dirname(os.path.abspath(__file__)), '..', 'cdna_kernels', NAME + '.s'))
    ap.add_argument('--stamps', action='store_true')
    ap.add_argument('--map', type=int, default=4)
    a = ap.parse_args()
    g = Gen(dict(stamps=a.stamps, map=a.map))
    t = g.text()
    open(a.o, 'w').write(t)
    if a.stamps:
        open(a.o + '.stamps', 'w').write('\n'.join(g.stamp_names))
    body = t.split('_kernel:\n')[1].split('.section')[0]
    probs = hazard.check(body.split('\n'))
    for p in probs[:60]: print(p)
    print(len(probs), "hazard problems;", len(t), "bytes,", body.count('\n'), "lines")
```

```python
import sys, os, math, struct
sys.path.insert(0, os.path.dirname(os.path.abspath(__file__)))
from core import *

NAME = "concat_heads__linear_kernel_hedgehog__mha_block__prompt"

def f2u(x):
    return struct.unpack('<I', struct.pack('<f', x))[0]

G_OFF, F0_OFF, F1_OFF, F2_OFF, F3_OFF = 0, 0x1000, 0x2000, 0x3000, 0x4000
KVF_OFF = 0x10000
KV_OFF, PART_OFF, OA_OFF, OB_OFF, WOF_OFF, QF_OFF = 0x100000, 0x500000, 0x700000, 0x900000, 0xB00000, 0xC00000
STAMP_OFF, WS_SIZE = 0xE00000, 0xE80000
XS, WBASE, WS_ = 16384, 65536, 12288
PHI, VX = 0, 36864
CB, VERD, OST_B, OST_A = 0, 49152, 53248, 86016
MX = 49664
LDS_SIZE = 151552
sX, sWt, sPH, sWO, sWS, sOUT, sPC = 24, 28, 32, 36, 40, 44, 48
sROLE, sHP, sJ, sW, sNONCE = 52, 53, 54, 55, 56
sH2, sJ2, sTH, sHD = 57, 58, 59, 60
sXROW, sWROW, sLX, sLW, sSX, sSW = 61, 62, 63, 64, 65, 66
sC = 68
sL2E, sNL2E = 70, 71
sT = 72
sKV, sCNT = 80, 81
sT2 = 82
sH1 = 92
sL16W = 93
vL16 = 1
vXD, vWD, vXR, vWR = 2, 6, 9, 13
vT = 16
vF = 32
vACC = 112
vPH, vRAW = 208, 216
vPQ = 224
vS, vP, vO, vQ = 32, 64, 96, 160
vX = 192
vCH = 216
NSETS = 4
aKV, aWOB_LO, aWOB_HI, aWOA = 0, 64, 0, 128

SCALE = (28.0 ** -0.5) * math.log2(math.e)
OFFS = 64.0
LIMIT = 2.0 ** 90

def acc(t, ty): return vACC + 48 * t + 16 * ty

class Gen:
    def __init__(self, opt):
        self.o = opt
        self.e = Em()
        self.ool = Em()
        self.nlab = 0
        self.nstamp = 0
        self.stamp_names = []
    def lab(self, p):
        self.nlab += 1
        return "L_%s_%d" % (p, self.nlab)
    def stamp(self, name, k=None):
        if not self.o.get('stamps'):
            return
        e = self.e
        if k is None:
            k = self.nstamp
            self.nstamp += 1
            self.stamp_names.append(name)
        e("s_memrealtime s[94:95]")
        e("s_memtime s[96:97]")
        e("s_waitcnt lgkmcnt(0)")
        e.lg = []
        e("v_writelane_b32 v15, s94, %d" % k)
        e("v_writelane_b32 v8, s96, %d" % k) if False else None
        e("v_writelane_b32 v15, s96, %d" % (32 + k))
        return k

    def srd(self, s, p, n, bias=0):
        e = self.e
        if bias:
            e("s_sub_u32 s%d, s%d, %d" % (s, p, bias))
            e("s_subb_u32 s%d, s%d, 0" % (s + 1, p + 1))
            e("s_and_b32 s%d, s%d, 0xffff" % (s + 1, s + 1))
        else:
            e("s_mov_b32 s%d, s%d" % (s, p))
            e("s_and_b32 s%d, s%d, 0xffff" % (s + 1, p + 1))
        e("s_mov_b32 s%d, %d" % (s + 2, n + bias))
        e("s_mov_b32 s%d, 0x20000" % (s + 3))

    def prologue(self):
        e = self.e
        e("s_getpc_b64 s[%d:%d]" % (sPC, sPC + 1))
        e.label("L_pc")
        e("s_load_dwordx16 s[4:19], s[0:1], 0")
        e("s_load_dwordx4 s[20:23], s[0:1], 64")
        e("s_cmp_ge_u32 s2, 256")
        e("s_cbranch_scc1 L_end")
        e("s_mov_b32 s%d, L_codeend-L_pc" % (sPC + 2))
        e("s_mov_b32 s%d, 0x20000" % (sPC + 3))
        e("v_lshlrev_b32 v%d, 7, v0" % vT)
        e("v_lshrrev_b32 v%d, 6, v0" % (vT + 1))
        e.vmem("buffer_load_dword v%d, v%d, s[%d:%d], 0 offen" % (vT + 2, vT, sPC, sPC + 3), 'pf')
        e("v_readfirstlane_b32 s%d, v%d" % (sW, vT + 1))
        e("v_and_b32 v0, 63, v0")
        e("v_mov_b32 v%d, 0" % (vT + 8))
        if self.o.get('stamps'):
            e("v_mov_b32 v15, 0")
            self.stamp('start')
        e("s_and_b32 s%d, s2, 7" % sT)
        e("s_lshr_b32 s%d, s2, 3" % (sT + 1))
        e("s_and_b32 s%d, s%d, 1" % (sROLE, sT + 1))
        e("s_lshr_b32 s%d, s%d, 1" % (sT + 3, sT + 1))
        e("s_and_b32 s%d, s%d, 1" % (sHP, sT))
        e("s_lshl_b32 s%d, s%d, 2" % (sHP, sHP))
        e("s_and_b32 s%d, s%d, 3" % (sT + 2, sT + 3))
        e("s_add_u32 s%d, s%d, s%d" % (sHP, sHP, sT + 2))
        e("s_lshr_b32 s%d, s%d, 1" % (sJ, sT))
        e("s_lshl_b32 s%d, s%d, 2" % (sJ, sJ))
        e("s_lshr_b32 s%d, s%d, 2" % (sT + 2, sT + 3))
        e("s_add_u32 s%d, s%d, s%d" % (sJ, sJ, sT + 2))
        e("s_lshl_b32 s%d, s%d, 1" % (sH2, sT))
        e("s_and_b32 s%d, s%d, 1" % (sT + 2, sT + 1))
        e("s_add_u32 s%d, s%d, s%d" % (sH2, sH2, sT + 2))
        e("s_lshr_b32 s%d, s%d, 1" % (sJ2, sT + 1))
        e("s_and_b32 s%d, s%d, 1" % (sTH, sW))
        e("s_lshr_b32 s%d, s%d, 1" % (sHD, sW))
        e("s_lshl_b32 s%d, s%d, 1" % (sH1, sHP))
        e("s_add_u32 s%d, s%d, s%d" % (sH1, sH1, sHD))
        e("s_lshl_b32 s%d, s%d, 2" % (sT, sJ))
        e("s_add_u32 s%d, s%d, s%d" % (sT, sT, sW))
        e("s_mul_i32 s%d, s%d, %d" % (sXROW, sT, 32 * 896))
        e("s_lshl_b32 s%d, s%d, 3" % (sT, sW))
        e("s_mul_i32 s%d, s%d, 2688" % (sWROW, sT))
        e("s_mul_i32 s%d, s%d, 112" % (sT + 1, sHP))
        e("s_add_u32 s%d, s%d, s%d" % (sWROW, sWROW, sT + 1))
        e("s_lshl_b32 s%d, s%d, 12" % (sLX, sW))
        e("s_mul_i32 s%d, s%d, 3072" % (sLW, sW))
        e("s_add_u32 s%d, s%d, %d" % (sLW, sLW, WBASE))
        e("s_lshl_b32 s%d, s%d, 10" % (sL16W, sW))
        t0, t1, t2, t3 = vT + 3, vT + 4, vT + 5, vT + 6
        e("v_lshlrev_b32 v%d, 4, v0" % vL16)
        e("v_lshrrev_b32 v%d, 3, v0" % t0)
        e("v_lshrrev_b32 v%d, 4, v0" % t1)
        e("v_and_b32 v%d, 7, v0" % t2)
        e("v_mul_u32_u24 v%d, 896, v%d" % (vT + 7, t0))
        for i in range(4):
            if i < 2:
                e("v_add_u32 v%d, %d, v%d" % (t3, 4 * i, t1))
                e("v_xor_b32 v%d, v%d, v%d" % (t3, t3, t2))
                e("v_lshl_add_u32 v%d, v%d, 4, v%d" % (vXD + i, t3, vT + 7))
                if i:
                    e("v_add_u32 v%d, %d, v%d" % (vXD + i, 6144 * i, vXD + i))
            else:
                e("v_add_u32 v%d, %d, v%d" % (vXD + i, 2 * 6144, vXD + i - 2))
        e("v_and_b32 v%d, 1, v%d" % (t3, t1))
        e("v_lshlrev_b32 v%d, 2, v%d" % (t3, t3))
        e("v_xor_b32 v%d, v%d, v%d" % (t3, t3, t2))
        e("v_min_u32 v%d, 6, v%d" % (t3, t3))
        e("v_mul_u32_u24 v%d, 2688, v%d" % (t0, t0))
        e("v_lshl_add_u32 v%d, v%d, 4, v%d" % (t0, t3, t0))
        for ty in range(3):
            e("v_add_u32 v%d, %d, v%d" % (vWD + ty, 256 - 128 * ty, t0))
        e("s_waitcnt lgkmcnt(0)")
        e("s_cmp_eq_u32 s%d, 0" % sROLE)
        e("s_cselect_b32 s%d, s12, s4" % sT)
        e("s_cselect_b32 s%d, s13, s5" % (sT + 1))
        e("s_cselect_b32 s%d, s14, s6" % (sT + 2))
        e("s_cselect_b32 s%d, s15, s7" % (sT + 3))
        self.srd(sX, sT, 2048 * 896)
        self.srd(sWt, sT + 2, 448 * 2688, bias=256)
        if self.o.get('warm'): self.input_prefetch()
        self.dma_x(0); self.dma_w(0); self.dma_w(1)
        self.srd(sWS, 22, WS_SIZE)
        e("s_load_dword s%d, s[22:23], %d" % (sNONCE, G_OFF))
        self.dma_x(1); self.dma_w(2); self.dma_w(3)
        self.dma_x(2); self.dma_w(4); self.dma_w(5)
        self.dma_x(3)
        self.srd(sPH, 8, 16 * 28 * 28 * 2)
        self.srd(sOUT, 18, 2048 * 896 * 2)
        e("v_and_b32 v%d, 31, v0" % t0)
        e("v_lshrrev_b32 v%d, 5, v0" % t1)
        e("v_lshlrev_b32 v%d, 7, v%d" % (t2, t0))
        e("s_lshl_b32 s%d, s%d, 13" % (sT, sTH))
        e("v_add_u32 v%d, s%d, v%d" % (t2, sT, t2))
        e("v_bfe_u32 v%d, v0, 1, 3" % t3)
        e("v_xor_b32 v%d, v%d, v%d" % (t3, t3, t1))
        for s in range(4):
            e("v_xor_b32 v%d, %d, v%d" % (vT + 7, 2 * s, t3))
            e("v_lshl_add_u32 v%d, v%d, 4, v%d" % (vXR + s, vT + 7, t2))
        e("v_bfe_u32 v%d, v0, 4, 1" % t2)
        e("v_lshlrev_b32 v%d, 5, v%d" % (t2, t2))
        e("v_and_b32 v%d, 3, v0" % t3)
        e("v_lshl_add_u32 v%d, v%d, 3, v%d" % (t2, t3, t2))
        e("s_mul_i32 s%d, s%d, 56" % (sT, sHD))
        e("v_add_u32 v%d, s%d, v%d" % (t2, sT, t2))
        e("v_bfe_u32 v%d, v0, 3, 1" % t3)
        e("v_lshlrev_b32 v%d, 6, v%d" % (t3, t3))
        e("v_xor_b32 v%d, v%d, v%d" % (t2, t2, t3))
        e("v_bfe_u32 v%d, v0, 2, 2" % t3)
        e("v_lshl_add_u32 v%d, v%d, 7, v%d" % (t2, t3, t2))
        e("v_mul_u32_u24 v%d, 3072, v%d" % (t3, t1))
        e("v_add_u32 v%d, v%d, v%d" % (t2, t2, t3))
        e("v_add_u32 v%d, %d, v%d" % (vWR, WBASE, t2))
        e("v_add_u32 v%d, %d, v%d" % (vWR + 1, WBASE + 5 * WS_, t2))
        e("s_mov_b32 s%d, 0x%08x" % (sC, f2u(SCALE)))
        e("s_mov_b32 s%d, 0x%08x" % (sC + 1, f2u(SCALE)))
        e("s_mov_b32 s%d, 0x%08x" % (sL2E, f2u(math.log2(math.e))))
        e("s_mov_b32 s%d, 0x%08x" % (sNL2E, f2u(-math.log2(math.e))))
        e("v_min_u32 v%d, 27, v%d" % (t2, t0))
        e("v_mul_u32_u24 v%d, %d, v%d" % (t3, 4 * 28, t1))
        e("v_add_u32 v%d, v%d, v%d" % (t2, t2, t3))
        e("v_lshlrev_b32 v%d, 1, v%d" % (t2, t2))
        e("s_mul_i32 s%d, s%d, 1568" % (sT, sH1))
        for mf in range(2):
            for j in range(8):
                d = 16 * mf + (j & 3) + 8 * (j >> 2)
                e.vmem("buffer_load_ushort v%d, v%d, s[%d:%d], s%d offen offset:%d" % (vRAW + 8 * mf + j, t2, sPH, sPH + 3, sT, d * 56), 'wphi')

    def input_prefetch(self):
        e = self.e
        S = sWO
        e("s_lshl_b32 s%d, s2, 2" % sT)
        e("s_add_u32 s%d, s%d, s%d" % (sT, sT, sW))
        segs = [(14, 448 * 2688), (6, 448 * 2688), (12, 2048 * 896), (4, 2048 * 896), (16, 448 * 896), (10, 448 * 896)]
        start = 0
        L = self.lab('pfdone')
        labs = [self.lab('pfseg') for _ in segs]
        for (p, n), lb in zip(segs, labs):
            cnt = (n + 8191) // 8192
            e("s_cmp_lt_u32 s%d, %d" % (sT, start + cnt))
            e("s_cselect_b32 s%d, 1, 0" % (sT + 1))
            e("s_cbranch_scc0 %s" % lb)
            e("s_mov_b32 s%d, s%d" % (S, p))
            e("s_and_b32 s%d, s%d, 0xffff" % (S + 1, p + 1))
            e("s_mov_b32 s%d, %d" % (S + 2, n))
            e("s_sub_u32 s%d, s%d, %d" % (sT + 2, sT, start))
            e("s_branch %s" % (L + "_go"))
            e.label(lb)
            start += cnt
        e("s_branch %s" % L)
        e.label(L + "_go")
        e("s_mov_b32 s%d, 0x20000" % (S + 3))
        e("s_lshl_b32 s%d, s%d, 13" % (sT + 2, sT + 2))
        e("v_lshlrev_b32 v%d, 7, v0" % (vT + 9))
        e.vmem("buffer_load_dword v%d, v%d, s[%d:%d], s%d offen" % (vT + 10, vT + 9, S, S + 3, sT + 2), 'pf2', optional=True)
        e.label(L)

    def merge_wphi(self):
        e = self.e
        e.vm_wait('wphi')
        for i in range(8):
            e("v_lshl_or_b32 v%d, v%d, 16, v%d" % (vPH + i, vRAW + 2 * i + 1, vRAW + 2 * i))

    def dma_x(self, c):
        e = self.e
        e("s_add_u32 m0, s%d, %d" % (sLX, (c % 4) * XS))
        e("s_add_u32 s%d, s%d, %d" % (sSX, sXROW, c * 128))
        for i in range(4):
            e.vmem("buffer_load_dwordx4 v%d, s[%d:%d], s%d offen offset:%d lds" % (vXD + i, sX, sX + 3, sSX, 1024 * i), 'x%d' % c)
    def dma_w(self, hc):
        e = self.e
        e("s_add_u32 m0, s%d, %d" % (sLW, (hc % 7) * WS_))
        e("s_add_u32 s%d, s%d, %d" % (sSW, sWROW, hc * 32 * 2688))
        for ty in range(3):
            e.vmem("buffer_load_dwordx4 v%d, s[%d:%d], s%d offen offset:%d lds" % (vWD + ty, sWt, sWt + 3, sSW, 1024 * ty), 'w%d' % hc)

    def frag_reads(self, hc, ks):
        e = self.e
        b = 2 * (hc & 1) + ks
        F = vF + 20 * b
        c = hc >> 1
        s = 2 * (hc & 1) + ks
        slot = hc % 7
        wr, rel = (vWR, slot * WS_) if slot < 5 else (vWR + 1, (slot - 5) * WS_)
        tag = 'f%d_%d' % (hc, ks)
        items = []
        for t in range(2):
            items.append(lambda t=t: e.lds("ds_read_b128 %s, v%d offset:%d" % (vr(F + 4 * t, 4), vXR + s, (c % 4) * XS + 4096 * t), tag))
        for ty in range(3):
            for hf in range(2):
                off = rel + ks * 6144 + ty * 1024 + 512 * hf
                items.append(lambda ty=ty, hf=hf, off=off: e.lds("ds_read_b64_tr_b16 %s, v%d offset:%d" % (vr(F + 8 + 4 * ty + 2 * hf, 2), wr, off), tag))
        return items

    def mfmas(self, hc, ks):
        e = self.e
        F = vF + 20 * (2 * (hc & 1) + ks)
        first = (hc == 0 and ks == 0)
        items = []
        for ty in range(3):
            for t in range(2):
                D = vr(acc(t, ty), 16)
                C = "0" if first else D
                if ty < 2:
                    items.append(lambda D=D, C=C, ty=ty, t=t: e("v_mfma_f32_32x32x16_bf16 %s, %s, %s, %s" % (D, vr(F + 8 + 4 * ty, 4), vr(F + 4 * t, 4), C)))
                else:
                    items.append(lambda D=D, C=C, t=t: e("v_mfma_f32_32x32x16_bf16 %s, %s, %s, %s" % (D, vr(F + 4 * t, 4), vr(F + 16, 4), C)))
        return items

    def body(self, hc, top=None):
        e = self.e
        e.c("---- GEMM half chunk %d ----" % hc)
        e.vm_wait('w%d' % hc, 'x%d' % (hc >> 1))
        e.lg_drain()
        e("s_barrier")
        if top: top()
        mf = (self.mfmas(hc - 1, 0) + self.mfmas(hc - 1, 1)) if hc > 0 else []
        rd = self.frag_reads(hc, 0) + self.frag_reads(hc, 1)
        if mf:
            mf.pop(0)()
        if hc + 6 < 14: self.dma_w(hc + 6)
        if hc >= 2 and hc % 2 == 0 and hc // 2 + 3 < 7: self.dma_x(hc // 2 + 3)
        k = 0
        for i, m in enumerate(mf):
            n = 2 if i < 8 else 0
            for r in rd[k:k + n]: r()
            k += n
            m()
        for r in rd[k:]: r()

    def upper_only(self, on):
        self.e("s_mov_b32 exec_lo, %s" % ("0" if on else "-1"))

    def cross_half(self, op, regs):
        e = self.e
        for v, t in regs:
            e("v_mov_b32 v%d, v%d" % (t, v))
        e("s_nop %d" % (1 if len(regs) == 1 else 0))
        for v, t in regs:
            e("v_permlane32_swap_b32 v%d, v%d" % (v, t))
        for (v, t), o in zip(regs, op):
            e("%s v%d, v%d, v%d" % (o, v, v, t))

    def one_lane_store(self, vaddr, vdata, soff_reg, tag):
        e = self.e
        e("v_mov_b32 v%d, s%d" % (vaddr, soff_reg))
        e("v_mov_b32 v%d, s%d" % (vdata, sNONCE))
        e("s_mov_b64 exec, 1")
        e.vmem("buffer_store_dword v%d, v%d, s[%d:%d], 0 offen sc1" % (vdata, vaddr, sWS, sWS + 3), tag, optional=True)
        e("s_mov_b64 exec, -1")

    def b_epilogue(self):
        e = self.e
        e.c("---- B epilogue: pack Q/K/V, stand-in row max, publish ----")
        St = [32, 48]
        for t in range(2):
            q, k, v = acc(t, 0), acc(t, 1), acc(t, 2)
            for i in range(8):
                e("v_pk_mul_f32 %s, %s, s[%d:%d]" % (vr(q + 2 * i, 2), vr(q + 2 * i, 2), sC, sC + 1))
            for i in range(8):
                e("v_cvt_pk_bf16_f32 v%d, v%d, v%d" % (k + i, k + 2 * i, k + 2 * i + 1))
            for i in range(8):
                e("v_cvt_pk_bf16_f32 v%d, v%d, v%d" % (q + i, q + 2 * i, q + 2 * i + 1))
            self.upper_only(True)
            e("v_mov_b32 v%d, 0" % (q + 6))
            e("v_mov_b32 v%d, 0" % (q + 7))
            e("v_mov_b32 v%d, 0x3f80" % (k + 6))
            e("v_mov_b32 v%d, 0" % (k + 7))
            self.upper_only(False)
            for i in range(2):
                e("v_cvt_pk_bf16_f32 v%d, v%d, v%d" % (v + i, v + 2 * i, v + 2 * i + 1))
            e("v_mfma_f32_32x32x16_bf16 %s, %s, %s, 0" % (vr(St[t], 16), vr(k, 4), vr(q, 4)))
            e("v_mfma_f32_32x32x16_bf16 %s, %s, %s, %s" % (vr(St[t], 16), vr(k + 4, 4), vr(q + 4, 4), vr(St[t], 16)))
            for i in range(2, 8):
                e("v_cvt_pk_bf16_f32 v%d, v%d, v%d" % (v + i, v + 2 * i, v + 2 * i + 1))
            e("s_mov_b32 exec_lo, 0x10000000")
            e("s_mov_b32 exec_hi, 0x10000000")
            for i in range(8):
                e("v_mov_b32 v%d, 0x3f803f80" % (v + i))
            e("s_mov_b64 exec, -1")
        e("s_lshl_b32 s%d, s%d, 2" % (sT, sJ))
        e("s_lshl_b32 s%d, s%d, 1" % (sT + 1, sTH))
        e("s_add_u32 s%d, s%d, s%d" % (sT, sT, sT + 1))
        e("s_lshl_b32 s%d, s%d, 6" % (sT + 1, sH1))
        e("s_add_u32 s%d, s%d, s%d" % (sT, sT, sT + 1))
        e("s_lshl_b32 s%d, s%d, 12" % (sT + 2, sT))
        e("s_add_u32 s%d, s%d, %d" % (sT + 2, sT + 2, KV_OFF))
        e("s_add_u32 s%d, s%d, 4096" % (sT + 3, sT + 2))
        e("s_lshl_b32 s%d, s%d, 11" % (sT + 4, sT))
        e("s_add_u32 s%d, s%d, %d" % (sT + 4, sT + 4, QF_OFF))
        for t in range(2):
            k, v = acc(t, 1), acc(t, 2)
            for i, r in enumerate((k, k + 4, v, v + 4)):
                e.vmem("buffer_store_dwordx4 %s, v%d, s[%d:%d], s%d offen offset:%d sc1" % (vr(r, 4), vL16, sWS, sWS + 3, sT + 2 + t, 1024 * i), 'pub')
        ms = [(vT, vT + 1), (vT + 2, vT + 3)]
        for t in range(2):
            m = ms[t][0]
            S = St[t]
            e("v_max3_f32 v%d, v%d, v%d, v%d" % (m, S, S + 1, S + 2))
            for i in range(6):
                e("v_max3_f32 v%d, v%d, v%d, v%d" % (m, m, S + 3 + 2 * i, S + 4 + 2 * i))
            e("v_max_f32 v%d, v%d, v%d" % (m, m, S + 15))
        self.cross_half(["v_max_f32", "v_max_f32"], ms)
        for t in range(2):
            e("v_sub_f32 v%d, 0x%08x, v%d" % (ms[t][0], f2u(-OFFS), ms[t][0]))
        self.upper_only(True)
        for t in range(2):
            e("v_cvt_pk_bf16_f32 v%d, v%d, 0" % (acc(t, 0) + 6, ms[t][0]))
        self.upper_only(False)
        for t in range(2):
            q = acc(t, 0)
            for i in range(2):
                e.vmem("buffer_store_dwordx4 %s, v%d, s[%d:%d], s%d offen offset:%d sc1" % (vr(q + 4 * i, 4), vL16, sWS, sWS + 3, sT + 4, 2048 * t + 1024 * i), 'pub')
        e.vm_drain()
        e("s_barrier")
        L = self.lab('sig1')
        e("s_cmp_lg_u32 s%d, 0" % sW)
        e("s_cbranch_scc1 %s" % L)
        e("s_lshl_b32 s%d, s%d, 7" % (sT, sHP))
        e("s_lshl_b32 s%d, s%d, 2" % (sT + 1, sJ))
        e("s_add_u32 s%d, s%d, s%d" % (sT, sT, sT + 1))
        e("s_add_u32 s%d, s%d, %d" % (sT, sT, F1_OFF))
        self.one_lane_store(vT + 6, vT + 7, sT, 'flag')
        e.label(L)
        self.stamp('pub')

    def chore_issue(self):
        e = self.e
        t0, t1, t2, t3 = vT, vT + 1, vT + 2, vT + 3
        R = vCH
        e("s_lshl_b32 s%d, s2, 2" % sT)
        e("s_add_u32 s%d, s%d, s%d" % (sT, sT, sW))
        e("s_lshr_b32 s%d, s%d, 9" % (sT + 1, sT))
        e("s_cmp_eq_u32 s%d, 0" % (sT + 1))
        e("s_cselect_b32 s%d, s10, s16" % sWO)
        e("s_cselect_b32 s%d, s11, s17" % (sWO + 1))
        e("s_and_b32 s%d, s%d, 0xffff" % (sWO + 1, sWO + 1))
        e("s_mov_b32 s%d, %d" % (sWO + 2, 448 * 896))
        e("s_mov_b32 s%d, 0x20000" % (sWO + 3))
        e("s_bfe_u32 s%d, s%d, 0x40005" % (sT + 1, sT))
        e("s_bfe_u32 s%d, s%d, 0x40001" % (sT + 2, sT))
        e("s_and_b32 s%d, s%d, 1" % (sT + 3, sT))
        e("s_mul_i32 s%d, s%d, 28" % (sT + 2, sT + 2))
        e("s_lshl_b32 s%d, s%d, 4" % (sT + 4, sT + 3))
        e("s_add_u32 s%d, s%d, s%d" % (sT + 2, sT + 2, sT + 4))
        e("s_mul_i32 s%d, s%d, 896" % (sT + 2, sT + 2))
        e("s_mul_i32 s%d, s%d, 56" % (sT + 1, sT + 1))
        e("s_add_u32 s%d, s%d, s%d" % (sT + 2, sT + 2, sT + 1))
        e("s_lshl_b32 s%d, s%d, 30" % (sT + 3, sT + 3))
        e("v_and_b32 v%d, 31, v0" % t0)
        e("v_lshrrev_b32 v%d, 5, v0" % t1)
        e("v_mul_u32_u24 v%d, %d, v%d" % (t2, 4 * 896, t1))
        e("v_lshl_add_u32 v%d, v%d, 1, v%d" % (t2, t0, t2))
        e("v_mul_lo_u32 v%d, v%d, s%d" % (t3, t1, sT + 3))
        e("v_add_u32 v%d, v%d, v%d" % (t3, t3, t2))
        e("v_add_u32 v%d, %d, v%d" % (t3, 8 * 896, t3))
        for k in range(4):
            e("v_mov_b32 v%d, -1" % (vT + 4 + k))
        e("s_lshl_b32 s%d, s%d, 12" % (sT + 4, sT))
        e("s_add_u32 s%d, s%d, %d" % (sT + 4, sT + 4, OA_OFF))
        for j in range(8):
            e.vmem("buffer_load_ushort v%d, v%d, s[%d:%d], s%d offen offset:%d" % (R + j, t2 if j < 4 else t3, sWO, sWO + 3, sT + 2, (j & 3) * 896), 'wog')
        for i in range(4):
            e.vmem("buffer_store_dwordx4 v[%d:%d], v%d, s[%d:%d], s%d offen offset:%d sc1" % (vT + 4, vT + 7, vL16, sWS, sWS + 3, sT + 4, i * 1024), 'chst')

    def chore_store(self):
        e = self.e
        R = vCH
        e.vm_wait('wog')
        for i in range(4):
            e("v_lshl_or_b32 v%d, v%d, 16, v%d" % (R + i, R + 2 * i + 1, R + 2 * i))
        e("s_lshl_b32 s%d, s2, 2" % sT)
        e("s_add_u32 s%d, s%d, s%d" % (sT, sT, sW))
        e("s_lshl_b32 s%d, s%d, 10" % (sT, sT))
        e("s_add_u32 s%d, s%d, %d" % (sT, sT, WOF_OFF))
        e.vmem("buffer_store_dwordx4 %s, v%d, s[%d:%d], s%d offen sc1" % (vr(R, 4), vL16, sWS, sWS + 3, sT), 'chst')

    def features(self, a, outp, outn):
        e = self.e
        X, Pm, Ep, En = 32, 40, 56, 72
        mx, mn, t0, t1, ap, an = 88, 89, 90, 91, 92, 93
        for i in range(8):
            e("v_cvt_pk_bf16_f32 v%d, v%d, v%d" % (X + i, a + 2 * i, a + 2 * i + 1))
        self.upper_only(True)
        e("v_mov_b32 v%d, 0" % (X + 6))
        e("v_mov_b32 v%d, 0" % (X + 7))
        self.upper_only(False)
        e("s_nop 0")
        e("v_mfma_f32_32x32x16_bf16 %s, %s, %s, 0" % (vr(Pm, 16), vr(vPH, 4), vr(X, 4)))
        e("v_mfma_f32_32x32x16_bf16 %s, %s, %s, %s" % (vr(Pm, 16), vr(vPH + 4, 4), vr(X + 4, 4), vr(Pm, 16)))
        e("s_nop 11")
        for op, r in (("v_max3_f32", mx), ("v_min3_f32", mn)):
            e("%s v%d, v%d, v%d, v%d" % (op, r, Pm, Pm + 1, Pm + 2))
            for i in range(6):
                e("%s v%d, v%d, v%d, v%d" % (op, r, r, Pm + 3 + 2 * i, Pm + 4 + 2 * i))
            e("%s v%d, v%d, v%d" % (op.replace('3_', '_'), r, r, Pm + 15))
        self.cross_half(["v_max_f32", "v_min_f32"], [(mx, t0), (mn, t1)])
        e("v_mul_f32 v%d, s%d, v%d" % (ap, sNL2E, mx))
        e("v_mul_f32 v%d, s%d, v%d" % (an, sL2E, mn))
        for r in range(16):
            e("v_fma_f32 v%d, v%d, s%d, v%d" % (Ep + r, Pm + r, sL2E, ap))
            e("v_fma_f32 v%d, -v%d, s%d, v%d" % (En + r, Pm + r, sL2E, an))
        for r in range(16):
            e("v_exp_f32 v%d, v%d" % (Ep + r, Ep + r))
        for r in range(16):
            e("v_exp_f32 v%d, v%d" % (En + r, En + r))
        self.upper_only(True)
        for r in range(12, 16):
            e("v_mov_b32 v%d, 0" % (Ep + r))
            e("v_mov_b32 v%d, 0" % (En + r))
        self.upper_only(False)
        for E, s in ((Ep, mx), (En, mn)):
            A = Pm if E == Ep else Pm + 8
            for i in range(4):
                e("v_pk_add_f32 %s, %s, %s" % (vr(A + 2 * i, 2), vr(E + 4 * i, 2), vr(E + 4 * i + 2, 2)))
            e("v_pk_add_f32 %s, %s, %s" % (vr(A, 2), vr(A, 2), vr(A + 2, 2)))
            e("v_pk_add_f32 %s, %s, %s" % (vr(A + 4, 2), vr(A + 4, 2), vr(A + 6, 2)))
            e("v_pk_add_f32 %s, %s, %s" % (vr(A, 2), vr(A, 2), vr(A + 4, 2)))
            e("v_add_f32 v%d, v%d, v%d" % (s, A, A + 1))
        self.cross_half(["v_add_f32", "v_add_f32"], [(mx, t0), (mn, t1)])
        e("v_rcp_f32 v%d, v%d" % (ap, mx))
        e("v_rcp_f32 v%d, v%d" % (t0, mn))
        e("s_nop 0")
        for i in range(8):
            e("v_pk_mul_f32 %s, %s, %s op_sel_hi:[1,0]" % (vr(Ep + 2 * i, 2), vr(Ep + 2 * i, 2), vr(ap, 2)))
        for i in range(8):
            e("v_pk_mul_f32 %s, %s, %s op_sel_hi:[1,0]" % (vr(En + 2 * i, 2), vr(En + 2 * i, 2), vr(t0, 2)))
        for i in range(8):
            e("v_cvt_pk_bf16_f32 v%d, v%d, v%d" % (outp + i, Ep + 2 * i, Ep + 2 * i + 1))
        for i in range(8):
            e("v_cvt_pk_bf16_f32 v%d, v%d, v%d" % (outn + i, En + 2 * i, En + 2 * i + 1))

    def a_epilogue(self):
        e = self.e
        e.c("---- A epilogue: features ----")
        t0, t1 = vT, vT + 1
        e("s_barrier")
        e("v_and_b32 v%d, 31, v0" % t0)
        e("s_lshl_b32 s%d, s%d, 6" % (sT, sTH))
        e("v_add_u32 v%d, s%d, v%d" % (t0, sT, t0))
        e("v_mul_u32_u24 v%d, 72, v%d" % (t0, t0))
        e("v_lshrrev_b32 v%d, 5, v0" % t1)
        e("v_lshl_add_u32 v%d, v%d, 3, v%d" % (t0, t1, t0))
        e("s_mul_i32 s%d, s%d, %d" % (sT, sHD, 2 * 9216))
        e("v_add_u32 v%d, s%d, v%d" % (t0, sT, t0))
        e("s_lshl_b32 s%d, s%d, 13" % (sT, sHD))
        e("s_lshl_b32 s%d, s%d, 12" % (sT + 1, sTH))
        e("s_add_u32 s%d, s%d, s%d" % (sT, sT, sT + 1))
        e("s_add_u32 s%d, s%d, %d" % (sT, sT, VX))
        e("v_add_u32 v%d, s%d, v%d" % (t1, sT, vL16))
        for t in range(2):
            k, v = acc(t, 1), acc(t, 2)
            self.features(k, k, k + 8)
            for i in range(8):
                e("v_cvt_pk_bf16_f32 v%d, v%d, v%d" % (v + i, v + 2 * i, v + 2 * i + 1))
            e("s_mov_b32 exec_lo, 0x10000000")
            e("s_mov_b32 exec_hi, 0x10000000")
            for i in range(8):
                e("v_mov_b32 v%d, 0x3f803f80" % (v + i))
            e("s_mov_b64 exec, -1")
            for sg in range(2):
                for g in range(4):
                    e.lds("ds_write_b64 v%d, %s offset:%d" % (t0, vr(k + 8 * sg + 2 * g, 2), PHI + sg * 9216 + t * 32 * 72 + 16 * g), 'phi')
            for i in range(2):
                e.lds("ds_write_b128 v%d, %s offset:%d" % (t1, vr(v + 4 * i, 4), 2048 * t + 1024 * i), 'phi')
        e.lg_drain()
        e("s_barrier")
        self.stamp('kfeat')
        e("v_lshrrev_b32 v%d, 5, v0" % t0)
        e("v_lshlrev_b32 v%d, 2, v%d" % (t0, t0))
        e("v_bfe_u32 v%d, v0, 2, 2" % t1)
        e("v_add_u32 v%d, v%d, v%d" % (t0, t0, t1))
        e("v_mul_u32_u24 v%d, 72, v%d" % (t0, t0))
        e("v_bfe_u32 v%d, v0, 4, 1" % t1)
        e("v_lshl_add_u32 v%d, v%d, 5, v%d" % (t0, t1, t0))
        e("v_and_b32 v%d, 3, v0" % t1)
        e("v_lshl_add_u32 v%d, v%d, 3, v%d" % (t0, t1, t0))
        e("s_mul_i32 s%d, s%d, 9216" % (sT, sW))
        e("v_add_u32 v%d, s%d, v%d" % (t0, sT, t0))
        e("s_lshl_b32 s%d, s%d, 13" % (sT, sHD))
        e("s_add_u32 s%d, s%d, %d" % (sT, sT, VX))
        e("v_add_u32 v%d, s%d, v%d" % (t1, sT, vL16))
        A, B, Dk = 32, 64, acc(0, 1)
        def mm(jj):
            e.lg_wait('c%d' % jj)
            e("v_mfma_f32_32x32x16_bf16 %s, %s, %s, %s" % (vr(Dk, 16), vr(A + 4 * jj, 4), vr(B + 4 * jj, 4), "0" if jj == 0 else vr(Dk, 16)))
        for T in range(4):
            for mf in range(2):
                i = 2 * T + mf
                row = 32 * T + 16 * mf
                e.lds("ds_read_b64_tr_b16 %s, v%d offset:%d" % (vr(A + 4 * i, 2), t0, row * 72), 'c%d' % i)
                e.lds("ds_read_b64_tr_b16 %s, v%d offset:%d" % (vr(A + 4 * i + 2, 2), t0, (row + 8) * 72), 'c%d' % i)
                e.lds("ds_read_b128 %s, v%d offset:%d" % (vr(B + 4 * i, 4), t1, i * 1024), 'c%d' % i)
                if i >= 3: mm(i - 3)
        for jj in range(5, 8): mm(jj)
        e("s_lshl_b32 s%d, s%d, 4" % (sT, sH1))
        e("s_add_u32 s%d, s%d, s%d" % (sT, sT, sJ))
        e("s_lshl_b32 s%d, s%d, 13" % (sT, sT))
        e("s_lshl_b32 s%d, s%d, 12" % (sT + 1, sTH))
        e("s_add_u32 s%d, s%d, s%d" % (sT, sT, sT + 1))
        e("s_add_u32 s%d, s%d, %d" % (sT, sT, PART_OFF))
        e("s_nop 7")
        for g in range(4):
            e.vmem("buffer_store_dwordx4 %s, v%d, s[%d:%d], s%d offen offset:%d sc1" % (vr(Dk + 4 * g, 4), vL16, sWS, sWS + 3, sT, g * 1024), 'part')
        self.stamp('kv')
        for t in range(2):
            self.features(acc(t, 0), vPQ + 16 * t, vPQ + 16 * t + 8)
        e.vm_drain()
        e("s_lshl_b32 s%d, s%d, 7" % (sT, sH1))
        e("s_lshl_b32 s%d, s%d, 3" % (sT + 1, sJ))
        e("s_add_u32 s%d, s%d, s%d" % (sT, sT, sT + 1))
        e("s_lshl_b32 s%d, s%d, 2" % (sT + 1, sTH))
        e("s_add_u32 s%d, s%d, s%d" % (sT, sT, sT + 1))
        e("s_add_u32 s%d, s%d, %d" % (sT, sT, F2_OFF))
        self.one_lane_store(vT + 6, vT + 7, sT, 'flag')

    def flag_compare(self, e, regs):
        r = list(regs)
        if len(r) == 1:
            e("v_cmp_ne_u32 vcc, s%d, v%d" % (sNONCE, r[0]))
        else:
            for x in r:
                e("v_xor_b32 v%d, s%d, v%d" % (x, sNONCE, x))
            e("v_or3_b32 v%d, v%d, v%d, v%d" % (r[0], r[0], r[1], r[2]))
            e("v_or_b32 v%d, v%d, v%d" % (r[0], r[0], r[3]))
            e("v_cmp_ne_u32 vcc, 0, v%d" % r[0])
        e("s_nop 1")
    def flag_issue(self, name, dst, n, vaddr, soff, optional=False):
        op = "buffer_load_dwordx4 %s" % vr(dst, 4) if n == 4 else "buffer_load_dword v%d" % dst
        ld = "%s, v%d, s[%d:%d], s%d offen sc1" % (op, vaddr, sWS, sWS + 3, soff)
        self.e.vmem(ld, name, optional=optional)
        return ld
    def flag_check(self, name, ld, dst, n, keep=False):
        e = self.e
        e.vm_wait(name, keep=keep)
        back = self.lab('back_' + name)
        self.flag_compare(e, range(dst, dst + n))
        o = self.ool
        L = self.lab("spin_" + name)
        o.label(L)
        o("s_mov_b32 s%d, 0x8000" % sCNT)
        o.label(L + "_loop")
        o(ld)
        o("s_waitcnt vmcnt(0)")
        self.flag_compare(o, range(dst, dst + n))
        o("s_cbranch_vccz %s" % back)
        o("s_sub_u32 s%d, s%d, 1" % (sCNT, sCNT))
        o("s_cmp_lg_u32 s%d, 0" % sCNT)
        o("s_cbranch_scc1 %s_loop" % L)
        o("s_branch %s" % back)
        e("s_cbranch_vccnz %s" % L)
        e.label(back)

    def attn_prologue(self):
        e = self.e
        e.c("---- attention prologue ----")
        e("s_lshr_b32 s%d, s%d, 1" % (sT, sH2))
        e("s_lshl_b32 s%d, s%d, 7" % (sT2, sT))
        e("s_add_u32 s%d, s%d, %d" % (sT2, sT2, F1_OFF))
        e("v_and_b32 v%d, 15, v0" % (vT + 3))
        e("v_lshlrev_b32 v%d, 2, v%d" % (vT + 3, vT + 3))
        ld = self.flag_issue('f1', vT + 4, 1, vT + 3, sT2)
        self.flag_check('f1', ld, vT + 4, 1)
        self.stamp('f1ok')
        e("s_lshl_b32 s%d, s%d, 18" % (sKV, sH2))
        e("s_lshl_b32 s%d, s%d, 16" % (sT, sW))
        e("s_add_u32 s%d, s%d, s%d" % (sKV, sKV, sT))
        e("s_add_u32 s%d, s%d, %d" % (sKV, sKV, KV_OFF))
        e("s_lshl_b32 s%d, s%d, 6" % (sT, sH2))
        e("s_lshl_b32 s%d, s%d, 2" % (sT + 1, sJ2))
        e("s_add_u32 s%d, s%d, s%d" % (sT, sT, sT + 1))
        e("s_lshl_b32 s%d, s%d, 11" % (sT, sT))
        e("s_add_u32 s%d, s%d, %d" % (sT, sT, QF_OFF))
        for t in range(4):
            e("s_add_u32 s%d, s%d, %d" % (sT + 1, sW, t))
            e("s_and_b32 s%d, s%d, 3" % (sT + 1, sT + 1))
            e("s_lshl_b32 s%d, s%d, 11" % (sT + 1, sT + 1))
            e("s_add_u32 s%d, s%d, s%d" % (sT2 + 1 + t, sT, sT + 1))
        self.kv_loads(0)
        for t in range(4):
            for i in range(2):
                e.vmem("buffer_load_dwordx4 %s, v%d, s[%d:%d], s%d offen offset:%d sc1" % (vr(vQ + 8 * t + 4 * i, 4), vL16, sWS, sWS + 3, sT2 + 1 + t, 1024 * i), 'q%d' % t)
        for kt in range(1, NSETS - 1):
            self.kv_loads(kt)

    def kv_loads(self, kt):
        e = self.e
        base = aKV + 16 * (kt % NSETS)
        e("s_add_u32 s%d, s%d, %d" % (sSX, sKV, kt * 4096))
        for i in range(4):
            e.vmem("buffer_load_dwordx4 %s, v%d, s[%d:%d], s%d offen offset:%d sc1" % (ar(base + 4 * i, 4), vL16, sWS, sWS + 3, sSX, 1024 * i), 'kv%d' % kt)

    def qk(self, i):
        kt, t = i >> 2, i & 3
        S = vS + 16 * (i & 1)
        K = aKV + 16 * (kt % NSETS)
        return ["v_mfma_f32_32x32x16_bf16 %s, %s, %s, 0" % (vr(S, 16), ar(K, 4), vr(vQ + 8 * t, 4)),
                "v_mfma_f32_32x32x16_bf16 %s, %s, %s, %s" % (vr(S, 16), ar(K + 4, 4), vr(vQ + 8 * t + 4, 4), vr(S, 16))]
    def pv(self, i):
        kt, t = i >> 2, i & 3
        P = vP + 8 * (i & 1)
        V = aKV + 16 * (kt % NSETS) + 8
        O = vO + 16 * t
        return ["v_mfma_f32_32x32x16_bf16 %s, %s, %s, %s" % (vr(O, 16), ar(V, 4), vr(P, 4), "0" if kt == 0 else vr(O, 16)),
                "v_mfma_f32_32x32x16_bf16 %s, %s, %s, %s" % (vr(O, 16), ar(V + 4, 4), vr(P + 4, 4), vr(O, 16))]

    def attention(self):
        e = self.e
        e.c("---- attention ----")
        e.vm_wait('kv0', 'q0')
        for m in self.qk(0): e(m)
        e("s_nop 10")
        extras = self.attn_extras()
        N = 64
        for i in range(N):
            kt, t = i >> 2, i & 3
            S = vS + 16 * (i & 1)
            P = vP + 8 * (i & 1)
            if self.o.get('fine') and i in (4, 8, 12, 16, 20, 24, 28, 32, 36, 40, 48, 52, 56, 60): self.stamp('s%d' % i)
            if i < 3: e.vm_wait('q%d' % (i + 1))
            if t == 3 and kt + 1 < 16: e.vm_wait('kv%d' % (kt + 1))
            mq = self.qk(i + 1) if i + 1 < N else [None, None]
            mp = self.pv(i - 1) if i > 0 else [None, None]
            ex = lambda r: e("v_exp_f32 v%d, v%d" % (S + r, S + r))
            cv = lambda c: e("v_cvt_pk_bf16_f32 v%d, v%d, v%d" % (P + c, S + 2 * c, S + 2 * c + 1))
            def grp(g, m, seq, fill=()):
                if m: e(m)
                for f in fill: f()
                for s in seq:
                    (ex if s[0] == 'e' else cv)(s[1])
            fill = list(extras.get(i, []))
            late = []
            if t == 1 and kt + NSETS - 1 < 16:
                late = [lambda kt=kt: self.kv_loads(kt + NSETS - 1)]
            grp(0, mq[0], [('e', 0), ('e', 1), ('e', 2), ('e', 3), ('c', 0)], fill)
            grp(1, mq[1], [('e', 4), ('e', 5), ('c', 1), ('e', 6), ('e', 7), ('c', 2)], late)
            grp(2, mp[0], [('e', 8), ('e', 9), ('c', 3), ('e', 10), ('e', 11), ('c', 4)])
            grp(3, mp[1], [('e', 12), ('e', 13), ('c', 5), ('e', 14), ('e', 15), ('c', 6), ('c', 7)])
        e("s_nop 0")
        for m in self.pv(N - 1): e(m)

    def wo_loads(self, branch, ks0, n, areg):
        e = self.e
        for ks in range(ks0, ks0 + n):
            if (ks - ks0) % 4 == 0:
                e("s_add_u32 s%d, s%d, %d" % (sT2 + 6, sT2 + 5, branch * 512 * 1024 + ks * 1024))
            e.vmem("buffer_load_dwordx4 %s, v%d, s[%d:%d], s%d offen offset:%d sc1" % (ar(areg + 4 * (ks - ks0), 4), vL16, sWS, sWS + 3, sT2 + 6, ((ks - ks0) % 4) * 1024), 'wo%d' % branch)

    def attn_extras(self):
        e = self.e
        X = {}
        def add(slot, f): X.setdefault(slot, []).append(f)
        st = {}
        FA = 80
        def all_loads(em, track):
            l1 = "buffer_load_dwordx2 v[82:83], v80, s[%d:%d], s%d offen sc1" % (sWS, sWS + 3, sT2 + 7)
            l2 = "buffer_load_dwordx4 v[84:87], v%d, s[%d:%d], s%d offen sc1" % (vL16, sWS, sWS + 3, sT2 + 8)
            l3 = "buffer_load_dwordx4 v[88:91], v%d, s[%d:%d], s%d offen offset:1024 sc1" % (vL16, sWS, sWS + 3, sT2 + 8)
            for l in (l1, l2, l3):
                if track: em.vmem(l, 'fall')
                else: em(l)
        def all_cmp(em):
            for r in range(82, 92):
                em("v_xor_b32 v%d, s%d, v%d" % (r, sNONCE, r))
            em("v_or3_b32 v82, v82, v83, v84")
            em("v_or3_b32 v85, v85, v86, v87")
            em("v_or3_b32 v88, v88, v89, v90")
            em("v_or3_b32 v82, v82, v85, v88")
            em("v_or_b32 v82, v82, v91")
            em("v_cmp_ne_u32 vcc, 0, v82")
            em("s_nop 1")
        def all_issue():
            e("v_lshrrev_b32 v80, 3, v0")
            e("v_lshlrev_b32 v80, 7, v80")
            e("v_and_b32 v81, 7, v0")
            e("v_lshl_add_u32 v80, v81, 3, v80")
            e("s_mov_b32 s%d, %d" % (sT2 + 7, F1_OFF))
            e("s_mov_b32 s%d, %d" % (sT2 + 8, F2_OFF))
            all_loads(e, True)
        add(7, all_issue)
        def all_check():
            e.vm_wait('fall')
            all_cmp(e)
            back = self.lab('back_all'); L = self.lab('spin_all')
            o = self.ool
            o.label(L)
            o("s_mov_b32 s%d, 0x8000" % sCNT)
            o.label(L + "_loop")
            all_loads(o, False)
            o("s_waitcnt vmcnt(0)")
            all_cmp(o)
            o("s_cbranch_vccz %s" % back)
            o("s_sub_u32 s%d, s%d, 1" % (sCNT, sCNT))
            o("s_cmp_lg_u32 s%d, 0" % sCNT)
            o("s_cbranch_scc1 %s_loop" % L)
            o("s_branch %s" % back)
            e("s_cbranch_vccnz %s" % L)
            e.label(back)
            e("s_bfe_u32 s%d, s2, 0x20003" % (sT2 + 5))
            e("s_lshl_b32 s%d, s%d, 2" % (sT2 + 5, sT2 + 5))
            e("s_add_u32 s%d, s%d, s%d" % (sT2 + 5, sT2 + 5, sW))
            e("s_lshl_b32 s%d, s%d, 15" % (sT2 + 5, sT2 + 5))
            e("s_add_u32 s%d, s%d, %d" % (sT2 + 5, sT2 + 5, WOF_OFF))
        add(13, all_check)
        for g in range(4):
            add(18 + 4 * g, lambda g=g: self.wo_loads(0, 8 * g, 8, aWOA + 32 * g))
        for g in range(2):
            add(34 + 4 * g, lambda g=g: self.wo_loads(1, 8 * g, 8, aWOB_LO + 32 * g))
        def cond_reducer():
            L = self.lab('nored')
            e("s_lshl_b32 s%d, s%d, 2" % (sT, sROLE))
            e("s_add_u32 s%d, s%d, s%d" % (sT, sT, sW))
            e("s_sub_u32 s%d, s%d, 2" % (sT, sT))
            e("s_cmp_ge_u32 s%d, 2" % sT)
            e("s_cbranch_scc1 %s" % L)
            return L
        def red_b():
            L = cond_reducer()
            e("s_lshl_b32 s%d, s%d, 1" % (sT2 + 9, sHP))
            e("s_add_u32 s%d, s%d, s%d" % (sT2 + 9, sT2 + 9, sT))
            e("s_lshl_b32 s%d, s%d, 17" % (sT + 1, sT2 + 9))
            e("s_lshr_b32 s%d, s%d, 1" % (sT + 2, sJ))
            e("s_lshl_b32 s%d, s%d, 10" % (sT + 2, sT + 2))
            e("s_add_u32 s%d, s%d, s%d" % (sT + 1, sT + 1, sT + 2))
            e("s_and_b32 s%d, s%d, 1" % (sT + 2, sJ))
            e("s_lshl_b32 s%d, s%d, 3" % (sT + 2, sT + 2))
            e("s_add_u32 s%d, s%d, s%d" % (sT + 1, sT + 1, sT + 2))
            e("s_add_u32 s%d, s%d, %d" % (sT + 1, sT + 1, PART_OFF))
            for jj in range(16):
                if jj: e("s_add_u32 s%d, s%d, 8192" % (sT + 1, sT + 1))
                e.vmem("buffer_load_dwordx2 %s, v%d, s[%d:%d], s%d offen sc1" % (vr(vX + 2 * jj, 2), vL16, sWS, sWS + 3, sT + 1), 'red', optional=True)
            e.label(L)
        add(14, red_b)
        def red_c():
            L = cond_reducer()
            e.vm_wait('red', keep=True)
            for jj in range(1, 16):
                e("v_add_f32 v%d, v%d, v%d" % (vX, vX, vX + 2 * jj))
                e("v_add_f32 v%d, v%d, v%d" % (vX + 1, vX + 1, vX + 2 * jj + 1))
            e("v_cvt_pk_bf16_f32 v%d, v%d, v%d" % (vX, vX, vX + 1))
            e("s_lshl_b32 s%d, s%d, 12" % (sT + 1, sT2 + 9))
            e("s_lshr_b32 s%d, s%d, 2" % (sT + 2, sJ))
            e("s_lshl_b32 s%d, s%d, 10" % (sT + 2, sT + 2))
            e("s_add_u32 s%d, s%d, s%d" % (sT + 1, sT + 1, sT + 2))
            e("s_and_b32 s%d, s%d, 3" % (sT + 2, sJ))
            e("s_lshl_b32 s%d, s%d, 2" % (sT + 2, sT + 2))
            e("s_add_u32 s%d, s%d, s%d" % (sT + 1, sT + 1, sT + 2))
            e("s_add_u32 s%d, s%d, %d" % (sT + 1, sT + 1, KVF_OFF))
            e.vmem("buffer_store_dword v%d, v%d, s[%d:%d], s%d offen sc1" % (vX, vL16, sWS, sWS + 3, sT + 1), 'redst', optional=True)
            e.label(L)
        add(21, red_c)
        def red_d():
            L = cond_reducer()
            e.vm_wait('redst', keep=True)
            e("s_lshl_b32 s%d, s%d, 7" % (sT + 1, sT2 + 9))
            e("s_lshl_b32 s%d, s%d, 2" % (sT + 2, sJ))
            e("s_add_u32 s%d, s%d, s%d" % (sT + 1, sT + 1, sT + 2))
            e("s_add_u32 s%d, s%d, %d" % (sT + 1, sT + 1, F3_OFF))
            self.one_lane_store(vT + 6, vT + 7, sT + 1, 'flag')
            e.label(L)
        add(27, red_d)
        def cond_a():
            L = self.lab('noA')
            e("s_cmp_eq_u32 s%d, 0" % sROLE)
            e("s_cbranch_scc1 %s" % L)
            return L
        def f3_issue():
            L = cond_a()
            e("s_lshl_b32 s%d, s%d, 7" % (sT2 + 9, sH1))
            e("s_add_u32 s%d, s%d, %d" % (sT2 + 9, sT2 + 9, F3_OFF))
            e("v_and_b32 v%d, 15, v0" % (vT + 8))
            e("v_lshlrev_b32 v%d, 2, v%d" % (vT + 8, vT + 8))
            st['f3'] = self.flag_issue('f3', vT + 9, 1, vT + 8, sT2 + 9, optional=True)
            e.label(L)
        add(31, f3_issue)
        def f3_check():
            L = cond_a()
            self.flag_check('f3', st['f3'], vT + 9, 1, keep=True)
            e("s_lshl_b32 s%d, s%d, 12" % (sT, sH1))
            e("s_add_u32 s%d, s%d, %d" % (sT, sT, KVF_OFF))
            for i in range(4):
                e.vmem("buffer_load_dwordx4 %s, v%d, s[%d:%d], s%d offen offset:%d sc1" % (vr(vX + 4 * i, 4), vL16, sWS, sWS + 3, sT, 1024 * i), 'kvf', optional=True)
            e.label(L)
        add(37, f3_check)
        D = vX + 16
        def a2_mm(t):
            def f():
                L = cond_a()
                if t == 0: e.vm_wait('kvf', keep=True)
                for i in range(4):
                    e("v_mfma_f32_32x32x16_bf16 %s, %s, %s, %s" % (vr(D, 16), vr(vX + 4 * i, 4), vr(vPQ + 16 * t + 4 * i, 4), "0" if i == 0 else vr(D, 16)))
                e.label(L)
            return f
        def a2_fin(t):
            def f():
                L = cond_a()
                e("s_lshl_b32 s%d, s%d, 2" % (sT, sJ))
                e("s_lshl_b32 s%d, s%d, 1" % (sT + 1, sTH))
                e("s_add_u32 s%d, s%d, s%d" % (sT, sT, sT + 1))
                e("s_lshl_b32 s%d, s%d, 4" % (sT, sT))
                e("s_add_u32 s%d, s%d, s%d" % (sT, sT, sH1))
                e("s_lshl_b32 s%d, s%d, 11" % (sT, sT))
                e("s_add_u32 s%d, s%d, %d" % (sT + 3, sT, OA_OFF + 32768 * t))
                self.normalize_store(D, 1e-6, sT + 3, 'oa', optional=True)
                e.label(L)
            return f
        add(42, a2_mm(0)); add(43, a2_fin(0)); add(44, a2_mm(1)); add(45, a2_fin(1))
        add(58, lambda: self.o_loads('A', OA_OFF, vX, e, True))
        return X

    def op_tile(self):
        e = self.e
        e("s_lshr_b32 s%d, s2, 5" % (sT2 + 7))
        e("s_lshl_b32 s%d, s%d, 3" % (sT2 + 7, sT2 + 7))
        e("s_and_b32 s%d, s2, 7" % sT)
        e("s_add_u32 s%d, s%d, s%d" % (sT2 + 7, sT2 + 7, sT))

    def o_loads(self, name, off, R, em, track):
        so = (sT2 + 1) if name == 'A' else (sT2 + 3)
        if track:
            e = self.e
            self.op_tile()
            e("s_lshl_b32 s%d, s%d, 15" % (sT, sT2 + 7))
            e("s_lshl_b32 s%d, s%d, 13" % (sT + 1, sW))
            e("s_add_u32 s%d, s%d, s%d" % (sT, sT, sT + 1))
            e("s_add_u32 s%d, s%d, %d" % (so, sT, off))
            e("s_add_u32 s%d, s%d, 4096" % (so + 1, so))
        for i in range(8):
            s = "buffer_load_dwordx4 %s, v%d, s[%d:%d], s%d offen offset:%d sc1" % (vr(R + 4 * i, 4), vL16, sWS, sWS + 3, so + (i // 4), (i % 4) * 1024)
            if track: em.vmem(s, 'o' + name)
            else: em(s)

    def o_check_stage(self, name, off, R, ost):
        e = self.e
        back = self.lab('oback'); loop = self.lab('oloop')
        def check(em):
            em("v_max3_u32 v%d, v%d, v%d, v%d" % (vT + 10, R, R + 1, R + 2))
            for i in range(14):
                em("v_max3_u32 v%d, v%d, v%d, v%d" % (vT + 10, vT + 10, R + 3 + 2 * i, R + 4 + 2 * i))
            em("v_max_u32 v%d, v%d, v%d" % (vT + 10, vT + 10, R + 31))
            em("v_cmp_eq_u32 vcc, -1, v%d" % (vT + 10))
            em("s_nop 1")
        e("s_lshl_b32 s%d, s%d, 13" % (sT + 2, sW))
        e("s_add_u32 s%d, s%d, %d" % (sT + 2, sT + 2, ost))
        e("v_add_u32 v%d, s%d, v%d" % (vT + 11, sT + 2, vL16))
        e.vm_wait('o' + name)
        check(e)
        e("s_cbranch_vccnz %s" % loop)
        e.label(back)
        o = self.ool
        o.label(loop)
        o("s_mov_b32 s%d, 0x8000" % sCNT)
        o.label(loop + "_l")
        self.o_loads(name, off, R, o, False)
        o("s_waitcnt vmcnt(0)")
        check(o)
        o("s_cbranch_vccz %s" % back)
        o("s_sub_u32 s%d, s%d, 1" % (sCNT, sCNT))
        o("s_cmp_lg_u32 s%d, 0" % sCNT)
        o("s_cbranch_scc1 %s_l" % loop)
        o("s_branch %s" % back)
        for i in range(8):
            e.lds("ds_write_b128 v%d, %s offset:%d" % (vT + 11, vr(R + 4 * i, 4), i * 1024), 'ow')

    def combine(self):
        e = self.e
        e.c("---- combine the four key ranges ----")
        t0 = vT
        for t in range(1, 4):
            e("s_add_u32 s%d, s%d, %d" % (sT, sW, t))
            e("s_and_b32 s%d, s%d, 3" % (sT, sT))
            e("s_mul_i32 s%d, s%d, 12288" % (sT, sT))
            e("s_add_u32 s%d, s%d, %d" % (sT, sT, CB + (t - 1) * 4096))
            e("v_add_u32 v%d, s%d, v%d" % (vT + t, sT, vL16))
        e("s_mul_i32 s%d, s%d, 12288" % (sT, sW))
        e("s_add_u32 s%d, s%d, %d" % (sT, sT, CB))
        e("v_add_u32 v%d, s%d, v%d" % (vT + 4, sT, vL16))
        for t in range(1, 4):
            if t == 3: e("s_nop 3")
            for g in range(4):
                e.lds("ds_write_b128 v%d, %s offset:%d" % (vT + t, vr(vO + 16 * t + 4 * g, 4), g * 1024), 'cw')
        e("v_max3_f32 v%d, v%d, v%d, v%d" % (t0, vO + 12, vO + 28, vO + 44))
        e("v_max_f32 v%d, v%d, v%d" % (t0, t0, vO + 60))
        e("v_mov_b32 v%d, 0x%08x" % (vT + 5, f2u(LIMIT)))
        self.upper_only(True)
        e("v_cmp_nle_f32 vcc, v%d, v%d" % (t0, vT + 5))
        self.upper_only(False)
        e("s_nop 0")
        e("s_cmp_lg_u32 vcc_hi, 0")
        e("s_cselect_b32 s%d, 1, 0" % sT)
        e("v_mov_b32 v%d, s%d" % (vT + 5, sT))
        e("s_lshl_b32 s%d, s%d, 2" % (sT + 1, sW))
        e("s_add_u32 s%d, s%d, %d" % (sT + 1, sT + 1, VERD))
        e("v_mov_b32 v%d, s%d" % (vT + 6, sT + 1))
        e.lds("ds_write_b32 v%d, v%d" % (vT + 6, vT + 5), 'cw')
        for g in range(2): self.wo_loads(1, 16 + 8 * g, 8, aWOB_HI + 32 * g)
        self.o_check_stage('A', OA_OFF, vX, OST_A)
        e.lg_drain()
        e("s_barrier")
        R = vS
        for idx in range(3):
            for g in range(4):
                e.lds("ds_read_b128 %s, v%d offset:%d" % (vr(R + 16 * idx + 4 * g, 4), vT + 4, idx * 4096 + g * 1024), 'cr%d' % idx)
        e("v_mov_b32 v%d, %d" % (vT + 6, VERD))
        e.lds("ds_read_b128 %s, v%d" % (vr(vT, 4), vT + 6), 'verd')
        for idx in range(3):
            e.lg_wait('cr%d' % idx)
            for i in range(8):
                e("v_pk_add_f32 %s, %s, %s" % (vr(vO + 2 * i, 2), vr(vO + 2 * i, 2), vr(R + 16 * idx + 2 * i, 2)))
        e.lg_wait('verd')
        e("v_or3_b32 v%d, v%d, v%d, v%d" % (vT, vT, vT + 1, vT + 2))
        e("v_or_b32 v%d, v%d, v%d" % (vT, vT, vT + 3))
        e("s_nop 0")
        e("v_readfirstlane_b32 s%d, v%d" % (sT, vT))
        e("s_nop 0")
        e("s_cmp_lg_u32 s%d, 0" % sT)
        e("s_cbranch_scc1 L_fallback")
        e.label("L_fallback_done")
        e("s_lshl_b32 s%d, s%d, 2" % (sT, sJ2))
        e("s_add_u32 s%d, s%d, s%d" % (sT, sT, sW))
        e("s_lshl_b32 s%d, s%d, 4" % (sT, sT))
        e("s_add_u32 s%d, s%d, s%d" % (sT, sT, sH2))
        e("s_lshl_b32 s%d, s%d, 11" % (sT, sT))
        e("s_add_u32 s%d, s%d, %d" % (sT, sT, OB_OFF))
        self.normalize_store(vO, 0.0, sT, 'ob')

    def normalize_store(self, O, eps, soff, tag, optional=False):
        e = self.e
        t, u = vT, vT + 1
        e("v_mov_b32 v%d, v%d" % (t, O + 12))
        e("v_mov_b32 v%d, v%d" % (u, O + 12))
        e("s_nop 1")
        e("v_permlane32_swap_b32 v%d, v%d" % (t, u))
        if eps:
            e("v_add_f32 v%d, 0x%08x, v%d" % (u, f2u(eps), u))
        e("v_rcp_f32 v%d, v%d" % (vT + 2, u))
        e("s_nop 0")
        for i in range(8):
            e("v_pk_mul_f32 %s, %s, %s op_sel_hi:[1,0]" % (vr(O + 2 * i, 2), vr(O + 2 * i, 2), vr(vT + 2, 2)))
        for i in range(8):
            e("v_cvt_pk_bf16_f32 v%d, v%d, v%d" % (O + i, O + 2 * i, O + 2 * i + 1))
        self.upper_only(True)
        e("v_mov_b32 v%d, 0" % (O + 6))
        e("v_mov_b32 v%d, 0" % (O + 7))
        self.upper_only(False)
        e.vmem("buffer_store_dwordx4 %s, v%d, s[%d:%d], s%d offen sc1" % (vr(O, 4), vL16, sWS, sWS + 3, soff), tag, optional=optional)
        e.vmem("buffer_store_dwordx4 %s, v%d, s[%d:%d], s%d offen offset:1024 sc1" % (vr(O + 4, 4), vL16, sWS, sWS + 3, soff), tag, optional=optional)

    def outproj(self, name, ost, wreg, colbase, wtag, mid=None):
        e = self.e
        e.c("---- output projection %s ----" % name)
        R = vS
        e("v_add_u32 v%d, %d, v%d" % (vT + 2, ost, vL16))
        e.vm_wait(wtag)
        D = vO + 48
        NB = 8
        def rd(ks):
            e.lds("ds_read_b128 %s, v%d offset:%d" % (vr(R + 4 * (ks % NB), 4), vT + 2, ks * 1024), 'of%d' % ks)
        for ks in range(NB - 1): rd(ks)
        for ks in range(32):
            e.lg_wait('of%d' % ks)
            e("v_mfma_f32_32x32x16_bf16 %s, %s, %s, %s" % (vr(D, 16), ar(wreg(ks), 4), vr(R + 4 * (ks % NB), 4), "0" if ks == 0 else vr(D, 16)))
            if ks + NB - 1 < 32: rd(ks + NB - 1)
        if mid: mid()
        self.op_tile()
        e("v_and_b32 v%d, 31, v0" % vT)
        e("s_lshl_b32 s%d, s%d, 5" % (sT, sT2 + 7))
        e("v_add_u32 v%d, s%d, v%d" % (vT, sT, vT))
        e("v_mul_u32_u24 v%d, 1792, v%d" % (vT, vT))
        e("v_lshrrev_b32 v%d, 5, v0" % (vT + 1))
        e("v_lshl_add_u32 v%d, v%d, 3, v%d" % (vT, vT + 1, vT))
        e("s_bfe_u32 s%d, s2, 0x20003" % sT)
        e("s_lshl_b32 s%d, s%d, 2" % (sT, sT))
        e("s_add_u32 s%d, s%d, s%d" % (sT, sT, sW))
        e("s_mul_i32 s%d, s%d, 56" % (sT, sT))
        e("s_add_u32 s%d, s%d, %d" % (sT, sT, colbase * 2))
        for i in range(8):
            e("v_cvt_pk_bf16_f32 v%d, v%d, v%d" % (D + i, D + 2 * i, D + 2 * i + 1))
        for g in range(4):
            if g == 3: e("s_mov_b32 exec_hi, 0")
            e.vmem("buffer_store_dwordx2 %s, v%d, s[%d:%d], s%d offen offset:%d" % (vr(D + 2 * g, 2), vT, sOUT, sOUT + 3, sT, 16 * g), 'out')
        e("s_mov_b32 exec_hi, -1")

    def fallback(self):
        o = self.ool
        o.label("L_fallback")
        o("s_branch L_fallback_done")

    def finish(self):
        e = self.e
        L = self.lab('gen')
        e("s_cmp_lg_u32 s2, 0")
        e("s_cbranch_scc1 %s" % L)
        e("s_cmp_lg_u32 s%d, 0" % sW)
        e("s_cbranch_scc1 %s" % L)
        e("v_mov_b32 v%d, s%d" % (vT + 7, sNONCE))
        e("v_mov_b32 v%d, %d" % (vT + 6, G_OFF))
        e("s_mov_b64 exec, 1")
        e.vmem("buffer_store_dword v%d, v%d, s[%d:%d], 0 offen" % (vT + 7, vT + 6, sWS, sWS + 3), 'gen', optional=True)
        e("s_mov_b64 exec, -1")
        e.label(L)
        if self.o.get('stamps'):
            self.stamp('end')
            e("s_lshl_b32 s%d, s2, 2" % sT)
            e("s_add_u32 s%d, s%d, s%d" % (sT, sT, sW))
            e("s_lshl_b32 s%d, s%d, 8" % (sT, sT))
            e("s_add_u32 s%d, s%d, %d" % (sT, sT, STAMP_OFF))
            e("v_lshlrev_b32 v%d, 2, v0" % vT)
            e.vmem("buffer_store_dword v15, v%d, s[%d:%d], s%d offen" % (vT, sWS, sWS + 3, sT), 'st')

    def build(self):
        e = self.e
        self.prologue()
        self.stamp('pro')
        def top0():
            e("s_mul_i32 s%d, s%d, 0x9E3779B1" % (sNONCE, sNONCE))
            e("s_add_u32 s%d, s%d, 0x7F4A7C15" % (sNONCE, sNONCE))
        for hc in range(14):
            tops = {0: top0, 7: self.merge_wphi, 8: self.chore_issue, 12: self.chore_store}
            self.body(hc, top=tops.get(hc))
            if hc in (0, 6) and not self.o.get('fine'): self.stamp('hc%d' % hc)
        e.lg_wait('f13_0')
        for m in self.mfmas(13, 0): m()
        e.lg_wait('f13_1')
        for m in self.mfmas(13, 1): m()
        e("s_nop 7")
        self.stamp('gemm')
        e("s_cmp_eq_u32 s%d, 0" % sROLE)
        e("s_cbranch_scc0 L_roleA")
        n0 = self.nstamp
        vm0, lg0 = list(e.vm), list(e.lg)
        self.b_epilogue()
        self.stamp('kvA')
        n1 = self.nstamp
        e("s_branch L_roles_done")
        e.label("L_roleA")
        e.vm, e.lg = vm0, lg0
        names = list(self.stamp_names)
        self.nstamp = n0
        self.a_epilogue()
        self.stamp_names = names
        self.nstamp = n1
        e.label("L_roles_done")
        e.vm, e.lg = [], []
        e("s_waitcnt lgkmcnt(0)")
        e("s_barrier")
        self.attn_prologue()
        self.stamp('apro')
        self.attention()
        self.stamp('attn')
        self.combine()
        self.stamp('comb')
        self.outproj('A', OST_A, lambda ks: aWOA + 4 * ks, 0, 'wo0', mid=lambda: self.o_loads('B', OB_OFF, vX, self.e, True))
        self.stamp('opa')
        self.o_check_stage('B', OB_OFF, vX, OST_B)
        self.e.lg_drain()
        self.e("s_barrier")
        self.stamp('oB_in')
        self.outproj('B', OST_B, lambda ks: (aWOB_LO + 4 * ks) if ks < 16 else (aWOB_HI + 4 * (ks - 16)), 448, 'wo1')
        self.finish()
        self.fallback()

    def text(self):
        self.build()
        hdr = open(os.path.join(os.path.dirname(os.path.abspath(__file__)), '..', 'cdna_kernels', NAME + '.s.ref')).read().split('\n')
        top = [l for l in hdr if l.startswith(';') and '@launch' not in l and 'Override launch' not in l and 'grid=ceil' not in l]
        out = '\n'.join(top) + '\n'
        out += "; @launch grid=(256,1,1) block=(256,1,1) lds=%d\n" % LDS_SIZE
        out += '.amdgcn_target "amdgcn-amd-amdhsa--gfx950"\n.text\n.globl %s_kernel\n.p2align 8\n.type %s_kernel,@function\n%s_kernel:\n' % (NAME, NAME, NAME)
        out += self.e.text()
        out += "L_end:\n  s_endpgm\n"
        out += self.ool.text()
        out += "L_codeend:\n  s_endpgm\n"
        out += """.section .rodata,"a"
.p2align 6
.amdhsa_kernel %s_kernel
  .amdhsa_next_free_vgpr 512
  .amdhsa_next_free_sgpr 102
  .amdhsa_accum_offset 256
  .amdhsa_group_segment_fixed_size 0
  .amdhsa_kernarg_size 80
  .amdhsa_user_sgpr_count 2
  .amdhsa_user_sgpr_kernarg_segment_ptr 1
  .amdhsa_system_sgpr_workgroup_id_x 1
.end_amdhsa_kernel
""" % NAME
        return out

if __name__ == '__main__':
    import argparse, hazard
    ap = argparse.ArgumentParser()
    ap.add_argument('-o', default=os.path.join(os.path.dirname(os.path.abspath(__file__)), '..', 'cdna_kernels', NAME + '.s'))
    ap.add_argument('--stamps', action='store_true')
    ap.add_argument('--fine', action='store_true')
    ap.add_argument('--warm', action='store_true')
    a = ap.parse_args()
    g = Gen(dict(stamps=a.stamps, fine=a.fine, warm=a.warm))
    t = g.text()
    open(a.o, 'w').write(t)
    if a.stamps:
        open(a.o + '.stamps', 'w').write('\n'.join(g.stamp_names))
    body = t.split('_kernel:\n')[1].split('.section')[0]
    probs = hazard.check(body.split('\n'))
    for p in probs[:60]: print(p)
    print(len(probs), "hazard problems;", len(t), "bytes,", body.count('\n'), "lines")
```

```python
import sys, os, math, struct
sys.path.insert(0, os.path.dirname(os.path.abspath(__file__)))
from core import *

NAME = "concat_heads__linear_kernel_hedgehog__mha_block__prompt"

def f2u(x):
    return struct.unpack('<I', struct.pack('<f', x))[0]

G_OFF, F0_OFF, F1_OFF, F2_OFF, F3_OFF = 0, 0x1000, 0x2000, 0x3000, 0x4000
KVF_OFF = 0x10000
KV_OFF, PART_OFF, OA_OFF, OB_OFF, WOF_OFF, QF_OFF = 0x100000, 0x500000, 0x700000, 0x900000, 0xB00000, 0xC00000
STAMP_OFF, WS_SIZE = 0xE00000, 0xE80000
XS, WBASE, WS_ = 16384, 65536, 12288
PHI, VX = 0, 36864
CB, VERD, OST_B, OST_A = 0, 49152, 53248, 86016
MX = 49664
LDS_SIZE = 151552
sX, sWt, sPH, sWO, sWS, sOUT, sPC = 24, 28, 32, 36, 40, 44, 48
sROLE, sHP, sJ, sW, sNONCE = 52, 53, 54, 55, 56
sH2, sJ2, sTH, sHD = 57, 58, 59, 60
sXROW, sWROW, sLX, sLW, sSX, sSW = 61, 62, 63, 64, 65, 66
sC = 68
sL2E, sNL2E = 70, 71
sT = 72
sKV, sCNT = 80, 81
sT2 = 82
sH1 = 92
sL16W = 93
vL16 = 1
vXD, vWD, vXR, vWR = 2, 6, 9, 13
vT = 16
vF = 32
vACC = 112
vPH, vRAW = 208, 216
vPQ = 224
vS, vP, vO, vQ = 32, 64, 96, 160
vX = 192
vCH = 216
NSETS = 4
aKV, aWOB_LO, aWOB_HI, aWOA = 0, 64, 0, 128

SCALE = (28.0 ** -0.5) * math.log2(math.e)
OFFS = 64.0
LIMIT = 2.0 ** 90

def acc(t, ty): return vACC + 48 * t + 16 * ty

class Gen:
    def __init__(self, opt):
        self.o = opt
        self.e = Em()
        self.ool = Em()
        self.nlab = 0
        self.nstamp = 0
        self.stamp_names = []
    def lab(self, p):
        self.nlab += 1
        return "L_%s_%d" % (p, self.nlab)
    def stamp(self, name, k=None):
        if not self.o.get('stamps'):
            return
        e = self.e
        if k is None:
            k = self.nstamp
            self.nstamp += 1
            self.stamp_names.append(name)
        e("s_memrealtime s[94:95]")
        e("s_memtime s[96:97]")
        e("s_waitcnt lgkmcnt(0)")
        e.lg = []
        e("v_writelane_b32 v15, s94, %d" % k)
        e("v_writelane_b32 v8, s96, %d" % k) if False else None
        e("v_writelane_b32 v15, s96, %d" % (32 + k))
        return k

    def srd(self, s, p, n, bias=0):
        e = self.e
        if bias:
            e("s_sub_u32 s%d, s%d, %d" % (s, p, bias))
            e("s_subb_u32 s%d, s%d, 0" % (s + 1, p + 1))
            e("s_and_b32 s%d, s%d, 0xffff" % (s + 1, s + 1))
        else:
            e("s_mov_b32 s%d, s%d" % (s, p))
            e("s_and_b32 s%d, s%d, 0xffff" % (s + 1, p + 1))
        e("s_mov_b32 s%d, %d" % (s + 2, n + bias))
        e("s_mov_b32 s%d, 0x20000" % (s + 3))

    def prologue(self):
        e = self.e
        e("s_getpc_b64 s[%d:%d]" % (sPC, sPC + 1))
        e.label("L_pc")
        e("s_load_dwordx16 s[4:19], s[0:1], 0")
        e("s_load_dwordx4 s[20:23], s[0:1], 64")
        e("s_cmp_ge_u32 s2, 256")
        e("s_cbranch_scc1 L_end")
        e("s_mov_b32 s%d, L_codeend-L_pc" % (sPC + 2))
        e("s_mov_b32 s%d, 0x20000" % (sPC + 3))
        e("v_lshlrev_b32 v%d, 7, v0" % vT)
        e("v_lshrrev_b32 v%d, 6, v0" % (vT + 1))
        e.vmem("buffer_load_dword v%d, v%d, s[%d:%d], 0 offen" % (vT + 2, vT, sPC, sPC + 3), 'pf')
        e("v_readfirstlane_b32 s%d, v%d" % (sW, vT + 1))
        e("v_and_b32 v0, 63, v0")
        e("v_mov_b32 v%d, 0" % (vT + 8))
        if self.o.get('stamps'):
            e("v_mov_b32 v15, 0")
            self.stamp('start')
        e("s_and_b32 s%d, s2, 7" % sT)
        e("s_lshr_b32 s%d, s2, 3" % (sT + 1))
        e("s_and_b32 s%d, s%d, 1" % (sROLE, sT + 1))
        e("s_lshr_b32 s%d, s%d, 1" % (sT + 3, sT + 1))
        e("s_and_b32 s%d, s%d, 1" % (sHP, sT))
        e("s_lshl_b32 s%d, s%d, 2" % (sHP, sHP))
        e("s_and_b32 s%d, s%d, 3" % (sT + 2, sT + 3))
        e("s_add_u32 s%d, s%d, s%d" % (sHP, sHP, sT + 2))
        e("s_lshr_b32 s%d, s%d, 1" % (sJ, sT))
        e("s_lshl_b32 s%d, s%d, 2" % (sJ, sJ))
        e("s_lshr_b32 s%d, s%d, 2" % (sT + 2, sT + 3))
        e("s_add_u32 s%d, s%d, s%d" % (sJ, sJ, sT + 2))
        e("s_lshl_b32 s%d, s%d, 1" % (sH2, sT))
        e("s_and_b32 s%d, s%d, 1" % (sT + 2, sT + 1))
        e("s_add_u32 s%d, s%d, s%d" % (sH2, sH2, sT + 2))
        e("s_lshr_b32 s%d, s%d, 1" % (sJ2, sT + 1))
        e("s_and_b32 s%d, s%d, 1" % (sTH, sW))
        e("s_lshr_b32 s%d, s%d, 1" % (sHD, sW))
        e("s_lshl_b32 s%d, s%d, 1" % (sH1, sHP))
        e("s_add_u32 s%d, s%d, s%d" % (sH1, sH1, sHD))
        e("s_lshl_b32 s%d, s%d, 2" % (sT, sJ))
        e("s_add_u32 s%d, s%d, s%d" % (sT, sT, sW))
        e("s_mul_i32 s%d, s%d, %d" % (sXROW, sT, 32 * 896))
        e("s_lshl_b32 s%d, s%d, 3" % (sT, sW))
        e("s_mul_i32 s%d, s%d, 2688" % (sWROW, sT))
        e("s_mul_i32 s%d, s%d, 112" % (sT + 1, sHP))
        e("s_add_u32 s%d, s%d, s%d" % (sWROW, sWROW, sT + 1))
        e("s_lshl_b32 s%d, s%d, 12" % (sLX, sW))
        e("s_mul_i32 s%d, s%d, 3072" % (sLW, sW))
        e("s_add_u32 s%d, s%d, %d" % (sLW, sLW, WBASE))
        e("s_lshl_b32 s%d, s%d, 10" % (sL16W, sW))
        t0, t1, t2, t3 = vT + 3, vT + 4, vT + 5, vT + 6
        e("v_lshlrev_b32 v%d, 4, v0" % vL16)
        e("v_lshrrev_b32 v%d, 3, v0" % t0)
        e("v_lshrrev_b32 v%d, 4, v0" % t1)
        e("v_and_b32 v%d, 7, v0" % t2)
        e("v_mul_u32_u24 v%d, 896, v%d" % (vT + 7, t0))
        for i in range(4):
            if i < 2:
                e("v_add_u32 v%d, %d, v%d" % (t3, 4 * i, t1))
                e("v_xor_b32 v%d, v%d, v%d" % (t3, t3, t2))
                e("v_lshl_add_u32 v%d, v%d, 4, v%d" % (vXD + i, t3, vT + 7))
                if i:
                    e("v_add_u32 v%d, %d, v%d" % (vXD + i, 6144 * i, vXD + i))
            else:
                e("v_add_u32 v%d, %d, v%d" % (vXD + i, 2 * 6144, vXD + i - 2))
        e("v_and_b32 v%d, 1, v%d" % (t3, t1))
        e("v_lshlrev_b32 v%d, 2, v%d" % (t3, t3))
        e("v_xor_b32 v%d, v%d, v%d" % (t3, t3, t2))
        e("v_min_u32 v%d, 6, v%d" % (t3, t3))
        e("v_mul_u32_u24 v%d, 2688, v%d" % (t0, t0))
        e("v_lshl_add_u32 v%d, v%d, 4, v%d" % (t0, t3, t0))
        for ty in range(3):
            e("v_add_u32 v%d, %d, v%d" % (vWD + ty, 256 - 128 * ty, t0))
        e("s_waitcnt lgkmcnt(0)")
        e("s_cmp_eq_u32 s%d, 0" % sROLE)
        e("s_cselect_b32 s%d, s12, s4" % sT)
        e("s_cselect_b32 s%d, s13, s5" % (sT + 1))
        e("s_cselect_b32 s%d, s14, s6" % (sT + 2))
        e("s_cselect_b32 s%d, s15, s7" % (sT + 3))
        self.srd(sX, sT, 2048 * 896)
        self.srd(sWt, sT + 2, 448 * 2688, bias=256)
        if self.o.get('warm'): self.input_prefetch()
        self.dma_x(0); self.dma_w(0); self.dma_w(1)
        self.srd(sWS, 22, WS_SIZE)
        e("s_load_dword s%d, s[22:23], %d" % (sNONCE, G_OFF))
        self.dma_x(1); self.dma_w(2); self.dma_w(3)
        self.dma_x(2); self.dma_w(4); self.dma_w(5)
        self.dma_x(3)
        self.srd(sPH, 8, 16 * 28 * 28 * 2)
        self.srd(sOUT, 18, 2048 * 896 * 2)
        e("v_and_b32 v%d, 31, v0" % t0)
        e("v_lshrrev_b32 v%d, 5, v0" % t1)
        e("v_lshlrev_b32 v%d, 7, v%d" % (t2, t0))
        e("s_lshl_b32 s%d, s%d, 13" % (sT, sTH))
        e("v_add_u32 v%d, s%d, v%d" % (t2, sT, t2))
        e("v_bfe_u32 v%d, v0, 1, 3" % t3)
        e("v_xor_b32 v%d, v%d, v%d" % (t3, t3, t1))
        for s in range(4):
            e("v_xor_b32 v%d, %d, v%d" % (vT + 7, 2 * s, t3))
            e("v_lshl_add_u32 v%d, v%d, 4, v%d" % (vXR + s, vT + 7, t2))
        e("v_bfe_u32 v%d, v0, 4, 1" % t2)
        e("v_lshlrev_b32 v%d, 5, v%d" % (t2, t2))
        e("v_and_b32 v%d, 3, v0" % t3)
        e("v_lshl_add_u32 v%d, v%d, 3, v%d" % (t2, t3, t2))
        e("s_mul_i32 s%d, s%d, 56" % (sT, sHD))
        e("v_add_u32 v%d, s%d, v%d" % (t2, sT, t2))
        e("v_bfe_u32 v%d, v0, 3, 1" % t3)
        e("v_lshlrev_b32 v%d, 6, v%d" % (t3, t3))
        e("v_xor_b32 v%d, v%d, v%d" % (t2, t2, t3))
        e("v_bfe_u32 v%d, v0, 2, 2" % t3)
        e("v_lshl_add_u32 v%d, v%d, 7, v%d" % (t2, t3, t2))
        e("v_mul_u32_u24 v%d, 3072, v%d" % (t3, t1))
        e("v_add_u32 v%d, v%d, v%d" % (t2, t2, t3))
        e("v_add_u32 v%d, %d, v%d" % (vWR, WBASE, t2))
        e("v_add_u32 v%d, %d, v%d" % (vWR + 1, WBASE + 5 * WS_, t2))
        e("s_mov_b32 s%d, 0x%08x" % (sC, f2u(SCALE)))
        e("s_mov_b32 s%d, 0x%08x" % (sC + 1, f2u(SCALE)))
        e("s_mov_b32 s%d, 0x%08x" % (sL2E, f2u(math.log2(math.e))))
        e("s_mov_b32 s%d, 0x%08x" % (sNL2E, f2u(-math.log2(math.e))))
        e("v_min_u32 v%d, 27, v%d" % (t2, t0))
        e("v_mul_u32_u24 v%d, %d, v%d" % (t3, 4 * 28, t1))
        e("v_add_u32 v%d, v%d, v%d" % (t2, t2, t3))
        e("v_lshlrev_b32 v%d, 1, v%d" % (t2, t2))
        e("s_mul_i32 s%d, s%d, 1568" % (sT, sH1))
        for mf in range(2):
            for j in range(8):
                d = 16 * mf + (j & 3) + 8 * (j >> 2)
                e.vmem("buffer_load_ushort v%d, v%d, s[%d:%d], s%d offen offset:%d" % (vRAW + 8 * mf + j, t2, sPH, sPH + 3, sT, d * 56), 'wphi')

    def input_prefetch(self):
        e = self.e
        S = sWO
        e("s_lshl_b32 s%d, s2, 2" % sT)
        e("s_add_u32 s%d, s%d, s%d" % (sT, sT, sW))
        segs = [(14, 448 * 2688), (6, 448 * 2688), (12, 2048 * 896), (4, 2048 * 896), (16, 448 * 896), (10, 448 * 896)]
        start = 0
        L = self.lab('pfdone')
        labs = [self.lab('pfseg') for _ in segs]
        for (p, n), lb in zip(segs, labs):
            cnt = (n + 8191) // 8192
            e("s_cmp_lt_u32 s%d, %d" % (sT, start + cnt))
            e("s_cselect_b32 s%d, 1, 0" % (sT + 1))
            e("s_cbranch_scc0 %s" % lb)
            e("s_mov_b32 s%d, s%d" % (S, p))
            e("s_and_b32 s%d, s%d, 0xffff" % (S + 1, p + 1))
            e("s_mov_b32 s%d, %d" % (S + 2, n))
            e("s_sub_u32 s%d, s%d, %d" % (sT + 2, sT, start))
            e("s_branch %s" % (L + "_go"))
            e.label(lb)
            start += cnt
        e("s_branch %s" % L)
        e.label(L + "_go")
        e("s_mov_b32 s%d, 0x20000" % (S + 3))
        e("s_lshl_b32 s%d, s%d, 13" % (sT + 2, sT + 2))
        e("v_lshlrev_b32 v%d, 7, v0" % (vT + 9))
        e.vmem("buffer_load_dword v%d, v%d, s[%d:%d], s%d offen" % (vT + 10, vT + 9, S, S + 3, sT + 2), 'pf2', optional=True)
        e.label(L)

    def merge_wphi(self):
        e = self.e
        e.vm_wait('wphi')
        for i in range(8):
            e("v_lshl_or_b32 v%d, v%d, 16, v%d" % (vPH + i, vRAW + 2 * i + 1, vRAW + 2 * i))

    def dma_x(self, c):
        e = self.e
        e("s_add_u32 m0, s%d, %d" % (sLX, (c % 4) * XS))
        e("s_add_u32 s%d, s%d, %d" % (sSX, sXROW, c * 128))
        for i in range(4):
            e.vmem("buffer_load_dwordx4 v%d, s[%d:%d], s%d offen offset:%d lds" % (vXD + i, sX, sX + 3, sSX, 1024 * i), 'x%d' % c)
    def dma_w(self, hc):
        e = self.e
        e("s_add_u32 m0, s%d, %d" % (sLW, (hc % 7) * WS_))
        e("s_add_u32 s%d, s%d, %d" % (sSW, sWROW, hc * 32 * 2688))
        for ty in range(3):
            e.vmem("buffer_load_dwordx4 v%d, s[%d:%d], s%d offen offset:%d lds" % (vWD + ty, sWt, sWt + 3, sSW, 1024 * ty), 'w%d' % hc)

    def frag_reads(self, hc, ks):
        e = self.e
        b = 2 * (hc & 1) + ks
        F = vF + 20 * b
        c = hc >> 1
        s = 2 * (hc & 1) + ks
        slot = hc % 7
        wr, rel = (vWR, slot * WS_) if slot < 5 else (vWR + 1, (slot - 5) * WS_)
        tag = 'f%d_%d' % (hc, ks)
        items = []
        for t in range(2):
            items.append(lambda t=t: e.lds("ds_read_b128 %s, v%d offset:%d" % (vr(F + 4 * t, 4), vXR + s, (c % 4) * XS + 4096 * t), tag))
        for ty in range(3):
            for hf in range(2):
                off = rel + ks * 6144 + ty * 1024 + 512 * hf
                items.append(lambda ty=ty, hf=hf, off=off: e.lds("ds_read_b64_tr_b16 %s, v%d offset:%d" % (vr(F + 8 + 4 * ty + 2 * hf, 2), wr, off), tag))
        return items

    def mfmas(self, hc, ks):
        e = self.e
        F = vF + 20 * (2 * (hc & 1) + ks)
        first = (hc == 0 and ks == 0)
        items = []
        for ty in range(3):
            for t in range(2):
                D = vr(acc(t, ty), 16)
                C = "0" if first else D
                if ty < 2:
                    items.append(lambda D=D, C=C, ty=ty, t=t: e("v_mfma_f32_32x32x16_bf16 %s, %s, %s, %s" % (D, vr(F + 8 + 4 * ty, 4), vr(F + 4 * t, 4), C)))
                else:
                    items.append(lambda D=D, C=C, t=t: e("v_mfma_f32_32x32x16_bf16 %s, %s, %s, %s" % (D, vr(F + 4 * t, 4), vr(F + 16, 4), C)))
        return items

    def body(self, hc, top=None):
        e = self.e
        e.c("---- GEMM half chunk %d ----" % hc)
        e.vm_wait('w%d' % hc, 'x%d' % (hc >> 1))
        e.lg_drain()
        e("s_barrier")
        if top: top()
        mf = (self.mfmas(hc - 1, 0) + self.mfmas(hc - 1, 1)) if hc > 0 else []
        rd = self.frag_reads(hc, 0) + self.frag_reads(hc, 1)
        if mf:
            mf.pop(0)()
        if hc + 6 < 14: self.dma_w(hc + 6)
        if hc >= 2 and hc % 2 == 0 and hc // 2 + 3 < 7: self.dma_x(hc // 2 + 3)
        k = 0
        for i, m in enumerate(mf):
            n = 2 if i < 8 else 0
            for r in rd[k:k + n]: r()
            k += n
            m()
        for r in rd[k:]: r()

    def upper_only(self, on):
        self.e("s_mov_b32 exec_lo, %s" % ("0" if on else "-1"))

    def cross_half(self, op, regs):
        e = self.e
        for v, t in regs:
            e("v_mov_b32 v%d, v%d" % (t, v))
        e("s_nop %d" % (1 if len(regs) == 1 else 0))
        for v, t in regs:
            e("v_permlane32_swap_b32 v%d, v%d" % (v, t))
        for (v, t), o in zip(regs, op):
            e("%s v%d, v%d, v%d" % (o, v, v, t))

    def one_lane_store(self, vaddr, vdata, soff_reg, tag):
        e = self.e
        e("v_mov_b32 v%d, s%d" % (vaddr, soff_reg))
        e("v_mov_b32 v%d, s%d" % (vdata, sNONCE))
        e("s_mov_b64 exec, 1")
        e.vmem("buffer_store_dword v%d, v%d, s[%d:%d], 0 offen sc1" % (vdata, vaddr, sWS, sWS + 3), tag, optional=True)
        e("s_mov_b64 exec, -1")

    def b_epilogue(self):
        e = self.e
        e.c("---- B epilogue: pack Q/K/V, stand-in row max, publish ----")
        St = [32, 48]
        for t in range(2):
            q, k, v = acc(t, 0), acc(t, 1), acc(t, 2)
            for i in range(8):
                e("v_pk_mul_f32 %s, %s, s[%d:%d]" % (vr(q + 2 * i, 2), vr(q + 2 * i, 2), sC, sC + 1))
            for i in range(8):
                e("v_cvt_pk_bf16_f32 v%d, v%d, v%d" % (k + i, k + 2 * i, k + 2 * i + 1))
            for i in range(8):
                e("v_cvt_pk_bf16_f32 v%d, v%d, v%d" % (q + i, q + 2 * i, q + 2 * i + 1))
            self.upper_only(True)
            e("v_mov_b32 v%d, 0" % (q + 6))
            e("v_mov_b32 v%d, 0" % (q + 7))
            e("v_mov_b32 v%d, 0x3f80" % (k + 6))
            e("v_mov_b32 v%d, 0" % (k + 7))
            self.upper_only(False)
            for i in range(2):
                e("v_cvt_pk_bf16_f32 v%d, v%d, v%d" % (v + i, v + 2 * i, v + 2 * i + 1))
            e("v_mfma_f32_32x32x16_bf16 %s, %s, %s, 0" % (vr(St[t], 16), vr(k, 4), vr(q, 4)))
            e("v_mfma_f32_32x32x16_bf16 %s, %s, %s, %s" % (vr(St[t], 16), vr(k + 4, 4), vr(q + 4, 4), vr(St[t], 16)))
            for i in range(2, 8):
                e("v_cvt_pk_bf16_f32 v%d, v%d, v%d" % (v + i, v + 2 * i, v + 2 * i + 1))
            e("s_mov_b32 exec_lo, 0x10000000")
            e("s_mov_b32 exec_hi, 0x10000000")
            for i in range(8):
                e("v_mov_b32 v%d, 0x3f803f80" % (v + i))
            e("s_mov_b64 exec, -1")
        e("s_lshl_b32 s%d, s%d, 2" % (sT, sJ))
        e("s_lshl_b32 s%d, s%d, 1" % (sT + 1, sTH))
        e("s_add_u32 s%d, s%d, s%d" % (sT, sT, sT + 1))
        e("s_lshl_b32 s%d, s%d, 6" % (sT + 1, sH1))
        e("s_add_u32 s%d, s%d, s%d" % (sT, sT, sT + 1))
        e("s_lshl_b32 s%d, s%d, 12" % (sT + 2, sT))
        e("s_add_u32 s%d, s%d, %d" % (sT + 2, sT + 2, KV_OFF))
        e("s_add_u32 s%d, s%d, 4096" % (sT + 3, sT + 2))
        e("s_lshl_b32 s%d, s%d, 11" % (sT + 4, sT))
        e("s_add_u32 s%d, s%d, %d" % (sT + 4, sT + 4, QF_OFF))
        for t in range(2):
            k, v = acc(t, 1), acc(t, 2)
            for i, r in enumerate((k, k + 4, v, v + 4)):
                e.vmem("buffer_store_dwordx4 %s, v%d, s[%d:%d], s%d offen offset:%d sc1" % (vr(r, 4), vL16, sWS, sWS + 3, sT + 2 + t, 1024 * i), 'pub')
        ms = [(vT, vT + 1), (vT + 2, vT + 3)]
        for t in range(2):
            m = ms[t][0]
            S = St[t]
            e("v_max3_f32 v%d, v%d, v%d, v%d" % (m, S, S + 1, S + 2))
            for i in range(6):
                e("v_max3_f32 v%d, v%d, v%d, v%d" % (m, m, S + 3 + 2 * i, S + 4 + 2 * i))
            e("v_max_f32 v%d, v%d, v%d" % (m, m, S + 15))
        self.cross_half(["v_max_f32", "v_max_f32"], ms)
        for t in range(2):
            e("v_sub_f32 v%d, 0x%08x, v%d" % (ms[t][0], f2u(-OFFS), ms[t][0]))
        self.upper_only(True)
        for t in range(2):
            e("v_cvt_pk_bf16_f32 v%d, v%d, 0" % (acc(t, 0) + 6, ms[t][0]))
        self.upper_only(False)
        for t in range(2):
            q = acc(t, 0)
            for i in range(2):
                e.vmem("buffer_store_dwordx4 %s, v%d, s[%d:%d], s%d offen offset:%d sc1" % (vr(q + 4 * i, 4), vL16, sWS, sWS + 3, sT + 4, 2048 * t + 1024 * i), 'pub')
        e.vm_drain()
        e("s_barrier")
        L = self.lab('sig1')
        e("s_cmp_lg_u32 s%d, 0" % sW)
        e("s_cbranch_scc1 %s" % L)
        e("s_lshl_b32 s%d, s%d, 7" % (sT, sHP))
        e("s_lshl_b32 s%d, s%d, 2" % (sT + 1, sJ))
        e("s_add_u32 s%d, s%d, s%d" % (sT, sT, sT + 1))
        e("s_add_u32 s%d, s%d, %d" % (sT, sT, F1_OFF))
        self.one_lane_store(vT + 6, vT + 7, sT, 'flag')
        e.label(L)
        self.stamp('pub')

    def chore_issue(self):
        e = self.e
        t0, t1, t2, t3 = vT, vT + 1, vT + 2, vT + 3
        R = vCH
        e("s_lshl_b32 s%d, s2, 2" % sT)
        e("s_add_u32 s%d, s%d, s%d" % (sT, sT, sW))
        e("s_lshr_b32 s%d, s%d, 9" % (sT + 1, sT))
        e("s_cmp_eq_u32 s%d, 0" % (sT + 1))
        e("s_cselect_b32 s%d, s10, s16" % sWO)
        e("s_cselect_b32 s%d, s11, s17" % (sWO + 1))
        e("s_and_b32 s%d, s%d, 0xffff" % (sWO + 1, sWO + 1))
        e("s_mov_b32 s%d, %d" % (sWO + 2, 448 * 896))
        e("s_mov_b32 s%d, 0x20000" % (sWO + 3))
        e("s_bfe_u32 s%d, s%d, 0x40005" % (sT + 1, sT))
        e("s_bfe_u32 s%d, s%d, 0x40001" % (sT + 2, sT))
        e("s_and_b32 s%d, s%d, 1" % (sT + 3, sT))
        e("s_mul_i32 s%d, s%d, 28" % (sT + 2, sT + 2))
        e("s_lshl_b32 s%d, s%d, 4" % (sT + 4, sT + 3))
        e("s_add_u32 s%d, s%d, s%d" % (sT + 2, sT + 2, sT + 4))
        e("s_mul_i32 s%d, s%d, 896" % (sT + 2, sT + 2))
        e("s_mul_i32 s%d, s%d, 56" % (sT + 1, sT + 1))
        e("s_add_u32 s%d, s%d, s%d" % (sT + 2, sT + 2, sT + 1))
        e("s_lshl_b32 s%d, s%d, 30" % (sT + 3, sT + 3))
        e("v_and_b32 v%d, 31, v0" % t0)
        e("v_lshrrev_b32 v%d, 5, v0" % t1)
        e("v_mul_u32_u24 v%d, %d, v%d" % (t2, 4 * 896, t1))
        e("v_lshl_add_u32 v%d, v%d, 1, v%d" % (t2, t0, t2))
        e("v_mul_lo_u32 v%d, v%d, s%d" % (t3, t1, sT + 3))
        e("v_add_u32 v%d, v%d, v%d" % (t3, t3, t2))
        e("v_add_u32 v%d, %d, v%d" % (t3, 8 * 896, t3))
        for k in range(4):
            e("v_mov_b32 v%d, -1" % (vT + 4 + k))
        e("s_lshl_b32 s%d, s%d, 12" % (sT + 4, sT))
        e("s_add_u32 s%d, s%d, %d" % (sT + 4, sT + 4, OA_OFF))
        for j in range(8):
            e.vmem("buffer_load_ushort v%d, v%d, s[%d:%d], s%d offen offset:%d" % (R + j, t2 if j < 4 else t3, sWO, sWO + 3, sT + 2, (j & 3) * 896), 'wog')
        for i in range(4):
            e.vmem("buffer_store_dwordx4 v[%d:%d], v%d, s[%d:%d], s%d offen offset:%d sc1" % (vT + 4, vT + 7, vL16, sWS, sWS + 3, sT + 4, i * 1024), 'chst')

    def chore_store(self):
        e = self.e
        R = vCH
        e.vm_wait('wog')
        for i in range(4):
            e("v_lshl_or_b32 v%d, v%d, 16, v%d" % (R + i, R + 2 * i + 1, R + 2 * i))
        e("s_lshl_b32 s%d, s2, 2" % sT)
        e("s_add_u32 s%d, s%d, s%d" % (sT, sT, sW))
        e("s_lshl_b32 s%d, s%d, 10" % (sT, sT))
        e("s_add_u32 s%d, s%d, %d" % (sT, sT, WOF_OFF))
        e.vmem("buffer_store_dwordx4 %s, v%d, s[%d:%d], s%d offen sc1" % (vr(R, 4), vL16, sWS, sWS + 3, sT), 'chst')

    def features(self, a, outp, outn):
        e = self.e
        X, Pm, Ep, En = 32, 40, 56, 72
        mx, mn, t0, t1, ap, an = 88, 89, 90, 91, 92, 93
        for i in range(8):
            e("v_cvt_pk_bf16_f32 v%d, v%d, v%d" % (X + i, a + 2 * i, a + 2 * i + 1))
        self.upper_only(True)
        e("v_mov_b32 v%d, 0" % (X + 6))
        e("v_mov_b32 v%d, 0" % (X + 7))
        self.upper_only(False)
        e("s_nop 0")
        e("v_mfma_f32_32x32x16_bf16 %s, %s, %s, 0" % (vr(Pm, 16), vr(vPH, 4), vr(X, 4)))
        e("v_mfma_f32_32x32x16_bf16 %s, %s, %s, %s" % (vr(Pm, 16), vr(vPH + 4, 4), vr(X + 4, 4), vr(Pm, 16)))
        e("s_nop 11")
        for op, r in (("v_max3_f32", mx), ("v_min3_f32", mn)):
            e("%s v%d, v%d, v%d, v%d" % (op, r, Pm, Pm + 1, Pm + 2))
            for i in range(6):
                e("%s v%d, v%d, v%d, v%d" % (op, r, r, Pm + 3 + 2 * i, Pm + 4 + 2 * i))
            e("%s v%d, v%d, v%d" % (op.replace('3_', '_'), r, r, Pm + 15))
        self.cross_half(["v_max_f32", "v_min_f32"], [(mx, t0), (mn, t1)])
        e("v_mul_f32 v%d, s%d, v%d" % (ap, sNL2E, mx))
        e("v_mul_f32 v%d, s%d, v%d" % (an, sL2E, mn))
        for r in range(16):
            e("v_fma_f32 v%d, v%d, s%d, v%d" % (Ep + r, Pm + r, sL2E, ap))
            e("v_fma_f32 v%d, -v%d, s%d, v%d" % (En + r, Pm + r, sL2E, an))
        for r in range(16):
            e("v_exp_f32 v%d, v%d" % (Ep + r, Ep + r))
        for r in range(16):
            e("v_exp_f32 v%d, v%d" % (En + r, En + r))
        self.upper_only(True)
        for r in range(12, 16):
            e("v_mov_b32 v%d, 0" % (Ep + r))
            e("v_mov_b32 v%d, 0" % (En + r))
        self.upper_only(False)
        for E, s in ((Ep, mx), (En, mn)):
            A = Pm if E == Ep else Pm + 8
            for i in range(4):
                e("v_pk_add_f32 %s, %s, %s" % (vr(A + 2 * i, 2), vr(E + 4 * i, 2), vr(E + 4 * i + 2, 2)))
            e("v_pk_add_f32 %s, %s, %s" % (vr(A, 2), vr(A, 2), vr(A + 2, 2)))
            e("v_pk_add_f32 %s, %s, %s" % (vr(A + 4, 2), vr(A + 4, 2), vr(A + 6, 2)))
            e("v_pk_add_f32 %s, %s, %s" % (vr(A, 2), vr(A, 2), vr(A + 4, 2)))
            e("v_add_f32 v%d, v%d, v%d" % (s, A, A + 1))
        self.cross_half(["v_add_f32", "v_add_f32"], [(mx, t0), (mn, t1)])
        e("v_rcp_f32 v%d, v%d" % (ap, mx))
        e("v_rcp_f32 v%d, v%d" % (t0, mn))
        e("s_nop 0")
        for i in range(8):
            e("v_pk_mul_f32 %s, %s, %s op_sel_hi:[1,0]" % (vr(Ep + 2 * i, 2), vr(Ep + 2 * i, 2), vr(ap, 2)))
        for i in range(8):
            e("v_pk_mul_f32 %s, %s, %s op_sel_hi:[1,0]" % (vr(En + 2 * i, 2), vr(En + 2 * i, 2), vr(t0, 2)))
        for i in range(8):
            e("v_cvt_pk_bf16_f32 v%d, v%d, v%d" % (outp + i, Ep + 2 * i, Ep + 2 * i + 1))
        for i in range(8):
            e("v_cvt_pk_bf16_f32 v%d, v%d, v%d" % (outn + i, En + 2 * i, En + 2 * i + 1))

    def a_epilogue(self):
        e = self.e
        e.c("---- A epilogue: features ----")
        t0, t1 = vT, vT + 1
        e("s_barrier")
        e("v_and_b32 v%d, 31, v0" % t0)
        e("s_lshl_b32 s%d, s%d, 6" % (sT, sTH))
        e("v_add_u32 v%d, s%d, v%d" % (t0, sT, t0))
        e("v_mul_u32_u24 v%d, 72, v%d" % (t0, t0))
        e("v_lshrrev_b32 v%d, 5, v0" % t1)
        e("v_lshl_add_u32 v%d, v%d, 3, v%d" % (t0, t1, t0))
        e("s_mul_i32 s%d, s%d, %d" % (sT, sHD, 2 * 9216))
        e("v_add_u32 v%d, s%d, v%d" % (t0, sT, t0))
        e("s_lshl_b32 s%d, s%d, 13" % (sT, sHD))
        e("s_lshl_b32 s%d, s%d, 12" % (sT + 1, sTH))
        e("s_add_u32 s%d, s%d, s%d" % (sT, sT, sT + 1))
        e("s_add_u32 s%d, s%d, %d" % (sT, sT, VX))
        e("v_add_u32 v%d, s%d, v%d" % (t1, sT, vL16))
        for t in range(2):
            k, v = acc(t, 1), acc(t, 2)
            self.features(k, k, k + 8)
            for i in range(8):
                e("v_cvt_pk_bf16_f32 v%d, v%d, v%d" % (v + i, v + 2 * i, v + 2 * i + 1))
            e("s_mov_b32 exec_lo, 0x10000000")
            e("s_mov_b32 exec_hi, 0x10000000")
            for i in range(8):
                e("v_mov_b32 v%d, 0x3f803f80" % (v + i))
            e("s_mov_b64 exec, -1")
            for sg in range(2):
                for g in range(4):
                    e.lds("ds_write_b64 v%d, %s offset:%d" % (t0, vr(k + 8 * sg + 2 * g, 2), PHI + sg * 9216 + t * 32 * 72 + 16 * g), 'phi')
            for i in range(2):
                e.lds("ds_write_b128 v%d, %s offset:%d" % (t1, vr(v + 4 * i, 4), 2048 * t + 1024 * i), 'phi')
        e.lg_drain()
        e("s_barrier")
        self.stamp('kfeat')
        e("v_lshrrev_b32 v%d, 5, v0" % t0)
        e("v_lshlrev_b32 v%d, 2, v%d" % (t0, t0))
        e("v_bfe_u32 v%d, v0, 2, 2" % t1)
        e("v_add_u32 v%d, v%d, v%d" % (t0, t0, t1))
        e("v_mul_u32_u24 v%d, 72, v%d" % (t0, t0))
        e("v_bfe_u32 v%d, v0, 4, 1" % t1)
        e("v_lshl_add_u32 v%d, v%d, 5, v%d" % (t0, t1, t0))
        e("v_and_b32 v%d, 3, v0" % t1)
        e("v_lshl_add_u32 v%d, v%d, 3, v%d" % (t0, t1, t0))
        e("s_mul_i32 s%d, s%d, 9216" % (sT, sW))
        e("v_add_u32 v%d, s%d, v%d" % (t0, sT, t0))
        e("s_lshl_b32 s%d, s%d, 13" % (sT, sHD))
        e("s_add_u32 s%d, s%d, %d" % (sT, sT, VX))
        e("v_add_u32 v%d, s%d, v%d" % (t1, sT, vL16))
        A, B, Dk = 32, 64, acc(0, 1)
        def mm(jj):
            e.lg_wait('c%d' % jj)
            e("v_mfma_f32_32x32x16_bf16 %s, %s, %s, %s" % (vr(Dk, 16), vr(A + 4 * jj, 4), vr(B + 4 * jj, 4), "0" if jj == 0 else vr(Dk, 16)))
        for T in range(4):
            for mf in range(2):
                i = 2 * T + mf
                row = 32 * T + 16 * mf
                e.lds("ds_read_b64_tr_b16 %s, v%d offset:%d" % (vr(A + 4 * i, 2), t0, row * 72), 'c%d' % i)
                e.lds("ds_read_b64_tr_b16 %s, v%d offset:%d" % (vr(A + 4 * i + 2, 2), t0, (row + 8) * 72), 'c%d' % i)
                e.lds("ds_read_b128 %s, v%d offset:%d" % (vr(B + 4 * i, 4), t1, i * 1024), 'c%d' % i)
                if i >= 3: mm(i - 3)
        for jj in range(5, 8): mm(jj)
        e("s_lshl_b32 s%d, s%d, 4" % (sT, sH1))
        e("s_add_u32 s%d, s%d, s%d" % (sT, sT, sJ))
        e("s_lshl_b32 s%d, s%d, 13" % (sT, sT))
        e("s_lshl_b32 s%d, s%d, 12" % (sT + 1, sTH))
        e("s_add_u32 s%d, s%d, s%d" % (sT, sT, sT + 1))
        e("s_add_u32 s%d, s%d, %d" % (sT, sT, PART_OFF))
        e("s_nop 7")
        for g in range(4):
            e.vmem("buffer_store_dwordx4 %s, v%d, s[%d:%d], s%d offen offset:%d sc1" % (vr(Dk + 4 * g, 4), vL16, sWS, sWS + 3, sT, g * 1024), 'part')
        self.stamp('kv')
        for t in range(2):
            self.features(acc(t, 0), vPQ + 16 * t, vPQ + 16 * t + 8)
        e.vm_drain()
        e("s_lshl_b32 s%d, s%d, 7" % (sT, sH1))
        e("s_lshl_b32 s%d, s%d, 3" % (sT + 1, sJ))
        e("s_add_u32 s%d, s%d, s%d" % (sT, sT, sT + 1))
        e("s_lshl_b32 s%d, s%d, 2" % (sT + 1, sTH))
        e("s_add_u32 s%d, s%d, s%d" % (sT, sT, sT + 1))
        e("s_add_u32 s%d, s%d, %d" % (sT, sT, F2_OFF))
        self.one_lane_store(vT + 6, vT + 7, sT, 'flag')

    def flag_compare(self, e, regs):
        r = list(regs)
        if len(r) == 1:
            e("v_cmp_ne_u32 vcc, s%d, v%d" % (sNONCE, r[0]))
        else:
            for x in r:
                e("v_xor_b32 v%d, s%d, v%d" % (x, sNONCE, x))
            e("v_or3_b32 v%d, v%d, v%d, v%d" % (r[0], r[0], r[1], r[2]))
            e("v_or_b32 v%d, v%d, v%d" % (r[0], r[0], r[3]))
            e("v_cmp_ne_u32 vcc, 0, v%d" % r[0])
        e("s_nop 1")
    def flag_issue(self, name, dst, n, vaddr, soff, optional=False):
        op = "buffer_load_dwordx4 %s" % vr(dst, 4) if n == 4 else "buffer_load_dword v%d" % dst
        ld = "%s, v%d, s[%d:%d], s%d offen sc1" % (op, vaddr, sWS, sWS + 3, soff)
        self.e.vmem(ld, name, optional=optional)
        return ld
    def flag_check(self, name, ld, dst, n, keep=False):
        e = self.e
        e.vm_wait(name, keep=keep)
        back = self.lab('back_' + name)
        self.flag_compare(e, range(dst, dst + n))
        o = self.ool
        L = self.lab("spin_" + name)
        o.label(L)
        o("s_mov_b32 s%d, 0x8000" % sCNT)
        o.label(L + "_loop")
        o(ld)
        o("s_waitcnt vmcnt(0)")
        self.flag_compare(o, range(dst, dst + n))
        o("s_cbranch_vccz %s" % back)
        o("s_sub_u32 s%d, s%d, 1" % (sCNT, sCNT))
        o("s_cmp_lg_u32 s%d, 0" % sCNT)
        o("s_cbranch_scc1 %s_loop" % L)
        o("s_branch %s" % back)
        e("s_cbranch_vccnz %s" % L)
        e.label(back)

    def attn_prologue(self):
        e = self.e
        e.c("---- attention prologue ----")
        e("s_lshr_b32 s%d, s%d, 1" % (sT, sH2))
        e("s_lshl_b32 s%d, s%d, 7" % (sT2, sT))
        e("s_add_u32 s%d, s%d, %d" % (sT2, sT2, F1_OFF))
        e("v_and_b32 v%d, 15, v0" % (vT + 3))
        e("v_lshlrev_b32 v%d, 2, v%d" % (vT + 3, vT + 3))
        ld = self.flag_issue('f1', vT + 4, 1, vT + 3, sT2)
        self.flag_check('f1', ld, vT + 4, 1)
        self.stamp('f1ok')
        e("s_lshl_b32 s%d, s%d, 18" % (sKV, sH2))
        e("s_lshl_b32 s%d, s%d, 16" % (sT, sW))
        e("s_add_u32 s%d, s%d, s%d" % (sKV, sKV, sT))
        e("s_add_u32 s%d, s%d, %d" % (sKV, sKV, KV_OFF))
        e("s_lshl_b32 s%d, s%d, 6" % (sT, sH2))
        e("s_lshl_b32 s%d, s%d, 2" % (sT + 1, sJ2))
        e("s_add_u32 s%d, s%d, s%d" % (sT, sT, sT + 1))
        e("s_lshl_b32 s%d, s%d, 11" % (sT, sT))
        e("s_add_u32 s%d, s%d, %d" % (sT, sT, QF_OFF))
        for t in range(4):
            e("s_add_u32 s%d, s%d, %d" % (sT + 1, sW, t))
            e("s_and_b32 s%d, s%d, 3" % (sT + 1, sT + 1))
            e("s_lshl_b32 s%d, s%d, 11" % (sT + 1, sT + 1))
            e("s_add_u32 s%d, s%d, s%d" % (sT2 + 1 + t, sT, sT + 1))
        self.kv_loads(0)
        for t in range(4):
            for i in range(2):
                e.vmem("buffer_load_dwordx4 %s, v%d, s[%d:%d], s%d offen offset:%d sc1" % (vr(vQ + 8 * t + 4 * i, 4), vL16, sWS, sWS + 3, sT2 + 1 + t, 1024 * i), 'q%d' % t)
        for kt in range(1, NSETS - 1):
            self.kv_loads(kt)

    def kv_loads(self, kt):
        e = self.e
        base = aKV + 16 * (kt % NSETS)
        e("s_add_u32 s%d, s%d, %d" % (sSX, sKV, kt * 4096))
        for i in range(4):
            e.vmem("buffer_load_dwordx4 %s, v%d, s[%d:%d], s%d offen offset:%d sc1" % (ar(base + 4 * i, 4), vL16, sWS, sWS + 3, sSX, 1024 * i), 'kv%d' % kt)

    def qk(self, i):
        kt, t = i >> 2, i & 3
        S = vS + 16 * (i & 1)
        K = aKV + 16 * (kt % NSETS)
        return ["v_mfma_f32_32x32x16_bf16 %s, %s, %s, 0" % (vr(S, 16), ar(K, 4), vr(vQ + 8 * t, 4)),
                "v_mfma_f32_32x32x16_bf16 %s, %s, %s, %s" % (vr(S, 16), ar(K + 4, 4), vr(vQ + 8 * t + 4, 4), vr(S, 16))]
    def pv(self, i):
        kt, t = i >> 2, i & 3
        P = vP + 8 * (i & 1)
        V = aKV + 16 * (kt % NSETS) + 8
        O = vO + 16 * t
        return ["v_mfma_f32_32x32x16_bf16 %s, %s, %s, %s" % (vr(O, 16), ar(V, 4), vr(P, 4), "0" if kt == 0 else vr(O, 16)),
                "v_mfma_f32_32x32x16_bf16 %s, %s, %s, %s" % (vr(O, 16), ar(V + 4, 4), vr(P + 4, 4), vr(O, 16))]

    def attention(self):
        e = self.e
        e.c("---- attention ----")
        e.vm_wait('kv0', 'q0')
        for m in self.qk(0): e(m)
        e("s_nop 10")
        extras = self.attn_extras()
        N = 64
        for i in range(N):
            kt, t = i >> 2, i & 3
            S = vS + 16 * (i & 1)
            P = vP + 8 * (i & 1)
            if self.o.get('fine') and i in (4, 8, 12, 16, 20, 24, 28, 32, 36, 40, 48, 52, 56, 60): self.stamp('s%d' % i)
            if i < 3: e.vm_wait('q%d' % (i + 1))
            if t == 3 and kt + 1 < 16: e.vm_wait('kv%d' % (kt + 1))
            mq = self.qk(i + 1) if i + 1 < N else [None, None]
            mp = self.pv(i - 1) if i > 0 else [None, None]
            ex = lambda r: e("v_exp_f32 v%d, v%d" % (S + r, S + r))
            cv = lambda c: e("v_cvt_pk_bf16_f32 v%d, v%d, v%d" % (P + c, S + 2 * c, S + 2 * c + 1))
            def grp(g, m, seq, fill=()):
                if m: e(m)
                for f in fill: f()
                for s in seq:
                    (ex if s[0] == 'e' else cv)(s[1])
            fill = list(extras.get(i, []))
            late = []
            if t == 1 and kt + NSETS - 1 < 16:
                late = [lambda kt=kt: self.kv_loads(kt + NSETS - 1)]
            grp(0, mq[0], [('e', 0), ('e', 1), ('e', 2), ('e', 3), ('c', 0)], fill)
            grp(1, mq[1], [('e', 4), ('e', 5), ('c', 1), ('e', 6), ('e', 7), ('c', 2)], late)
            grp(2, mp[0], [('e', 8), ('e', 9), ('c', 3), ('e', 10), ('e', 11), ('c', 4)])
            grp(3, mp[1], [('e', 12), ('e', 13), ('c', 5), ('e', 14), ('e', 15), ('c', 6), ('c', 7)])
        e("s_nop 0")
        for m in self.pv(N - 1): e(m)

    def wo_loads(self, branch, ks0, n, areg):
        e = self.e
        for ks in range(ks0, ks0 + n):
            if (ks - ks0) % 4 == 0:
                e("s_add_u32 s%d, s%d, %d" % (sT2 + 6, sT2 + 5, branch * 512 * 1024 + ks * 1024))
            e.vmem("buffer_load_dwordx4 %s, v%d, s[%d:%d], s%d offen offset:%d sc1" % (ar(areg + 4 * (ks - ks0), 4), vL16, sWS, sWS + 3, sT2 + 6, ((ks - ks0) % 4) * 1024), 'wo%d' % branch)

    def attn_extras(self):
        e = self.e
        X = {}
        def add(slot, f): X.setdefault(slot, []).append(f)
        st = {}
        FA = 80
        def all_loads(em, track):
            l1 = "buffer_load_dwordx2 v[82:83], v80, s[%d:%d], s%d offen sc1" % (sWS, sWS + 3, sT2 + 7)
            l2 = "buffer_load_dwordx4 v[84:87], v%d, s[%d:%d], s%d offen sc1" % (vL16, sWS, sWS + 3, sT2 + 8)
            l3 = "buffer_load_dwordx4 v[88:91], v%d, s[%d:%d], s%d offen offset:1024 sc1" % (vL16, sWS, sWS + 3, sT2 + 8)
            for l in (l1, l2, l3):
                if track: em.vmem(l, 'fall')
                else: em(l)
        def all_cmp(em):
            for r in range(82, 92):
                em("v_xor_b32 v%d, s%d, v%d" % (r, sNONCE, r))
            em("v_or3_b32 v82, v82, v83, v84")
            em("v_or3_b32 v85, v85, v86, v87")
            em("v_or3_b32 v88, v88, v89, v90")
            em("v_or3_b32 v82, v82, v85, v88")
            em("v_or_b32 v82, v82, v91")
            em("v_cmp_ne_u32 vcc, 0, v82")
            em("s_nop 1")
        def all_issue():
            e("v_lshrrev_b32 v80, 3, v0")
            e("v_lshlrev_b32 v80, 7, v80")
            e("v_and_b32 v81, 7, v0")
            e("v_lshl_add_u32 v80, v81, 3, v80")
            e("s_mov_b32 s%d, %d" % (sT2 + 7, F1_OFF))
            e("s_mov_b32 s%d, %d" % (sT2 + 8, F2_OFF))
            all_loads(e, True)
        add(7, all_issue)
        def all_check():
            e.vm_wait('fall')
            all_cmp(e)
            back = self.lab('back_all'); L = self.lab('spin_all')
            o = self.ool
            o.label(L)
            o("s_mov_b32 s%d, 0x8000" % sCNT)
            o.label(L + "_loop")
            all_loads(o, False)
            o("s_waitcnt vmcnt(0)")
            all_cmp(o)
            o("s_cbranch_vccz %s" % back)
            o("s_sub_u32 s%d, s%d, 1" % (sCNT, sCNT))
            o("s_cmp_lg_u32 s%d, 0" % sCNT)
            o("s_cbranch_scc1 %s_loop" % L)
            o("s_branch %s" % back)
            e("s_cbranch_vccnz %s" % L)
            e.label(back)
            e("s_bfe_u32 s%d, s2, 0x20003" % (sT2 + 5))
            e("s_lshl_b32 s%d, s%d, 2" % (sT2 + 5, sT2 + 5))
            e("s_add_u32 s%d, s%d, s%d" % (sT2 + 5, sT2 + 5, sW))
            e("s_lshl_b32 s%d, s%d, 15" % (sT2 + 5, sT2 + 5))
            e("s_add_u32 s%d, s%d, %d" % (sT2 + 5, sT2 + 5, WOF_OFF))
        add(13, all_check)
        for g in range(4):
            add(18 + 4 * g, lambda g=g: self.wo_loads(0, 8 * g, 8, aWOA + 32 * g))
        for g in range(2):
            add(34 + 4 * g, lambda g=g: self.wo_loads(1, 8 * g, 8, aWOB_LO + 32 * g))
        def cond_reducer():
            L = self.lab('nored')
            e("s_lshl_b32 s%d, s%d, 2" % (sT, sROLE))
            e("s_add_u32 s%d, s%d, s%d" % (sT, sT, sW))
            e("s_sub_u32 s%d, s%d, 2" % (sT, sT))
            e("s_cmp_ge_u32 s%d, 2" % sT)
            e("s_cbranch_scc1 %s" % L)
            return L
        def red_b():
            L = cond_reducer()
            e("s_lshl_b32 s%d, s%d, 1" % (sT2 + 9, sHP))
            e("s_add_u32 s%d, s%d, s%d" % (sT2 + 9, sT2 + 9, sT))
            e("s_lshl_b32 s%d, s%d, 17" % (sT + 1, sT2 + 9))
            e("s_lshr_b32 s%d, s%d, 1" % (sT + 2, sJ))
            e("s_lshl_b32 s%d, s%d, 10" % (sT + 2, sT + 2))
            e("s_add_u32 s%d, s%d, s%d" % (sT + 1, sT + 1, sT + 2))
            e("s_and_b32 s%d, s%d, 1" % (sT + 2, sJ))
            e("s_lshl_b32 s%d, s%d, 3" % (sT + 2, sT + 2))
            e("s_add_u32 s%d, s%d, s%d" % (sT + 1, sT + 1, sT + 2))
            e("s_add_u32 s%d, s%d, %d" % (sT + 1, sT + 1, PART_OFF))
            for jj in range(16):
                if jj: e("s_add_u32 s%d, s%d, 8192" % (sT + 1, sT + 1))
                e.vmem("buffer_load_dwordx2 %s, v%d, s[%d:%d], s%d offen sc1" % (vr(vX + 2 * jj, 2), vL16, sWS, sWS + 3, sT + 1), 'red', optional=True)
            e.label(L)
        add(14, red_b)
        def red_c():
            L = cond_reducer()
            e.vm_wait('red', keep=True)
            for jj in range(1, 16):
                e("v_add_f32 v%d, v%d, v%d" % (vX, vX, vX + 2 * jj))
                e("v_add_f32 v%d, v%d, v%d" % (vX + 1, vX + 1, vX + 2 * jj + 1))
            e("v_cvt_pk_bf16_f32 v%d, v%d, v%d" % (vX, vX, vX + 1))
            e("s_lshl_b32 s%d, s%d, 12" % (sT + 1, sT2 + 9))
            e("s_lshr_b32 s%d, s%d, 2" % (sT + 2, sJ))
            e("s_lshl_b32 s%d, s%d, 10" % (sT + 2, sT + 2))
            e("s_add_u32 s%d, s%d, s%d" % (sT + 1, sT + 1, sT + 2))
            e("s_and_b32 s%d, s%d, 3" % (sT + 2, sJ))
            e("s_lshl_b32 s%d, s%d, 2" % (sT + 2, sT + 2))
            e("s_add_u32 s%d, s%d, s%d" % (sT + 1, sT + 1, sT + 2))
            e("s_add_u32 s%d, s%d, %d" % (sT + 1, sT + 1, KVF_OFF))
            e.vmem("buffer_store_dword v%d, v%d, s[%d:%d], s%d offen sc1" % (vX, vL16, sWS, sWS + 3, sT + 1), 'redst', optional=True)
            e.label(L)
        add(21, red_c)
        def red_d():
            L = cond_reducer()
            e.vm_wait('redst', keep=True)
            e("s_lshl_b32 s%d, s%d, 7" % (sT + 1, sT2 + 9))
            e("s_lshl_b32 s%d, s%d, 2" % (sT + 2, sJ))
            e("s_add_u32 s%d, s%d, s%d" % (sT + 1, sT + 1, sT + 2))
            e("s_add_u32 s%d, s%d, %d" % (sT + 1, sT + 1, F3_OFF))
            self.one_lane_store(vT + 6, vT + 7, sT + 1, 'flag')
            e.label(L)
        add(27, red_d)
        def cond_a():
            L = self.lab('noA')
            e("s_cmp_eq_u32 s%d, 0" % sROLE)
            e("s_cbranch_scc1 %s" % L)
            return L
        def f3_issue():
            L = cond_a()
            e("s_lshl_b32 s%d, s%d, 7" % (sT2 + 9, sH1))
            e("s_add_u32 s%d, s%d, %d" % (sT2 + 9, sT2 + 9, F3_OFF))
            e("v_and_b32 v%d, 15, v0" % (vT + 8))
            e("v_lshlrev_b32 v%d, 2, v%d" % (vT + 8, vT + 8))
            st['f3'] = self.flag_issue('f3', vT + 9, 1, vT + 8, sT2 + 9, optional=True)
            e.label(L)
        add(31, f3_issue)
        def f3_check():
            L = cond_a()
            self.flag_check('f3', st['f3'], vT + 9, 1, keep=True)
            e("s_lshl_b32 s%d, s%d, 12" % (sT, sH1))
            e("s_add_u32 s%d, s%d, %d" % (sT, sT, KVF_OFF))
            for i in range(4):
                e.vmem("buffer_load_dwordx4 %s, v%d, s[%d:%d], s%d offen offset:%d sc1" % (vr(vX + 4 * i, 4), vL16, sWS, sWS + 3, sT, 1024 * i), 'kvf', optional=True)
            e.label(L)
        add(37, f3_check)
        D = vX + 16
        def a2_mm(t):
            def f():
                L = cond_a()
                if t == 0: e.vm_wait('kvf', keep=True)
                for i in range(4):
                    e("v_mfma_f32_32x32x16_bf16 %s, %s, %s, %s" % (vr(D, 16), vr(vX + 4 * i, 4), vr(vPQ + 16 * t + 4 * i, 4), "0" if i == 0 else vr(D, 16)))
                e.label(L)
            return f
        def a2_fin(t):
            def f():
                L = cond_a()
                e("s_lshl_b32 s%d, s%d, 2" % (sT, sJ))
                e("s_lshl_b32 s%d, s%d, 1" % (sT + 1, sTH))
                e("s_add_u32 s%d, s%d, s%d" % (sT, sT, sT + 1))
                e("s_lshl_b32 s%d, s%d, 4" % (sT, sT))
                e("s_add_u32 s%d, s%d, s%d" % (sT, sT, sH1))
                e("s_lshl_b32 s%d, s%d, 11" % (sT, sT))
                e("s_add_u32 s%d, s%d, %d" % (sT + 3, sT, OA_OFF + 32768 * t))
                self.normalize_store(D, 1e-6, sT + 3, 'oa', optional=True)
                e.label(L)
            return f
        add(42, a2_mm(0)); add(43, a2_fin(0)); add(44, a2_mm(1)); add(45, a2_fin(1))
        add(58, lambda: self.o_loads('A', OA_OFF, vX, e, True))
        return X

    def op_tile(self):
        e = self.e
        e("s_lshr_b32 s%d, s2, 5" % (sT2 + 7))
        e("s_lshl_b32 s%d, s%d, 3" % (sT2 + 7, sT2 + 7))
        e("s_and_b32 s%d, s2, 7" % sT)
        e("s_add_u32 s%d, s%d, s%d" % (sT2 + 7, sT2 + 7, sT))

    def o_loads(self, name, off, R, em, track):
        so = (sT2 + 1) if name == 'A' else (sT2 + 3)
        if track:
            e = self.e
            self.op_tile()
            e("s_lshl_b32 s%d, s%d, 15" % (sT, sT2 + 7))
            e("s_lshl_b32 s%d, s%d, 13" % (sT + 1, sW))
            e("s_add_u32 s%d, s%d, s%d" % (sT, sT, sT + 1))
            e("s_add_u32 s%d, s%d, %d" % (so, sT, off))
            e("s_add_u32 s%d, s%d, 4096" % (so + 1, so))
        for i in range(8):
            s = "buffer_load_dwordx4 %s, v%d, s[%d:%d], s%d offen offset:%d sc1" % (vr(R + 4 * i, 4), vL16, sWS, sWS + 3, so + (i // 4), (i % 4) * 1024)
            if track: em.vmem(s, 'o' + name)
            else: em(s)

    def o_check_stage(self, name, off, R, ost):
        e = self.e
        back = self.lab('oback'); loop = self.lab('oloop')
        def check(em):
            em("v_max3_u32 v%d, v%d, v%d, v%d" % (vT + 10, R, R + 1, R + 2))
            for i in range(14):
                em("v_max3_u32 v%d, v%d, v%d, v%d" % (vT + 10, vT + 10, R + 3 + 2 * i, R + 4 + 2 * i))
            em("v_max_u32 v%d, v%d, v%d" % (vT + 10, vT + 10, R + 31))
            em("v_cmp_eq_u32 vcc, -1, v%d" % (vT + 10))
            em("s_nop 1")
        e("s_lshl_b32 s%d, s%d, 13" % (sT + 2, sW))
        e("s_add_u32 s%d, s%d, %d" % (sT + 2, sT + 2, ost))
        e("v_add_u32 v%d, s%d, v%d" % (vT + 11, sT + 2, vL16))
        e.vm_wait('o' + name)
        check(e)
        e("s_cbranch_vccnz %s" % loop)
        e.label(back)
        o = self.ool
        o.label(loop)
        o("s_mov_b32 s%d, 0x8000" % sCNT)
        o.label(loop + "_l")
        self.o_loads(name, off, R, o, False)
        o("s_waitcnt vmcnt(0)")
        check(o)
        o("s_cbranch_vccz %s" % back)
        o("s_sub_u32 s%d, s%d, 1" % (sCNT, sCNT))
        o("s_cmp_lg_u32 s%d, 0" % sCNT)
        o("s_cbranch_scc1 %s_l" % loop)
        o("s_branch %s" % back)
        for i in range(8):
            e.lds("ds_write_b128 v%d, %s offset:%d" % (vT + 11, vr(R + 4 * i, 4), i * 1024), 'ow')

    def combine(self):
        e = self.e
        e.c("---- combine the four key ranges ----")
        t0 = vT
        for t in range(1, 4):
            e("s_add_u32 s%d, s%d, %d" % (sT, sW, t))
            e("s_and_b32 s%d, s%d, 3" % (sT, sT))
            e("s_mul_i32 s%d, s%d, 12288" % (sT, sT))
            e("s_add_u32 s%d, s%d, %d" % (sT, sT, CB + (t - 1) * 4096))
            e("v_add_u32 v%d, s%d, v%d" % (vT + t, sT, vL16))
        e("s_mul_i32 s%d, s%d, 12288" % (sT, sW))
        e("s_add_u32 s%d, s%d, %d" % (sT, sT, CB))
        e("v_add_u32 v%d, s%d, v%d" % (vT + 4, sT, vL16))
        for t in range(1, 4):
            if t == 3: e("s_nop 3")
            for g in range(4):
                e.lds("ds_write_b128 v%d, %s offset:%d" % (vT + t, vr(vO + 16 * t + 4 * g, 4), g * 1024), 'cw')
        e("v_max3_f32 v%d, v%d, v%d, v%d" % (t0, vO + 12, vO + 28, vO + 44))
        e("v_max_f32 v%d, v%d, v%d" % (t0, t0, vO + 60))
        e("v_mov_b32 v%d, 0x%08x" % (vT + 5, f2u(LIMIT)))
        self.upper_only(True)
        e("v_cmp_nle_f32 vcc, v%d, v%d" % (t0, vT + 5))
        self.upper_only(False)
        e("s_nop 0")
        e("s_cmp_lg_u32 vcc_hi, 0")
        e("s_cselect_b32 s%d, 1, 0" % sT)
        e("v_mov_b32 v%d, s%d" % (vT + 5, sT))
        e("s_lshl_b32 s%d, s%d, 2" % (sT + 1, sW))
        e("s_add_u32 s%d, s%d, %d" % (sT + 1, sT + 1, VERD))
        e("v_mov_b32 v%d, s%d" % (vT + 6, sT + 1))
        e.lds("ds_write_b32 v%d, v%d" % (vT + 6, vT + 5), 'cw')
        for g in range(2): self.wo_loads(1, 16 + 8 * g, 8, aWOB_HI + 32 * g)
        self.o_check_stage('A', OA_OFF, vX, OST_A)
        e.lg_drain()
        e("s_barrier")
        R = vS
        for idx in range(3):
            for g in range(4):
                e.lds("ds_read_b128 %s, v%d offset:%d" % (vr(R + 16 * idx + 4 * g, 4), vT + 4, idx * 4096 + g * 1024), 'cr%d' % idx)
        e("v_mov_b32 v%d, %d" % (vT + 6, VERD))
        e.lds("ds_read_b128 %s, v%d" % (vr(vT, 4), vT + 6), 'verd')
        for idx in range(3):
            e.lg_wait('cr%d' % idx)
            for i in range(8):
                e("v_pk_add_f32 %s, %s, %s" % (vr(vO + 2 * i, 2), vr(vO + 2 * i, 2), vr(R + 16 * idx + 2 * i, 2)))
        e.lg_wait('verd')
        e("v_or3_b32 v%d, v%d, v%d, v%d" % (vT, vT, vT + 1, vT + 2))
        e("v_or_b32 v%d, v%d, v%d" % (vT, vT, vT + 3))
        e("s_nop 0")
        e("v_readfirstlane_b32 s%d, v%d" % (sT, vT))
        e("s_nop 0")
        e("s_cmp_lg_u32 s%d, 0" % sT)
        e("s_cbranch_scc1 L_fallback")
        e.label("L_fallback_done")
        e("s_lshl_b32 s%d, s%d, 2" % (sT, sJ2))
        e("s_add_u32 s%d, s%d, s%d" % (sT, sT, sW))
        e("s_lshl_b32 s%d, s%d, 4" % (sT, sT))
        e("s_add_u32 s%d, s%d, s%d" % (sT, sT, sH2))
        e("s_lshl_b32 s%d, s%d, 11" % (sT, sT))
        e("s_add_u32 s%d, s%d, %d" % (sT, sT, OB_OFF))
        self.normalize_store(vO, 0.0, sT, 'ob')

    def normalize_store(self, O, eps, soff, tag, optional=False):
        e = self.e
        t, u = vT, vT + 1
        e("v_mov_b32 v%d, v%d" % (t, O + 12))
        e("v_mov_b32 v%d, v%d" % (u, O + 12))
        e("s_nop 1")
        e("v_permlane32_swap_b32 v%d, v%d" % (t, u))
        if eps:
            e("v_add_f32 v%d, 0x%08x, v%d" % (u, f2u(eps), u))
        e("v_rcp_f32 v%d, v%d" % (vT + 2, u))
        e("s_nop 0")
        for i in range(8):
            e("v_pk_mul_f32 %s, %s, %s op_sel_hi:[1,0]" % (vr(O + 2 * i, 2), vr(O + 2 * i, 2), vr(vT + 2, 2)))
        for i in range(8):
            e("v_cvt_pk_bf16_f32 v%d, v%d, v%d" % (O + i, O + 2 * i, O + 2 * i + 1))
        self.upper_only(True)
        e("v_mov_b32 v%d, 0" % (O + 6))
        e("v_mov_b32 v%d, 0" % (O + 7))
        self.upper_only(False)
        e.vmem("buffer_store_dwordx4 %s, v%d, s[%d:%d], s%d offen sc1" % (vr(O, 4), vL16, sWS, sWS + 3, soff), tag, optional=optional)
        e.vmem("buffer_store_dwordx4 %s, v%d, s[%d:%d], s%d offen offset:1024 sc1" % (vr(O + 4, 4), vL16, sWS, sWS + 3, soff), tag, optional=optional)

    def outproj(self, name, ost, wreg, colbase, wtag, mid=None):
        e = self.e
        e.c("---- output projection %s ----" % name)
        R = vS
        e("v_add_u32 v%d, %d, v%d" % (vT + 2, ost, vL16))
        e.vm_wait(wtag)
        D = vO + 48
        NB = 8
        def rd(ks):
            e.lds("ds_read_b128 %s, v%d offset:%d" % (vr(R + 4 * (ks % NB), 4), vT + 2, ks * 1024), 'of%d' % ks)
        for ks in range(NB - 1): rd(ks)
        for ks in range(32):
            e.lg_wait('of%d' % ks)
            e("v_mfma_f32_32x32x16_bf16 %s, %s, %s, %s" % (vr(D, 16), ar(wreg(ks), 4), vr(R + 4 * (ks % NB), 4), "0" if ks == 0 else vr(D, 16)))
            if ks + NB - 1 < 32: rd(ks + NB - 1)
        if mid: mid()
        self.op_tile()
        e("v_and_b32 v%d, 31, v0" % vT)
        e("s_lshl_b32 s%d, s%d, 5" % (sT, sT2 + 7))
        e("v_add_u32 v%d, s%d, v%d" % (vT, sT, vT))
        e("v_mul_u32_u24 v%d, 1792, v%d" % (vT, vT))
        e("v_lshrrev_b32 v%d, 5, v0" % (vT + 1))
        e("v_lshl_add_u32 v%d, v%d, 3, v%d" % (vT, vT + 1, vT))
        e("s_bfe_u32 s%d, s2, 0x20003" % sT)
        e("s_lshl_b32 s%d, s%d, 2" % (sT, sT))
        e("s_add_u32 s%d, s%d, s%d" % (sT, sT, sW))
        e("s_mul_i32 s%d, s%d, 56" % (sT, sT))
        e("s_add_u32 s%d, s%d, %d" % (sT, sT, colbase * 2))
        for i in range(8):
            e("v_cvt_pk_bf16_f32 v%d, v%d, v%d" % (D + i, D + 2 * i, D + 2 * i + 1))
        for g in range(4):
            if g == 3: e("s_mov_b32 exec_hi, 0")
            e.vmem("buffer_store_dwordx2 %s, v%d, s[%d:%d], s%d offen offset:%d" % (vr(D + 2 * g, 2), vT, sOUT, sOUT + 3, sT, 16 * g), 'out')
        e("s_mov_b32 exec_hi, -1")

    def fallback(self):
        o = self.ool
        o.label("L_fallback")
        o("s_branch L_fallback_done")

    def finish(self):
        e = self.e
        L = self.lab('gen')
        e("s_cmp_lg_u32 s2, 0")
        e("s_cbranch_scc1 %s" % L)
        e("s_cmp_lg_u32 s%d, 0" % sW)
        e("s_cbranch_scc1 %s" % L)
        e("v_mov_b32 v%d, s%d" % (vT + 7, sNONCE))
        e("v_mov_b32 v%d, %d" % (vT + 6, G_OFF))
        e("s_mov_b64 exec, 1")
        e.vmem("buffer_store_dword v%d, v%d, s[%d:%d], 0 offen" % (vT + 7, vT + 6, sWS, sWS + 3), 'gen', optional=True)
        e("s_mov_b64 exec, -1")
        e.label(L)
        if self.o.get('stamps'):
            self.stamp('end')
            e("s_lshl_b32 s%d, s2, 2" % sT)
            e("s_add_u32 s%d, s%d, s%d" % (sT, sT, sW))
            e("s_lshl_b32 s%d, s%d, 8" % (sT, sT))
            e("s_add_u32 s%d, s%d, %d" % (sT, sT, STAMP_OFF))
            e("v_lshlrev_b32 v%d, 2, v0" % vT)
            e.vmem("buffer_store_dword v15, v%d, s[%d:%d], s%d offen" % (vT, sWS, sWS + 3, sT), 'st')
            if self.o.get('dbg'):
                L = self.lab('dbg')
                e("s_cmp_lg_u32 s%d, 0" % sW)
                e("s_cbranch_scc1 %s" % L)
                e("s_mov_b32 s%d, s20" % sWO)
                e("s_and_b32 s%d, s21, 0xffff" % (sWO + 1))
                e("s_mov_b32 s%d, 256" % (sWO + 2))
                e("s_mov_b32 s%d, 0x20000" % (sWO + 3))
                e("v_not_b32 v%d, v15" % (vT + 1))
                e("v_cmp_eq_u32 vcc, 0, v0")
                e("s_nop 1")
                e("v_cndmask_b32 v%d, v15, v%d, vcc" % (vT + 1, vT + 1))
                e("s_mov_b32 exec_lo, 0xffff")
                e("s_mov_b32 exec_hi, 0")
                e.vmem("buffer_atomic_umax v%d, v%d, s[%d:%d], 0 offen sc1" % (vT + 1, vT, sWO, sWO + 3), 'dbg', optional=True)
                e("s_mov_b64 exec, -1")
                e.label(L)

    def build(self):
        e = self.e
        self.prologue()
        self.stamp('pro')
        def top0():
            e("s_mul_i32 s%d, s%d, 0x9E3779B1" % (sNONCE, sNONCE))
            e("s_add_u32 s%d, s%d, 0x7F4A7C15" % (sNONCE, sNONCE))
        for hc in range(14):
            tops = {0: top0, 7: self.merge_wphi, 8: self.chore_issue, 12: self.chore_store}
            self.body(hc, top=tops.get(hc))
            if hc in (0, 6) and not self.o.get('fine'): self.stamp('hc%d' % hc)
        e.lg_wait('f13_0')
        for m in self.mfmas(13, 0): m()
        e.lg_wait('f13_1')
        for m in self.mfmas(13, 1): m()
        e("s_nop 7")
        self.stamp('gemm')
        e("s_cmp_eq_u32 s%d, 0" % sROLE)
        e("s_cbranch_scc0 L_roleA")
        n0 = self.nstamp
        vm0, lg0 = list(e.vm), list(e.lg)
        self.b_epilogue()
        self.stamp('kvA')
        n1 = self.nstamp
        e("s_branch L_roles_done")
        e.label("L_roleA")
        e.vm, e.lg = vm0, lg0
        names = list(self.stamp_names)
        self.nstamp = n0
        self.a_epilogue()
        self.stamp_names = names
        self.nstamp = n1
        e.label("L_roles_done")
        e.vm, e.lg = [], []
        e("s_waitcnt lgkmcnt(0)")
        e("s_barrier")
        self.attn_prologue()
        self.stamp('apro')
        self.attention()
        self.stamp('attn')
        self.combine()
        self.stamp('comb')
        self.outproj('A', OST_A, lambda ks: aWOA + 4 * ks, 0, 'wo0', mid=lambda: self.o_loads('B', OB_OFF, vX, self.e, True))
        self.stamp('opa')
        self.o_check_stage('B', OB_OFF, vX, OST_B)
        self.e.lg_drain()
        self.e("s_barrier")
        self.stamp('oB_in')
        self.outproj('B', OST_B, lambda ks: (aWOB_LO + 4 * ks) if ks < 16 else (aWOB_HI + 4 * (ks - 16)), 448, 'wo1')
        self.finish()
        self.fallback()

    def text(self):
        self.build()
        hdr = open(os.path.join(os.path.dirname(os.path.abspath(__file__)), '..', 'cdna_kernels', NAME + '.s.ref')).read().split('\n')
        top = [l for l in hdr if l.startswith(';') and '@launch' not in l and 'Override launch' not in l and 'grid=ceil' not in l]
        out = '\n'.join(top) + '\n'
        out += "; @launch grid=(256,1,1) block=(256,1,1) lds=%d\n" % LDS_SIZE
        out += '.amdgcn_target "amdgcn-amd-amdhsa--gfx950"\n.text\n.globl %s_kernel\n.p2align 8\n.type %s_kernel,@function\n%s_kernel:\n' % (NAME, NAME, NAME)
        out += self.e.text()
        out += "L_end:\n  s_endpgm\n"
        out += self.ool.text()
        out += "L_codeend:\n  s_endpgm\n"
        out += """.section .rodata,"a"
.p2align 6
.amdhsa_kernel %s_kernel
  .amdhsa_next_free_vgpr 512
  .amdhsa_next_free_sgpr 102
  .amdhsa_accum_offset 256
  .amdhsa_group_segment_fixed_size 0
  .amdhsa_kernarg_size 80
  .amdhsa_user_sgpr_count 2
  .amdhsa_user_sgpr_kernarg_segment_ptr 1
  .amdhsa_system_sgpr_workgroup_id_x 1
.end_amdhsa_kernel
""" % NAME
        return out

if __name__ == '__main__':
    import argparse, hazard
    ap = argparse.ArgumentParser()
    ap.add_argument('-o', default=os.path.join(os.path.dirname(os.path.abspath(__file__)), '..', 'cdna_kernels', NAME + '.s'))
    ap.add_argument('--stamps', action='store_true')
    ap.add_argument('--fine', action='store_true')
    ap.add_argument('--warm', action='store_true')
    ap.add_argument('--dbg', action='store_true')
    a = ap.parse_args()
    g = Gen(dict(stamps=a.stamps, fine=a.fine, warm=a.warm, dbg=a.dbg))
    t = g.text()
    open(a.o, 'w').write(t)
    if a.stamps:
        open(a.o + '.stamps', 'w').write('\n'.join(g.stamp_names))
    body = t.split('_kernel:\n')[1].split('.section')[0]
    probs = hazard.check(body.split('\n'))
    for p in probs[:60]: print(p)
    print(len(probs), "hazard problems;", len(t), "bytes,", body.count('\n'), "lines")
```

```python
import sys, os, math, struct
sys.path.insert(0, os.path.dirname(os.path.abspath(__file__)))
from core import *

NAME = "concat_heads__linear_kernel_hedgehog__mha_block__prompt"

def f2u(x):
    return struct.unpack('<I', struct.pack('<f', x))[0]

G_OFF, F0_OFF, F1_OFF, F2_OFF, F3_OFF = 0, 0x1000, 0x2000, 0x3000, 0x4000
KVF_OFF = 0x10000
KV_OFF, PART_OFF, OA_OFF, OB_OFF, WOF_OFF, QF_OFF = 0x100000, 0x500000, 0x700000, 0x900000, 0xB00000, 0xC00000
STAMP_OFF, WS_SIZE = 0xE00000, 0xE80000
XS, WBASE, WS_ = 16384, 65536, 12288
PHI, VX = 0, 36864
CB, VERD, OST_B, OST_A = 0, 49152, 53248, 86016
MX = 49664
LDS_SIZE = 151552
sX, sWt, sPH, sWO, sWS, sOUT, sPC = 24, 28, 32, 36, 40, 44, 48
sROLE, sHP, sJ, sW, sNONCE = 52, 53, 54, 55, 56
sH2, sJ2, sTH, sHD = 57, 58, 59, 60
sXROW, sWROW, sLX, sLW, sSX, sSW = 61, 62, 63, 64, 65, 66
sC = 68
sL2E, sNL2E = 70, 71
sT = 72
sKV, sCNT = 80, 81
sT2 = 82
sH1 = 92
sL16W = 93
vL16 = 1
vXD, vWD, vXR, vWR = 2, 6, 9, 13
vT = 16
vF = 32
vACC = 112
vPH, vRAW = 208, 216
vPQ = 224
vS, vP, vO, vQ = 32, 64, 96, 160
vX = 192
vCH = 216
NSETS = 4
aKV, aWOB_LO, aWOB_HI, aWOA = 0, 64, 0, 128

SCALE = (28.0 ** -0.5) * math.log2(math.e)
OFFS = 64.0
LIMIT = 2.0 ** 90

def acc(t, ty): return vACC + 48 * t + 16 * ty

class Gen:
    def __init__(self, opt):
        self.o = opt
        self.e = Em()
        self.ool = Em()
        self.nlab = 0
        self.nstamp = 0
        self.stamp_names = []
    def lab(self, p):
        self.nlab += 1
        return "L_%s_%d" % (p, self.nlab)
    def stamp(self, name, k=None):
        if not self.o.get('stamps'):
            return
        e = self.e
        if k is None:
            k = self.nstamp
            self.nstamp += 1
            self.stamp_names.append(name)
        e("s_memrealtime s[94:95]")
        e("s_memtime s[96:97]")
        e("s_waitcnt lgkmcnt(0)")
        e.lg = []
        e("v_writelane_b32 v15, s94, %d" % k)
        e("v_writelane_b32 v8, s96, %d" % k) if False else None
        e("v_writelane_b32 v15, s96, %d" % (32 + k))
        return k

    def srd(self, s, p, n, bias=0):
        e = self.e
        if bias:
            e("s_sub_u32 s%d, s%d, %d" % (s, p, bias))
            e("s_subb_u32 s%d, s%d, 0" % (s + 1, p + 1))
            e("s_and_b32 s%d, s%d, 0xffff" % (s + 1, s + 1))
        else:
            e("s_mov_b32 s%d, s%d" % (s, p))
            e("s_and_b32 s%d, s%d, 0xffff" % (s + 1, p + 1))
        e("s_mov_b32 s%d, %d" % (s + 2, n + bias))
        e("s_mov_b32 s%d, 0x20000" % (s + 3))

    def prologue(self):
        e = self.e
        e("s_getpc_b64 s[%d:%d]" % (sPC, sPC + 1))
        e.label("L_pc")
        e("s_load_dwordx16 s[4:19], s[0:1], 0")
        e("s_load_dwordx4 s[20:23], s[0:1], 64")
        e("s_cmp_ge_u32 s2, 256")
        e("s_cbranch_scc1 L_end")
        e("s_mov_b32 s%d, L_codeend-L_pc" % (sPC + 2))
        e("s_mov_b32 s%d, 0x20000" % (sPC + 3))
        e("v_lshlrev_b32 v%d, 7, v0" % vT)
        e("v_lshrrev_b32 v%d, 6, v0" % (vT + 1))
        e.vmem("buffer_load_dword v%d, v%d, s[%d:%d], 0 offen" % (vT + 2, vT, sPC, sPC + 3), 'pf')
        e("v_readfirstlane_b32 s%d, v%d" % (sW, vT + 1))
        e("v_and_b32 v0, 63, v0")
        e("v_mov_b32 v%d, 0" % (vT + 8))
        if self.o.get('stamps'):
            e("v_mov_b32 v15, 0")
            self.stamp('start')
        e("s_and_b32 s%d, s2, 7" % sT)
        e("s_lshr_b32 s%d, s2, 3" % (sT + 1))
        e("s_and_b32 s%d, s%d, 1" % (sROLE, sT + 1))
        e("s_lshr_b32 s%d, s%d, 1" % (sT + 3, sT + 1))
        e("s_and_b32 s%d, s%d, 1" % (sHP, sT))
        e("s_lshl_b32 s%d, s%d, 2" % (sHP, sHP))
        e("s_and_b32 s%d, s%d, 3" % (sT + 2, sT + 3))
        e("s_add_u32 s%d, s%d, s%d" % (sHP, sHP, sT + 2))
        e("s_lshr_b32 s%d, s%d, 1" % (sJ, sT))
        e("s_lshl_b32 s%d, s%d, 2" % (sJ, sJ))
        e("s_lshr_b32 s%d, s%d, 2" % (sT + 2, sT + 3))
        e("s_add_u32 s%d, s%d, s%d" % (sJ, sJ, sT + 2))
        e("s_lshl_b32 s%d, s%d, 1" % (sH2, sT))
        e("s_and_b32 s%d, s%d, 1" % (sT + 2, sT + 1))
        e("s_add_u32 s%d, s%d, s%d" % (sH2, sH2, sT + 2))
        e("s_lshr_b32 s%d, s%d, 1" % (sJ2, sT + 1))
        e("s_and_b32 s%d, s%d, 1" % (sTH, sW))
        e("s_lshr_b32 s%d, s%d, 1" % (sHD, sW))
        e("s_lshl_b32 s%d, s%d, 1" % (sH1, sHP))
        e("s_add_u32 s%d, s%d, s%d" % (sH1, sH1, sHD))
        e("s_lshl_b32 s%d, s%d, 2" % (sT, sJ))
        e("s_add_u32 s%d, s%d, s%d" % (sT, sT, sW))
        e("s_mul_i32 s%d, s%d, %d" % (sXROW, sT, 32 * 896))
        e("s_lshl_b32 s%d, s%d, 3" % (sT, sW))
        e("s_mul_i32 s%d, s%d, 2688" % (sWROW, sT))
        e("s_mul_i32 s%d, s%d, 112" % (sT + 1, sHP))
        e("s_add_u32 s%d, s%d, s%d" % (sWROW, sWROW, sT + 1))
        e("s_lshl_b32 s%d, s%d, 12" % (sLX, sW))
        e("s_mul_i32 s%d, s%d, 3072" % (sLW, sW))
        e("s_add_u32 s%d, s%d, %d" % (sLW, sLW, WBASE))
        e("s_lshl_b32 s%d, s%d, 10" % (sL16W, sW))
        t0, t1, t2, t3 = vT + 3, vT + 4, vT + 5, vT + 6
        e("v_lshlrev_b32 v%d, 4, v0" % vL16)
        e("v_lshrrev_b32 v%d, 3, v0" % t0)
        e("v_lshrrev_b32 v%d, 4, v0" % t1)
        e("v_and_b32 v%d, 7, v0" % t2)
        e("v_mul_u32_u24 v%d, 896, v%d" % (vT + 7, t0))
        for i in range(4):
            if i < 2:
                e("v_add_u32 v%d, %d, v%d" % (t3, 4 * i, t1))
                e("v_xor_b32 v%d, v%d, v%d" % (t3, t3, t2))
                e("v_lshl_add_u32 v%d, v%d, 4, v%d" % (vXD + i, t3, vT + 7))
                if i:
                    e("v_add_u32 v%d, %d, v%d" % (vXD + i, 6144 * i, vXD + i))
            else:
                e("v_add_u32 v%d, %d, v%d" % (vXD + i, 2 * 6144, vXD + i - 2))
        e("v_and_b32 v%d, 1, v%d" % (t3, t1))
        e("v_lshlrev_b32 v%d, 2, v%d" % (t3, t3))
        e("v_xor_b32 v%d, v%d, v%d" % (t3, t3, t2))
        e("v_min_u32 v%d, 6, v%d" % (t3, t3))
        e("v_mul_u32_u24 v%d, 2688, v%d" % (t0, t0))
        e("v_lshl_add_u32 v%d, v%d, 4, v%d" % (t0, t3, t0))
        for ty in range(3):
            e("v_add_u32 v%d, %d, v%d" % (vWD + ty, 256 - 128 * ty, t0))
        e("s_waitcnt lgkmcnt(0)")
        e("s_cmp_eq_u32 s%d, 0" % sROLE)
        e("s_cselect_b32 s%d, s12, s4" % sT)
        e("s_cselect_b32 s%d, s13, s5" % (sT + 1))
        e("s_cselect_b32 s%d, s14, s6" % (sT + 2))
        e("s_cselect_b32 s%d, s15, s7" % (sT + 3))
        self.srd(sX, sT, 2048 * 896)
        self.srd(sWt, sT + 2, 448 * 2688, bias=256)
        if self.o.get('warm'): self.input_prefetch()
        self.dma_x(0); self.dma_w(0); self.dma_w(1)
        self.srd(sWS, 22, WS_SIZE)
        e("s_load_dword s%d, s[22:23], %d" % (sNONCE, G_OFF))
        if self.o.get('touch'):
            self.srd(sOUT, 18, 2048 * 896 * 2)
            e("v_lshlrev_b32 v%d, 18, v0" % (vT + 11))
            e("v_lshlrev_b32 v%d, 16, v0" % (vT + 12))
            e.vmem("buffer_load_dword v%d, v%d, s[%d:%d], 0 offen" % (vT + 13, vT + 11, sWS, sWS + 3), 'touch')
            e.vmem("buffer_load_dword v%d, v%d, s[%d:%d], 0 offen" % (vT + 14, vT + 12, sOUT, sOUT + 3), 'touch')
        self.dma_x(1); self.dma_w(2); self.dma_w(3)
        self.dma_x(2); self.dma_w(4); self.dma_w(5)
        self.dma_x(3)
        self.srd(sPH, 8, 16 * 28 * 28 * 2)
        self.srd(sOUT, 18, 2048 * 896 * 2)
        e("v_and_b32 v%d, 31, v0" % t0)
        e("v_lshrrev_b32 v%d, 5, v0" % t1)
        e("v_lshlrev_b32 v%d, 7, v%d" % (t2, t0))
        e("s_lshl_b32 s%d, s%d, 13" % (sT, sTH))
        e("v_add_u32 v%d, s%d, v%d" % (t2, sT, t2))
        e("v_bfe_u32 v%d, v0, 1, 3" % t3)
        e("v_xor_b32 v%d, v%d, v%d" % (t3, t3, t1))
        for s in range(4):
            e("v_xor_b32 v%d, %d, v%d" % (vT + 7, 2 * s, t3))
            e("v_lshl_add_u32 v%d, v%d, 4, v%d" % (vXR + s, vT + 7, t2))
        e("v_bfe_u32 v%d, v0, 4, 1" % t2)
        e("v_lshlrev_b32 v%d, 5, v%d" % (t2, t2))
        e("v_and_b32 v%d, 3, v0" % t3)
        e("v_lshl_add_u32 v%d, v%d, 3, v%d" % (t2, t3, t2))
        e("s_mul_i32 s%d, s%d, 56" % (sT, sHD))
        e("v_add_u32 v%d, s%d, v%d" % (t2, sT, t2))
        e("v_bfe_u32 v%d, v0, 3, 1" % t3)
        e("v_lshlrev_b32 v%d, 6, v%d" % (t3, t3))
        e("v_xor_b32 v%d, v%d, v%d" % (t2, t2, t3))
        e("v_bfe_u32 v%d, v0, 2, 2" % t3)
        e("v_lshl_add_u32 v%d, v%d, 7, v%d" % (t2, t3, t2))
        e("v_mul_u32_u24 v%d, 3072, v%d" % (t3, t1))
        e("v_add_u32 v%d, v%d, v%d" % (t2, t2, t3))
        e("v_add_u32 v%d, %d, v%d" % (vWR, WBASE, t2))
        e("v_add_u32 v%d, %d, v%d" % (vWR + 1, WBASE + 5 * WS_, t2))
        e("s_mov_b32 s%d, 0x%08x" % (sC, f2u(SCALE)))
        e("s_mov_b32 s%d, 0x%08x" % (sC + 1, f2u(SCALE)))
        e("s_mov_b32 s%d, 0x%08x" % (sL2E, f2u(math.log2(math.e))))
        e("s_mov_b32 s%d, 0x%08x" % (sNL2E, f2u(-math.log2(math.e))))
        e("v_min_u32 v%d, 27, v%d" % (t2, t0))
        e("v_mul_u32_u24 v%d, %d, v%d" % (t3, 4 * 28, t1))
        e("v_add_u32 v%d, v%d, v%d" % (t2, t2, t3))
        e("v_lshlrev_b32 v%d, 1, v%d" % (t2, t2))
        e("s_mul_i32 s%d, s%d, 1568" % (sT, sH1))
        for mf in range(2):
            for j in range(8):
                d = 16 * mf + (j & 3) + 8 * (j >> 2)
                e.vmem("buffer_load_ushort v%d, v%d, s[%d:%d], s%d offen offset:%d" % (vRAW + 8 * mf + j, t2, sPH, sPH + 3, sT, d * 56), 'wphi')

    def input_prefetch(self):
        e = self.e
        S = sWO
        e("s_lshl_b32 s%d, s2, 2" % sT)
        e("s_add_u32 s%d, s%d, s%d" % (sT, sT, sW))
        segs = [(14, 448 * 2688), (6, 448 * 2688), (12, 2048 * 896), (4, 2048 * 896), (16, 448 * 896), (10, 448 * 896)]
        start = 0
        L = self.lab('pfdone')
        labs = [self.lab('pfseg') for _ in segs]
        for (p, n), lb in zip(segs, labs):
            cnt = (n + 8191) // 8192
            e("s_cmp_lt_u32 s%d, %d" % (sT, start + cnt))
            e("s_cselect_b32 s%d, 1, 0" % (sT + 1))
            e("s_cbranch_scc0 %s" % lb)
            e("s_mov_b32 s%d, s%d" % (S, p))
            e("s_and_b32 s%d, s%d, 0xffff" % (S + 1, p + 1))
            e("s_mov_b32 s%d, %d" % (S + 2, n))
            e("s_sub_u32 s%d, s%d, %d" % (sT + 2, sT, start))
            e("s_branch %s" % (L + "_go"))
            e.label(lb)
            start += cnt
        e("s_branch %s" % L)
        e.label(L + "_go")
        e("s_mov_b32 s%d, 0x20000" % (S + 3))
        e("s_lshl_b32 s%d, s%d, 13" % (sT + 2, sT + 2))
        e("v_lshlrev_b32 v%d, 7, v0" % (vT + 9))
        e.vmem("buffer_load_dword v%d, v%d, s[%d:%d], s%d offen" % (vT + 10, vT + 9, S, S + 3, sT + 2), 'pf2', optional=True)
        e.label(L)

    def merge_wphi(self):
        e = self.e
        e.vm_wait('wphi')
        for i in range(8):
            e("v_lshl_or_b32 v%d, v%d, 16, v%d" % (vPH + i, vRAW + 2 * i + 1, vRAW + 2 * i))

    def dma_x(self, c):
        e = self.e
        e("s_add_u32 m0, s%d, %d" % (sLX, (c % 4) * XS))
        e("s_add_u32 s%d, s%d, %d" % (sSX, sXROW, c * 128))
        for i in range(4):
            e.vmem("buffer_load_dwordx4 v%d, s[%d:%d], s%d offen offset:%d lds" % (vXD + i, sX, sX + 3, sSX, 1024 * i), 'x%d' % c)
    def dma_w(self, hc):
        e = self.e
        e("s_add_u32 m0, s%d, %d" % (sLW, (hc % 7) * WS_))
        e("s_add_u32 s%d, s%d, %d" % (sSW, sWROW, hc * 32 * 2688))
        for ty in range(3):
            e.vmem("buffer_load_dwordx4 v%d, s[%d:%d], s%d offen offset:%d lds" % (vWD + ty, sWt, sWt + 3, sSW, 1024 * ty), 'w%d' % hc)

    def frag_reads(self, hc, ks):
        e = self.e
        b = 2 * (hc & 1) + ks
        F = vF + 20 * b
        c = hc >> 1
        s = 2 * (hc & 1) + ks
        slot = hc % 7
        wr, rel = (vWR, slot * WS_) if slot < 5 else (vWR + 1, (slot - 5) * WS_)
        tag = 'f%d_%d' % (hc, ks)
        items = []
        for t in range(2):
            items.append(lambda t=t: e.lds("ds_read_b128 %s, v%d offset:%d" % (vr(F + 4 * t, 4), vXR + s, (c % 4) * XS + 4096 * t), tag))
        for ty in range(3):
            for hf in range(2):
                off = rel + ks * 6144 + ty * 1024 + 512 * hf
                items.append(lambda ty=ty, hf=hf, off=off: e.lds("ds_read_b64_tr_b16 %s, v%d offset:%d" % (vr(F + 8 + 4 * ty + 2 * hf, 2), wr, off), tag))
        return items

    def mfmas(self, hc, ks):
        e = self.e
        F = vF + 20 * (2 * (hc & 1) + ks)
        first = (hc == 0 and ks == 0)
        items = []
        for ty in range(3):
            for t in range(2):
                D = vr(acc(t, ty), 16)
                C = "0" if first else D
                if ty < 2:
                    items.append(lambda D=D, C=C, ty=ty, t=t: e("v_mfma_f32_32x32x16_bf16 %s, %s, %s, %s" % (D, vr(F + 8 + 4 * ty, 4), vr(F + 4 * t, 4), C)))
                else:
                    items.append(lambda D=D, C=C, t=t: e("v_mfma_f32_32x32x16_bf16 %s, %s, %s, %s" % (D, vr(F + 4 * t, 4), vr(F + 16, 4), C)))
        return items

    def body(self, hc, top=None):
        e = self.e
        e.c("---- GEMM half chunk %d ----" % hc)
        e.vm_wait('w%d' % hc, 'x%d' % (hc >> 1))
        e.lg_drain()
        e("s_barrier")
        if top: top()
        mf = (self.mfmas(hc - 1, 0) + self.mfmas(hc - 1, 1)) if hc > 0 else []
        rd = self.frag_reads(hc, 0) + self.frag_reads(hc, 1)
        if mf:
            mf.pop(0)()
        if hc + 6 < 14: self.dma_w(hc + 6)
        if hc >= 2 and hc % 2 == 0 and hc // 2 + 3 < 7: self.dma_x(hc // 2 + 3)
        k = 0
        for i, m in enumerate(mf):
            n = 2 if i < 8 else 0
            for r in rd[k:k + n]: r()
            k += n
            m()
        for r in rd[k:]: r()

    def upper_only(self, on):
        self.e("s_mov_b32 exec_lo, %s" % ("0" if on else "-1"))

    def cross_half(self, op, regs):
        e = self.e
        for v, t in regs:
            e("v_mov_b32 v%d, v%d" % (t, v))
        e("s_nop %d" % (1 if len(regs) == 1 else 0))
        for v, t in regs:
            e("v_permlane32_swap_b32 v%d, v%d" % (v, t))
        for (v, t), o in zip(regs, op):
            e("%s v%d, v%d, v%d" % (o, v, v, t))

    def one_lane_store(self, vaddr, vdata, soff_reg, tag):
        e = self.e
        e("v_mov_b32 v%d, s%d" % (vaddr, soff_reg))
        e("v_mov_b32 v%d, s%d" % (vdata, sNONCE))
        e("s_mov_b64 exec, 1")
        e.vmem("buffer_store_dword v%d, v%d, s[%d:%d], 0 offen sc1" % (vdata, vaddr, sWS, sWS + 3), tag, optional=True)
        e("s_mov_b64 exec, -1")

    def b_epilogue(self):
        e = self.e
        e.c("---- B epilogue: pack Q/K/V, stand-in row max, publish ----")
        St = [32, 48]
        for t in range(2):
            q, k, v = acc(t, 0), acc(t, 1), acc(t, 2)
            for i in range(8):
                e("v_pk_mul_f32 %s, %s, s[%d:%d]" % (vr(q + 2 * i, 2), vr(q + 2 * i, 2), sC, sC + 1))
            for i in range(8):
                e("v_cvt_pk_bf16_f32 v%d, v%d, v%d" % (k + i, k + 2 * i, k + 2 * i + 1))
            for i in range(8):
                e("v_cvt_pk_bf16_f32 v%d, v%d, v%d" % (q + i, q + 2 * i, q + 2 * i + 1))
            self.upper_only(True)
            e("v_mov_b32 v%d, 0" % (q + 6))
            e("v_mov_b32 v%d, 0" % (q + 7))
            e("v_mov_b32 v%d, 0x3f80" % (k + 6))
            e("v_mov_b32 v%d, 0" % (k + 7))
            self.upper_only(False)
            for i in range(2):
                e("v_cvt_pk_bf16_f32 v%d, v%d, v%d" % (v + i, v + 2 * i, v + 2 * i + 1))
            e("v_mfma_f32_32x32x16_bf16 %s, %s, %s, 0" % (vr(St[t], 16), vr(k, 4), vr(q, 4)))
            e("v_mfma_f32_32x32x16_bf16 %s, %s, %s, %s" % (vr(St[t], 16), vr(k + 4, 4), vr(q + 4, 4), vr(St[t], 16)))
            for i in range(2, 8):
                e("v_cvt_pk_bf16_f32 v%d, v%d, v%d" % (v + i, v + 2 * i, v + 2 * i + 1))
            e("s_mov_b32 exec_lo, 0x10000000")
            e("s_mov_b32 exec_hi, 0x10000000")
            for i in range(8):
                e("v_mov_b32 v%d, 0x3f803f80" % (v + i))
            e("s_mov_b64 exec, -1")
        e("s_lshl_b32 s%d, s%d, 2" % (sT, sJ))
        e("s_lshl_b32 s%d, s%d, 1" % (sT + 1, sTH))
        e("s_add_u32 s%d, s%d, s%d" % (sT, sT, sT + 1))
        e("s_lshl_b32 s%d, s%d, 6" % (sT + 1, sH1))
        e("s_add_u32 s%d, s%d, s%d" % (sT, sT, sT + 1))
        e("s_lshl_b32 s%d, s%d, 12" % (sT + 2, sT))
        e("s_add_u32 s%d, s%d, %d" % (sT + 2, sT + 2, KV_OFF))
        e("s_add_u32 s%d, s%d, 4096" % (sT + 3, sT + 2))
        e("s_lshl_b32 s%d, s%d, 11" % (sT + 4, sT))
        e("s_add_u32 s%d, s%d, %d" % (sT + 4, sT + 4, QF_OFF))
        for t in range(2):
            k, v = acc(t, 1), acc(t, 2)
            for i, r in enumerate((k, k + 4, v, v + 4)):
                e.vmem("buffer_store_dwordx4 %s, v%d, s[%d:%d], s%d offen offset:%d sc1" % (vr(r, 4), vL16, sWS, sWS + 3, sT + 2 + t, 1024 * i), 'pub')
        ms = [(vT, vT + 1), (vT + 2, vT + 3)]
        for t in range(2):
            m = ms[t][0]
            S = St[t]
            e("v_max3_f32 v%d, v%d, v%d, v%d" % (m, S, S + 1, S + 2))
            for i in range(6):
                e("v_max3_f32 v%d, v%d, v%d, v%d" % (m, m, S + 3 + 2 * i, S + 4 + 2 * i))
            e("v_max_f32 v%d, v%d, v%d" % (m, m, S + 15))
        self.cross_half(["v_max_f32", "v_max_f32"], ms)
        for t in range(2):
            e("v_sub_f32 v%d, 0x%08x, v%d" % (ms[t][0], f2u(-OFFS), ms[t][0]))
        self.upper_only(True)
        for t in range(2):
            e("v_cvt_pk_bf16_f32 v%d, v%d, 0" % (acc(t, 0) + 6, ms[t][0]))
        self.upper_only(False)
        for t in range(2):
            q = acc(t, 0)
            for i in range(2):
                e.vmem("buffer_store_dwordx4 %s, v%d, s[%d:%d], s%d offen offset:%d sc1" % (vr(q + 4 * i, 4), vL16, sWS, sWS + 3, sT + 4, 2048 * t + 1024 * i), 'pub')
        e.vm_drain()
        e("s_barrier")
        L = self.lab('sig1')
        e("s_cmp_lg_u32 s%d, 0" % sW)
        e("s_cbranch_scc1 %s" % L)
        e("s_lshl_b32 s%d, s%d, 7" % (sT, sHP))
        e("s_lshl_b32 s%d, s%d, 2" % (sT + 1, sJ))
        e("s_add_u32 s%d, s%d, s%d" % (sT, sT, sT + 1))
        e("s_add_u32 s%d, s%d, %d" % (sT, sT, F1_OFF))
        self.one_lane_store(vT + 6, vT + 7, sT, 'flag')
        e.label(L)
        self.stamp('pub')

    def chore_issue(self):
        e = self.e
        t0, t1, t2, t3 = vT, vT + 1, vT + 2, vT + 3
        R = vCH
        e("s_lshl_b32 s%d, s2, 2" % sT)
        e("s_add_u32 s%d, s%d, s%d" % (sT, sT, sW))
        e("s_lshr_b32 s%d, s%d, 9" % (sT + 1, sT))
        e("s_cmp_eq_u32 s%d, 0" % (sT + 1))
        e("s_cselect_b32 s%d, s10, s16" % sWO)
        e("s_cselect_b32 s%d, s11, s17" % (sWO + 1))
        e("s_and_b32 s%d, s%d, 0xffff" % (sWO + 1, sWO + 1))
        e("s_mov_b32 s%d, %d" % (sWO + 2, 448 * 896))
        e("s_mov_b32 s%d, 0x20000" % (sWO + 3))
        e("s_bfe_u32 s%d, s%d, 0x40005" % (sT + 1, sT))
        e("s_bfe_u32 s%d, s%d, 0x40001" % (sT + 2, sT))
        e("s_and_b32 s%d, s%d, 1" % (sT + 3, sT))
        e("s_mul_i32 s%d, s%d, 28" % (sT + 2, sT + 2))
        e("s_lshl_b32 s%d, s%d, 4" % (sT + 4, sT + 3))
        e("s_add_u32 s%d, s%d, s%d" % (sT + 2, sT + 2, sT + 4))
        e("s_mul_i32 s%d, s%d, 896" % (sT + 2, sT + 2))
        e("s_mul_i32 s%d, s%d, 56" % (sT + 1, sT + 1))
        e("s_add_u32 s%d, s%d, s%d" % (sT + 2, sT + 2, sT + 1))
        e("s_lshl_b32 s%d, s%d, 30" % (sT + 3, sT + 3))
        e("v_and_b32 v%d, 31, v0" % t0)
        e("v_lshrrev_b32 v%d, 5, v0" % t1)
        e("v_mul_u32_u24 v%d, %d, v%d" % (t2, 4 * 896, t1))
        e("v_lshl_add_u32 v%d, v%d, 1, v%d" % (t2, t0, t2))
        e("v_mul_lo_u32 v%d, v%d, s%d" % (t3, t1, sT + 3))
        e("v_add_u32 v%d, v%d, v%d" % (t3, t3, t2))
        e("v_add_u32 v%d, %d, v%d" % (t3, 8 * 896, t3))
        for k in range(4):
            e("v_mov_b32 v%d, -1" % (vT + 4 + k))
        e("s_lshl_b32 s%d, s%d, 12" % (sT + 4, sT))
        e("s_add_u32 s%d, s%d, %d" % (sT + 4, sT + 4, OA_OFF))
        for j in range(8):
            e.vmem("buffer_load_ushort v%d, v%d, s[%d:%d], s%d offen offset:%d" % (R + j, t2 if j < 4 else t3, sWO, sWO + 3, sT + 2, (j & 3) * 896), 'wog')
        for i in range(4):
            e.vmem("buffer_store_dwordx4 v[%d:%d], v%d, s[%d:%d], s%d offen offset:%d sc1" % (vT + 4, vT + 7, vL16, sWS, sWS + 3, sT + 4, i * 1024), 'chst')

    def chore_store(self):
        e = self.e
        R = vCH
        e.vm_wait('wog')
        for i in range(4):
            e("v_lshl_or_b32 v%d, v%d, 16, v%d" % (R + i, R + 2 * i + 1, R + 2 * i))
        e("s_lshl_b32 s%d, s2, 2" % sT)
        e("s_add_u32 s%d, s%d, s%d" % (sT, sT, sW))
        e("s_lshl_b32 s%d, s%d, 10" % (sT, sT))
        e("s_add_u32 s%d, s%d, %d" % (sT, sT, WOF_OFF))
        e.vmem("buffer_store_dwordx4 %s, v%d, s[%d:%d], s%d offen sc1" % (vr(R, 4), vL16, sWS, sWS + 3, sT), 'chst')

    def features(self, a, outp, outn):
        e = self.e
        X, Pm, Ep, En = 32, 40, 56, 72
        mx, mn, t0, t1, ap, an = 88, 89, 90, 91, 92, 93
        for i in range(8):
            e("v_cvt_pk_bf16_f32 v%d, v%d, v%d" % (X + i, a + 2 * i, a + 2 * i + 1))
        self.upper_only(True)
        e("v_mov_b32 v%d, 0" % (X + 6))
        e("v_mov_b32 v%d, 0" % (X + 7))
        self.upper_only(False)
        e("s_nop 0")
        e("v_mfma_f32_32x32x16_bf16 %s, %s, %s, 0" % (vr(Pm, 16), vr(vPH, 4), vr(X, 4)))
        e("v_mfma_f32_32x32x16_bf16 %s, %s, %s, %s" % (vr(Pm, 16), vr(vPH + 4, 4), vr(X + 4, 4), vr(Pm, 16)))
        e("s_nop 11")
        for op, r in (("v_max3_f32", mx), ("v_min3_f32", mn)):
            e("%s v%d, v%d, v%d, v%d" % (op, r, Pm, Pm + 1, Pm + 2))
            for i in range(6):
                e("%s v%d, v%d, v%d, v%d" % (op, r, r, Pm + 3 + 2 * i, Pm + 4 + 2 * i))
            e("%s v%d, v%d, v%d" % (op.replace('3_', '_'), r, r, Pm + 15))
        self.cross_half(["v_max_f32", "v_min_f32"], [(mx, t0), (mn, t1)])
        e("v_mul_f32 v%d, s%d, v%d" % (ap, sNL2E, mx))
        e("v_mul_f32 v%d, s%d, v%d" % (an, sL2E, mn))
        for r in range(16):
            e("v_fma_f32 v%d, v%d, s%d, v%d" % (Ep + r, Pm + r, sL2E, ap))
            e("v_fma_f32 v%d, -v%d, s%d, v%d" % (En + r, Pm + r, sL2E, an))
        for r in range(16):
            e("v_exp_f32 v%d, v%d" % (Ep + r, Ep + r))
        for r in range(16):
            e("v_exp_f32 v%d, v%d" % (En + r, En + r))
        self.upper_only(True)
        for r in range(12, 16):
            e("v_mov_b32 v%d, 0" % (Ep + r))
            e("v_mov_b32 v%d, 0" % (En + r))
        self.upper_only(False)
        for E, s in ((Ep, mx), (En, mn)):
            A = Pm if E == Ep else Pm + 8
            for i in range(4):
                e("v_pk_add_f32 %s, %s, %s" % (vr(A + 2 * i, 2), vr(E + 4 * i, 2), vr(E + 4 * i + 2, 2)))
            e("v_pk_add_f32 %s, %s, %s" % (vr(A, 2), vr(A, 2), vr(A + 2, 2)))
            e("v_pk_add_f32 %s, %s, %s" % (vr(A + 4, 2), vr(A + 4, 2), vr(A + 6, 2)))
            e("v_pk_add_f32 %s, %s, %s" % (vr(A, 2), vr(A, 2), vr(A + 4, 2)))
            e("v_add_f32 v%d, v%d, v%d" % (s, A, A + 1))
        self.cross_half(["v_add_f32", "v_add_f32"], [(mx, t0), (mn, t1)])
        e("v_rcp_f32 v%d, v%d" % (ap, mx))
        e("v_rcp_f32 v%d, v%d" % (t0, mn))
        e("s_nop 0")
        for i in range(8):
            e("v_pk_mul_f32 %s, %s, %s op_sel_hi:[1,0]" % (vr(Ep + 2 * i, 2), vr(Ep + 2 * i, 2), vr(ap, 2)))
        for i in range(8):
            e("v_pk_mul_f32 %s, %s, %s op_sel_hi:[1,0]" % (vr(En + 2 * i, 2), vr(En + 2 * i, 2), vr(t0, 2)))
        for i in range(8):
            e("v_cvt_pk_bf16_f32 v%d, v%d, v%d" % (outp + i, Ep + 2 * i, Ep + 2 * i + 1))
        for i in range(8):
            e("v_cvt_pk_bf16_f32 v%d, v%d, v%d" % (outn + i, En + 2 * i, En + 2 * i + 1))

    def a_epilogue(self):
        e = self.e
        e.c("---- A epilogue: features ----")
        t0, t1 = vT, vT + 1
        e("s_barrier")
        e("v_and_b32 v%d, 31, v0" % t0)
        e("s_lshl_b32 s%d, s%d, 6" % (sT, sTH))
        e("v_add_u32 v%d, s%d, v%d" % (t0, sT, t0))
        e("v_mul_u32_u24 v%d, 72, v%d" % (t0, t0))
        e("v_lshrrev_b32 v%d, 5, v0" % t1)
        e("v_lshl_add_u32 v%d, v%d, 3, v%d" % (t0, t1, t0))
        e("s_mul_i32 s%d, s%d, %d" % (sT, sHD, 2 * 9216))
        e("v_add_u32 v%d, s%d, v%d" % (t0, sT, t0))
        e("s_lshl_b32 s%d, s%d, 13" % (sT, sHD))
        e("s_lshl_b32 s%d, s%d, 12" % (sT + 1, sTH))
        e("s_add_u32 s%d, s%d, s%d" % (sT, sT, sT + 1))
        e("s_add_u32 s%d, s%d, %d" % (sT, sT, VX))
        e("v_add_u32 v%d, s%d, v%d" % (t1, sT, vL16))
        for t in range(2):
            k, v = acc(t, 1), acc(t, 2)
            self.features(k, k, k + 8)
            for i in range(8):
                e("v_cvt_pk_bf16_f32 v%d, v%d, v%d" % (v + i, v + 2 * i, v + 2 * i + 1))
            e("s_mov_b32 exec_lo, 0x10000000")
            e("s_mov_b32 exec_hi, 0x10000000")
            for i in range(8):
                e("v_mov_b32 v%d, 0x3f803f80" % (v + i))
            e("s_mov_b64 exec, -1")
            for sg in range(2):
                for g in range(4):
                    e.lds("ds_write_b64 v%d, %s offset:%d" % (t0, vr(k + 8 * sg + 2 * g, 2), PHI + sg * 9216 + t * 32 * 72 + 16 * g), 'phi')
            for i in range(2):
                e.lds("ds_write_b128 v%d, %s offset:%d" % (t1, vr(v + 4 * i, 4), 2048 * t + 1024 * i), 'phi')
        e.lg_drain()
        e("s_barrier")
        self.stamp('kfeat')
        e("v_lshrrev_b32 v%d, 5, v0" % t0)
        e("v_lshlrev_b32 v%d, 2, v%d" % (t0, t0))
        e("v_bfe_u32 v%d, v0, 2, 2" % t1)
        e("v_add_u32 v%d, v%d, v%d" % (t0, t0, t1))
        e("v_mul_u32_u24 v%d, 72, v%d" % (t0, t0))
        e("v_bfe_u32 v%d, v0, 4, 1" % t1)
        e("v_lshl_add_u32 v%d, v%d, 5, v%d" % (t0, t1, t0))
        e("v_and_b32 v%d, 3, v0" % t1)
        e("v_lshl_add_u32 v%d, v%d, 3, v%d" % (t0, t1, t0))
        e("s_mul_i32 s%d, s%d, 9216" % (sT, sW))
        e("v_add_u32 v%d, s%d, v%d" % (t0, sT, t0))
        e("s_lshl_b32 s%d, s%d, 13" % (sT, sHD))
        e("s_add_u32 s%d, s%d, %d" % (sT, sT, VX))
        e("v_add_u32 v%d, s%d, v%d" % (t1, sT, vL16))
        A, B, Dk = 32, 64, acc(0, 1)
        def mm(jj):
            e.lg_wait('c%d' % jj)
            e("v_mfma_f32_32x32x16_bf16 %s, %s, %s, %s" % (vr(Dk, 16), vr(A + 4 * jj, 4), vr(B + 4 * jj, 4), "0" if jj == 0 else vr(Dk, 16)))
        for T in range(4):
            for mf in range(2):
                i = 2 * T + mf
                row = 32 * T + 16 * mf
                e.lds("ds_read_b64_tr_b16 %s, v%d offset:%d" % (vr(A + 4 * i, 2), t0, row * 72), 'c%d' % i)
                e.lds("ds_read_b64_tr_b16 %s, v%d offset:%d" % (vr(A + 4 * i + 2, 2), t0, (row + 8) * 72), 'c%d' % i)
                e.lds("ds_read_b128 %s, v%d offset:%d" % (vr(B + 4 * i, 4), t1, i * 1024), 'c%d' % i)
                if i >= 3: mm(i - 3)
        for jj in range(5, 8): mm(jj)
        e("s_lshl_b32 s%d, s%d, 4" % (sT, sH1))
        e("s_add_u32 s%d, s%d, s%d" % (sT, sT, sJ))
        e("s_lshl_b32 s%d, s%d, 13" % (sT, sT))
        e("s_lshl_b32 s%d, s%d, 12" % (sT + 1, sTH))
        e("s_add_u32 s%d, s%d, s%d" % (sT, sT, sT + 1))
        e("s_add_u32 s%d, s%d, %d" % (sT, sT, PART_OFF))
        e("s_nop 7")
        for g in range(4):
            e.vmem("buffer_store_dwordx4 %s, v%d, s[%d:%d], s%d offen offset:%d sc1" % (vr(Dk + 4 * g, 4), vL16, sWS, sWS + 3, sT, g * 1024), 'part')
        self.stamp('kv')
        for t in range(2):
            self.features(acc(t, 0), vPQ + 16 * t, vPQ + 16 * t + 8)
        e.vm_drain()
        e("s_lshl_b32 s%d, s%d, 7" % (sT, sH1))
        e("s_lshl_b32 s%d, s%d, 3" % (sT + 1, sJ))
        e("s_add_u32 s%d, s%d, s%d" % (sT, sT, sT + 1))
        e("s_lshl_b32 s%d, s%d, 2" % (sT + 1, sTH))
        e("s_add_u32 s%d, s%d, s%d" % (sT, sT, sT + 1))
        e("s_add_u32 s%d, s%d, %d" % (sT, sT, F2_OFF))
        self.one_lane_store(vT + 6, vT + 7, sT, 'flag')

    def flag_compare(self, e, regs):
        r = list(regs)
        if len(r) == 1:
            e("v_cmp_ne_u32 vcc, s%d, v%d" % (sNONCE, r[0]))
        else:
            for x in r:
                e("v_xor_b32 v%d, s%d, v%d" % (x, sNONCE, x))
            e("v_or3_b32 v%d, v%d, v%d, v%d" % (r[0], r[0], r[1], r[2]))
            e("v_or_b32 v%d, v%d, v%d" % (r[0], r[0], r[3]))
            e("v_cmp_ne_u32 vcc, 0, v%d" % r[0])
        e("s_nop 1")
    def flag_issue(self, name, dst, n, vaddr, soff, optional=False):
        op = "buffer_load_dwordx4 %s" % vr(dst, 4) if n == 4 else "buffer_load_dword v%d" % dst
        ld = "%s, v%d, s[%d:%d], s%d offen sc1" % (op, vaddr, sWS, sWS + 3, soff)
        self.e.vmem(ld, name, optional=optional)
        return ld
    def flag_check(self, name, ld, dst, n, keep=False):
        e = self.e
        e.vm_wait(name, keep=keep)
        back = self.lab('back_' + name)
        self.flag_compare(e, range(dst, dst + n))
        o = self.ool
        L = self.lab("spin_" + name)
        o.label(L)
        o("s_mov_b32 s%d, 0x8000" % sCNT)
        o.label(L + "_loop")
        o(ld)
        o("s_waitcnt vmcnt(0)")
        self.flag_compare(o, range(dst, dst + n))
        o("s_cbranch_vccz %s" % back)
        o("s_sub_u32 s%d, s%d, 1" % (sCNT, sCNT))
        o("s_cmp_lg_u32 s%d, 0" % sCNT)
        o("s_cbranch_scc1 %s_loop" % L)
        o("s_branch %s" % back)
        e("s_cbranch_vccnz %s" % L)
        e.label(back)

    def attn_prologue(self):
        e = self.e
        e.c("---- attention prologue ----")
        e("s_lshr_b32 s%d, s%d, 1" % (sT, sH2))
        e("s_lshl_b32 s%d, s%d, 7" % (sT2, sT))
        e("s_add_u32 s%d, s%d, %d" % (sT2, sT2, F1_OFF))
        e("v_and_b32 v%d, 15, v0" % (vT + 3))
        e("v_lshlrev_b32 v%d, 2, v%d" % (vT + 3, vT + 3))
        ld = self.flag_issue('f1', vT + 4, 1, vT + 3, sT2)
        self.flag_check('f1', ld, vT + 4, 1)
        self.stamp('f1ok')
        e("s_lshl_b32 s%d, s%d, 18" % (sKV, sH2))
        e("s_lshl_b32 s%d, s%d, 16" % (sT, sW))
        e("s_add_u32 s%d, s%d, s%d" % (sKV, sKV, sT))
        e("s_add_u32 s%d, s%d, %d" % (sKV, sKV, KV_OFF))
        e("s_lshl_b32 s%d, s%d, 6" % (sT, sH2))
        e("s_lshl_b32 s%d, s%d, 2" % (sT + 1, sJ2))
        e("s_add_u32 s%d, s%d, s%d" % (sT, sT, sT + 1))
        e("s_lshl_b32 s%d, s%d, 11" % (sT, sT))
        e("s_add_u32 s%d, s%d, %d" % (sT, sT, QF_OFF))
        for t in range(4):
            e("s_add_u32 s%d, s%d, %d" % (sT + 1, sW, t))
            e("s_and_b32 s%d, s%d, 3" % (sT + 1, sT + 1))
            e("s_lshl_b32 s%d, s%d, 11" % (sT + 1, sT + 1))
            e("s_add_u32 s%d, s%d, s%d" % (sT2 + 1 + t, sT, sT + 1))
        self.kv_loads(0)
        for t in range(4):
            for i in range(2):
                e.vmem("buffer_load_dwordx4 %s, v%d, s[%d:%d], s%d offen offset:%d sc1" % (vr(vQ + 8 * t + 4 * i, 4), vL16, sWS, sWS + 3, sT2 + 1 + t, 1024 * i), 'q%d' % t)
        for kt in range(1, NSETS - 1):
            self.kv_loads(kt)

    def kv_loads(self, kt):
        e = self.e
        base = aKV + 16 * (kt % NSETS)
        e("s_add_u32 s%d, s%d, %d" % (sSX, sKV, kt * 4096))
        for i in range(4):
            e.vmem("buffer_load_dwordx4 %s, v%d, s[%d:%d], s%d offen offset:%d sc1" % (ar(base + 4 * i, 4), vL16, sWS, sWS + 3, sSX, 1024 * i), 'kv%d' % kt)

    def qk(self, i):
        kt, t = i >> 2, i & 3
        S = vS + 16 * (i & 1)
        K = aKV + 16 * (kt % NSETS)
        return ["v_mfma_f32_32x32x16_bf16 %s, %s, %s, 0" % (vr(S, 16), ar(K, 4), vr(vQ + 8 * t, 4)),
                "v_mfma_f32_32x32x16_bf16 %s, %s, %s, %s" % (vr(S, 16), ar(K + 4, 4), vr(vQ + 8 * t + 4, 4), vr(S, 16))]
    def pv(self, i):
        kt, t = i >> 2, i & 3
        P = vP + 8 * (i & 1)
        V = aKV + 16 * (kt % NSETS) + 8
        O = vO + 16 * t
        return ["v_mfma_f32_32x32x16_bf16 %s, %s, %s, %s" % (vr(O, 16), ar(V, 4), vr(P, 4), "0" if kt == 0 else vr(O, 16)),
                "v_mfma_f32_32x32x16_bf16 %s, %s, %s, %s" % (vr(O, 16), ar(V + 4, 4), vr(P + 4, 4), vr(O, 16))]

    def attention(self):
        e = self.e
        e.c("---- attention ----")
        e.vm_wait('kv0', 'q0')
        for m in self.qk(0): e(m)
        e("s_nop 10")
        extras = self.attn_extras()
        N = 64
        for i in range(N):
            kt, t = i >> 2, i & 3
            S = vS + 16 * (i & 1)
            P = vP + 8 * (i & 1)
            if self.o.get('fine') and i in (4, 8, 12, 16, 20, 24, 28, 32, 36, 40, 48, 52, 56, 60): self.stamp('s%d' % i)
            if i < 3: e.vm_wait('q%d' % (i + 1))
            if t == 3 and kt + 1 < 16: e.vm_wait('kv%d' % (kt + 1))
            mq = self.qk(i + 1) if i + 1 < N else [None, None]
            mp = self.pv(i - 1) if i > 0 else [None, None]
            ex = lambda r: e("v_exp_f32 v%d, v%d" % (S + r, S + r))
            cv = lambda c: e("v_cvt_pk_bf16_f32 v%d, v%d, v%d" % (P + c, S + 2 * c, S + 2 * c + 1))
            def grp(g, m, seq, fill=()):
                if m: e(m)
                for f in fill: f()
                for s in seq:
                    (ex if s[0] == 'e' else cv)(s[1])
            fill = list(extras.get(i, []))
            late = []
            if t == 1 and kt + NSETS - 1 < 16:
                late = [lambda kt=kt: self.kv_loads(kt + NSETS - 1)]
            grp(0, mq[0], [('e', 0), ('e', 1), ('e', 2), ('e', 3), ('c', 0)], fill)
            grp(1, mq[1], [('e', 4), ('e', 5), ('c', 1), ('e', 6), ('e', 7), ('c', 2)], late)
            grp(2, mp[0], [('e', 8), ('e', 9), ('c', 3), ('e', 10), ('e', 11), ('c', 4)])
            grp(3, mp[1], [('e', 12), ('e', 13), ('c', 5), ('e', 14), ('e', 15), ('c', 6), ('c', 7)])
        e("s_nop 0")
        for m in self.pv(N - 1): e(m)

    def wo_loads(self, branch, ks0, n, areg):
        e = self.e
        for ks in range(ks0, ks0 + n):
            if (ks - ks0) % 4 == 0:
                e("s_add_u32 s%d, s%d, %d" % (sT2 + 6, sT2 + 5, branch * 512 * 1024 + ks * 1024))
            e.vmem("buffer_load_dwordx4 %s, v%d, s[%d:%d], s%d offen offset:%d sc1" % (ar(areg + 4 * (ks - ks0), 4), vL16, sWS, sWS + 3, sT2 + 6, ((ks - ks0) % 4) * 1024), 'wo%d' % branch)

    def attn_extras(self):
        e = self.e
        X = {}
        def add(slot, f): X.setdefault(slot, []).append(f)
        st = {}
        FA = 80
        def all_loads(em, track):
            l1 = "buffer_load_dwordx2 v[82:83], v80, s[%d:%d], s%d offen sc1" % (sWS, sWS + 3, sT2 + 7)
            l2 = "buffer_load_dwordx4 v[84:87], v%d, s[%d:%d], s%d offen sc1" % (vL16, sWS, sWS + 3, sT2 + 8)
            l3 = "buffer_load_dwordx4 v[88:91], v%d, s[%d:%d], s%d offen offset:1024 sc1" % (vL16, sWS, sWS + 3, sT2 + 8)
            for l in (l1, l2, l3):
                if track: em.vmem(l, 'fall')
                else: em(l)
        def all_cmp(em):
            for r in range(82, 92):
                em("v_xor_b32 v%d, s%d, v%d" % (r, sNONCE, r))
            em("v_or3_b32 v82, v82, v83, v84")
            em("v_or3_b32 v85, v85, v86, v87")
            em("v_or3_b32 v88, v88, v89, v90")
            em("v_or3_b32 v82, v82, v85, v88")
            em("v_or_b32 v82, v82, v91")
            em("v_cmp_ne_u32 vcc, 0, v82")
            em("s_nop 1")
        def all_issue():
            e("v_lshrrev_b32 v80, 3, v0")
            e("v_lshlrev_b32 v80, 7, v80")
            e("v_and_b32 v81, 7, v0")
            e("v_lshl_add_u32 v80, v81, 3, v80")
            e("s_mov_b32 s%d, %d" % (sT2 + 7, F1_OFF))
            e("s_mov_b32 s%d, %d" % (sT2 + 8, F2_OFF))
            all_loads(e, True)
        add(7, all_issue)
        def all_check():
            e.vm_wait('fall')
            all_cmp(e)
            back = self.lab('back_all'); L = self.lab('spin_all')
            o = self.ool
            o.label(L)
            o("s_mov_b32 s%d, 0x8000" % sCNT)
            o.label(L + "_loop")
            all_loads(o, False)
            o("s_waitcnt vmcnt(0)")
            all_cmp(o)
            o("s_cbranch_vccz %s" % back)
            o("s_sub_u32 s%d, s%d, 1" % (sCNT, sCNT))
            o("s_cmp_lg_u32 s%d, 0" % sCNT)
            o("s_cbranch_scc1 %s_loop" % L)
            o("s_branch %s" % back)
            e("s_cbranch_vccnz %s" % L)
            e.label(back)
            e("s_bfe_u32 s%d, s2, 0x20003" % (sT2 + 5))
            e("s_lshl_b32 s%d, s%d, 2" % (sT2 + 5, sT2 + 5))
            e("s_add_u32 s%d, s%d, s%d" % (sT2 + 5, sT2 + 5, sW))
            e("s_lshl_b32 s%d, s%d, 15" % (sT2 + 5, sT2 + 5))
            e("s_add_u32 s%d, s%d, %d" % (sT2 + 5, sT2 + 5, WOF_OFF))
        add(13, all_check)
        for g in range(4):
            add(18 + 4 * g, lambda g=g: self.wo_loads(0, 8 * g, 8, aWOA + 32 * g))
        for g in range(2):
            add(34 + 4 * g, lambda g=g: self.wo_loads(1, 8 * g, 8, aWOB_LO + 32 * g))
        def cond_reducer():
            L = self.lab('nored')
            e("s_lshl_b32 s%d, s%d, 2" % (sT, sROLE))
            e("s_add_u32 s%d, s%d, s%d" % (sT, sT, sW))
            e("s_sub_u32 s%d, s%d, 2" % (sT, sT))
            e("s_cmp_ge_u32 s%d, 2" % sT)
            e("s_cbranch_scc1 %s" % L)
            return L
        def red_b():
            L = cond_reducer()
            e("s_lshl_b32 s%d, s%d, 1" % (sT2 + 9, sHP))
            e("s_add_u32 s%d, s%d, s%d" % (sT2 + 9, sT2 + 9, sT))
            e("s_lshl_b32 s%d, s%d, 17" % (sT + 1, sT2 + 9))
            e("s_lshr_b32 s%d, s%d, 1" % (sT + 2, sJ))
            e("s_lshl_b32 s%d, s%d, 10" % (sT + 2, sT + 2))
            e("s_add_u32 s%d, s%d, s%d" % (sT + 1, sT + 1, sT + 2))
            e("s_and_b32 s%d, s%d, 1" % (sT + 2, sJ))
            e("s_lshl_b32 s%d, s%d, 3" % (sT + 2, sT + 2))
            e("s_add_u32 s%d, s%d, s%d" % (sT + 1, sT + 1, sT + 2))
            e("s_add_u32 s%d, s%d, %d" % (sT + 1, sT + 1, PART_OFF))
            for jj in range(16):
                if jj: e("s_add_u32 s%d, s%d, 8192" % (sT + 1, sT + 1))
                e.vmem("buffer_load_dwordx2 %s, v%d, s[%d:%d], s%d offen sc1" % (vr(vX + 2 * jj, 2), vL16, sWS, sWS + 3, sT + 1), 'red', optional=True)
            e.label(L)
        add(14, red_b)
        def red_c():
            L = cond_reducer()
            e.vm_wait('red', keep=True)
            for jj in range(1, 16):
                e("v_add_f32 v%d, v%d, v%d" % (vX, vX, vX + 2 * jj))
                e("v_add_f32 v%d, v%d, v%d" % (vX + 1, vX + 1, vX + 2 * jj + 1))
            e("v_cvt_pk_bf16_f32 v%d, v%d, v%d" % (vX, vX, vX + 1))
            e("s_lshl_b32 s%d, s%d, 12" % (sT + 1, sT2 + 9))
            e("s_lshr_b32 s%d, s%d, 2" % (sT + 2, sJ))
            e("s_lshl_b32 s%d, s%d, 10" % (sT + 2, sT + 2))
            e("s_add_u32 s%d, s%d, s%d" % (sT + 1, sT + 1, sT + 2))
            e("s_and_b32 s%d, s%d, 3" % (sT + 2, sJ))
            e("s_lshl_b32 s%d, s%d, 2" % (sT + 2, sT + 2))
            e("s_add_u32 s%d, s%d, s%d" % (sT + 1, sT + 1, sT + 2))
            e("s_add_u32 s%d, s%d, %d" % (sT + 1, sT + 1, KVF_OFF))
            e.vmem("buffer_store_dword v%d, v%d, s[%d:%d], s%d offen sc1" % (vX, vL16, sWS, sWS + 3, sT + 1), 'redst', optional=True)
            e.label(L)
        add(21, red_c)
        def red_d():
            L = cond_reducer()
            e.vm_wait('redst', keep=True)
            e("s_lshl_b32 s%d, s%d, 7" % (sT + 1, sT2 + 9))
            e("s_lshl_b32 s%d, s%d, 2" % (sT + 2, sJ))
            e("s_add_u32 s%d, s%d, s%d" % (sT + 1, sT + 1, sT + 2))
            e("s_add_u32 s%d, s%d, %d" % (sT + 1, sT + 1, F3_OFF))
            self.one_lane_store(vT + 6, vT + 7, sT + 1, 'flag')
            e.label(L)
        add(27, red_d)
        def cond_a():
            L = self.lab('noA')
            e("s_cmp_eq_u32 s%d, 0" % sROLE)
            e("s_cbranch_scc1 %s" % L)
            return L
        def f3_issue():
            L = cond_a()
            e("s_lshl_b32 s%d, s%d, 7" % (sT2 + 9, sH1))
            e("s_add_u32 s%d, s%d, %d" % (sT2 + 9, sT2 + 9, F3_OFF))
            e("v_and_b32 v%d, 15, v0" % (vT + 8))
            e("v_lshlrev_b32 v%d, 2, v%d" % (vT + 8, vT + 8))
            st['f3'] = self.flag_issue('f3', vT + 9, 1, vT + 8, sT2 + 9, optional=True)
            e.label(L)
        add(31, f3_issue)
        def f3_check():
            L = cond_a()
            self.flag_check('f3', st['f3'], vT + 9, 1, keep=True)
            e("s_lshl_b32 s%d, s%d, 12" % (sT, sH1))
            e("s_add_u32 s%d, s%d, %d" % (sT, sT, KVF_OFF))
            for i in range(4):
                e.vmem("buffer_load_dwordx4 %s, v%d, s[%d:%d], s%d offen offset:%d sc1" % (vr(vX + 4 * i, 4), vL16, sWS, sWS + 3, sT, 1024 * i), 'kvf', optional=True)
            e.label(L)
        add(37, f3_check)
        D = vX + 16
        def a2_mm(t):
            def f():
                L = cond_a()
                if t == 0: e.vm_wait('kvf', keep=True)
                for i in range(4):
                    e("v_mfma_f32_32x32x16_bf16 %s, %s, %s, %s" % (vr(D, 16), vr(vX + 4 * i, 4), vr(vPQ + 16 * t + 4 * i, 4), "0" if i == 0 else vr(D, 16)))
                e.label(L)
            return f
        def a2_fin(t):
            def f():
                L = cond_a()
                e("s_lshl_b32 s%d, s%d, 2" % (sT, sJ))
                e("s_lshl_b32 s%d, s%d, 1" % (sT + 1, sTH))
                e("s_add_u32 s%d, s%d, s%d" % (sT, sT, sT + 1))
                e("s_lshl_b32 s%d, s%d, 4" % (sT, sT))
                e("s_add_u32 s%d, s%d, s%d" % (sT, sT, sH1))
                e("s_lshl_b32 s%d, s%d, 11" % (sT, sT))
                e("s_add_u32 s%d, s%d, %d" % (sT + 3, sT, OA_OFF + 32768 * t))
                self.normalize_store(D, 1e-6, sT + 3, 'oa', optional=True)
                e.label(L)
            return f
        add(42, a2_mm(0)); add(43, a2_fin(0)); add(44, a2_mm(1)); add(45, a2_fin(1))
        add(58, lambda: self.o_loads('A', OA_OFF, vX, e, True))
        return X

    def op_tile(self):
        e = self.e
        e("s_lshr_b32 s%d, s2, 5" % (sT2 + 7))
        e("s_lshl_b32 s%d, s%d, 3" % (sT2 + 7, sT2 + 7))
        e("s_and_b32 s%d, s2, 7" % sT)
        e("s_add_u32 s%d, s%d, s%d" % (sT2 + 7, sT2 + 7, sT))

    def o_loads(self, name, off, R, em, track):
        so = (sT2 + 1) if name == 'A' else (sT2 + 3)
        if track:
            e = self.e
            self.op_tile()
            e("s_lshl_b32 s%d, s%d, 15" % (sT, sT2 + 7))
            e("s_lshl_b32 s%d, s%d, 13" % (sT + 1, sW))
            e("s_add_u32 s%d, s%d, s%d" % (sT, sT, sT + 1))
            e("s_add_u32 s%d, s%d, %d" % (so, sT, off))
            e("s_add_u32 s%d, s%d, 4096" % (so + 1, so))
        for i in range(8):
            s = "buffer_load_dwordx4 %s, v%d, s[%d:%d], s%d offen offset:%d sc1" % (vr(R + 4 * i, 4), vL16, sWS, sWS + 3, so + (i // 4), (i % 4) * 1024)
            if track: em.vmem(s, 'o' + name)
            else: em(s)

    def o_check_stage(self, name, off, R, ost):
        e = self.e
        back = self.lab('oback'); loop = self.lab('oloop')
        def check(em):
            em("v_max3_u32 v%d, v%d, v%d, v%d" % (vT + 10, R, R + 1, R + 2))
            for i in range(14):
                em("v_max3_u32 v%d, v%d, v%d, v%d" % (vT + 10, vT + 10, R + 3 + 2 * i, R + 4 + 2 * i))
            em("v_max_u32 v%d, v%d, v%d" % (vT + 10, vT + 10, R + 31))
            em("v_cmp_eq_u32 vcc, -1, v%d" % (vT + 10))
            em("s_nop 1")
        e("s_lshl_b32 s%d, s%d, 13" % (sT + 2, sW))
        e("s_add_u32 s%d, s%d, %d" % (sT + 2, sT + 2, ost))
        e("v_add_u32 v%d, s%d, v%d" % (vT + 11, sT + 2, vL16))
        e.vm_wait('o' + name)
        check(e)
        e("s_cbranch_vccnz %s" % loop)
        e.label(back)
        o = self.ool
        o.label(loop)
        o("s_mov_b32 s%d, 0x8000" % sCNT)
        o.label(loop + "_l")
        self.o_loads(name, off, R, o, False)
        o("s_waitcnt vmcnt(0)")
        check(o)
        o("s_cbranch_vccz %s" % back)
        o("s_sub_u32 s%d, s%d, 1" % (sCNT, sCNT))
        o("s_cmp_lg_u32 s%d, 0" % sCNT)
        o("s_cbranch_scc1 %s_l" % loop)
        o("s_branch %s" % back)
        for i in range(8):
            e.lds("ds_write_b128 v%d, %s offset:%d" % (vT + 11, vr(R + 4 * i, 4), i * 1024), 'ow')

    def combine(self):
        e = self.e
        e.c("---- combine the four key ranges ----")
        t0 = vT
        for t in range(1, 4):
            e("s_add_u32 s%d, s%d, %d" % (sT, sW, t))
            e("s_and_b32 s%d, s%d, 3" % (sT, sT))
            e("s_mul_i32 s%d, s%d, 12288" % (sT, sT))
            e("s_add_u32 s%d, s%d, %d" % (sT, sT, CB + (t - 1) * 4096))
            e("v_add_u32 v%d, s%d, v%d" % (vT + t, sT, vL16))
        e("s_mul_i32 s%d, s%d, 12288" % (sT, sW))
        e("s_add_u32 s%d, s%d, %d" % (sT, sT, CB))
        e("v_add_u32 v%d, s%d, v%d" % (vT + 4, sT, vL16))
        for t in range(1, 4):
            if t == 3: e("s_nop 3")
            for g in range(4):
                e.lds("ds_write_b128 v%d, %s offset:%d" % (vT + t, vr(vO + 16 * t + 4 * g, 4), g * 1024), 'cw')
        e("v_max3_f32 v%d, v%d, v%d, v%d" % (t0, vO + 12, vO + 28, vO + 44))
        e("v_max_f32 v%d, v%d, v%d" % (t0, t0, vO + 60))
        e("v_mov_b32 v%d, 0x%08x" % (vT + 5, f2u(LIMIT)))
        self.upper_only(True)
        e("v_cmp_nle_f32 vcc, v%d, v%d" % (t0, vT + 5))
        self.upper_only(False)
        e("s_nop 0")
        e("s_cmp_lg_u32 vcc_hi, 0")
        e("s_cselect_b32 s%d, 1, 0" % sT)
        e("v_mov_b32 v%d, s%d" % (vT + 5, sT))
        e("s_lshl_b32 s%d, s%d, 2" % (sT + 1, sW))
        e("s_add_u32 s%d, s%d, %d" % (sT + 1, sT + 1, VERD))
        e("v_mov_b32 v%d, s%d" % (vT + 6, sT + 1))
        e.lds("ds_write_b32 v%d, v%d" % (vT + 6, vT + 5), 'cw')
        for g in range(2): self.wo_loads(1, 16 + 8 * g, 8, aWOB_HI + 32 * g)
        self.o_check_stage('A', OA_OFF, vX, OST_A)
        e.lg_drain()
        e("s_barrier")
        R = vS
        for idx in range(3):
            for g in range(4):
                e.lds("ds_read_b128 %s, v%d offset:%d" % (vr(R + 16 * idx + 4 * g, 4), vT + 4, idx * 4096 + g * 1024), 'cr%d' % idx)
        e("v_mov_b32 v%d, %d" % (vT + 6, VERD))
        e.lds("ds_read_b128 %s, v%d" % (vr(vT, 4), vT + 6), 'verd')
        for idx in range(3):
            e.lg_wait('cr%d' % idx)
            for i in range(8):
                e("v_pk_add_f32 %s, %s, %s" % (vr(vO + 2 * i, 2), vr(vO + 2 * i, 2), vr(R + 16 * idx + 2 * i, 2)))
        e.lg_wait('verd')
        e("v_or3_b32 v%d, v%d, v%d, v%d" % (vT, vT, vT + 1, vT + 2))
        e("v_or_b32 v%d, v%d, v%d" % (vT, vT, vT + 3))
        e("s_nop 0")
        e("v_readfirstlane_b32 s%d, v%d" % (sT, vT))
        e("s_nop 0")
        e("s_cmp_lg_u32 s%d, 0" % sT)
        e("s_cbranch_scc1 L_fallback")
        e.label("L_fallback_done")
        e("s_lshl_b32 s%d, s%d, 2" % (sT, sJ2))
        e("s_add_u32 s%d, s%d, s%d" % (sT, sT, sW))
        e("s_lshl_b32 s%d, s%d, 4" % (sT, sT))
        e("s_add_u32 s%d, s%d, s%d" % (sT, sT, sH2))
        e("s_lshl_b32 s%d, s%d, 11" % (sT, sT))
        e("s_add_u32 s%d, s%d, %d" % (sT, sT, OB_OFF))
        self.normalize_store(vO, 0.0, sT, 'ob')

    def normalize_store(self, O, eps, soff, tag, optional=False):
        e = self.e
        t, u = vT, vT + 1
        e("v_mov_b32 v%d, v%d" % (t, O + 12))
        e("v_mov_b32 v%d, v%d" % (u, O + 12))
        e("s_nop 1")
        e("v_permlane32_swap_b32 v%d, v%d" % (t, u))
        if eps:
            e("v_add_f32 v%d, 0x%08x, v%d" % (u, f2u(eps), u))
        e("v_rcp_f32 v%d, v%d" % (vT + 2, u))
        e("s_nop 0")
        for i in range(8):
            e("v_pk_mul_f32 %s, %s, %s op_sel_hi:[1,0]" % (vr(O + 2 * i, 2), vr(O + 2 * i, 2), vr(vT + 2, 2)))
        for i in range(8):
            e("v_cvt_pk_bf16_f32 v%d, v%d, v%d" % (O + i, O + 2 * i, O + 2 * i + 1))
        self.upper_only(True)
        e("v_mov_b32 v%d, 0" % (O + 6))
        e("v_mov_b32 v%d, 0" % (O + 7))
        self.upper_only(False)
        e.vmem("buffer_store_dwordx4 %s, v%d, s[%d:%d], s%d offen sc1" % (vr(O, 4), vL16, sWS, sWS + 3, soff), tag, optional=optional)
        e.vmem("buffer_store_dwordx4 %s, v%d, s[%d:%d], s%d offen offset:1024 sc1" % (vr(O + 4, 4), vL16, sWS, sWS + 3, soff), tag, optional=optional)

    def outproj(self, name, ost, wreg, colbase, wtag, mid=None):
        e = self.e
        e.c("---- output projection %s ----" % name)
        R = vS
        e("v_add_u32 v%d, %d, v%d" % (vT + 2, ost, vL16))
        e.vm_wait(wtag)
        D = vO + 48
        NB = 8
        def rd(ks):
            e.lds("ds_read_b128 %s, v%d offset:%d" % (vr(R + 4 * (ks % NB), 4), vT + 2, ks * 1024), 'of%d' % ks)
        for ks in range(NB - 1): rd(ks)
        for ks in range(32):
            e.lg_wait('of%d' % ks)
            e("v_mfma_f32_32x32x16_bf16 %s, %s, %s, %s" % (vr(D, 16), ar(wreg(ks), 4), vr(R + 4 * (ks % NB), 4), "0" if ks == 0 else vr(D, 16)))
            if ks + NB - 1 < 32: rd(ks + NB - 1)
        if mid: mid()
        self.op_tile()
        e("v_and_b32 v%d, 31, v0" % vT)
        e("s_lshl_b32 s%d, s%d, 5" % (sT, sT2 + 7))
        e("v_add_u32 v%d, s%d, v%d" % (vT, sT, vT))
        e("v_mul_u32_u24 v%d, 1792, v%d" % (vT, vT))
        e("v_lshrrev_b32 v%d, 5, v0" % (vT + 1))
        e("v_lshl_add_u32 v%d, v%d, 3, v%d" % (vT, vT + 1, vT))
        e("s_bfe_u32 s%d, s2, 0x20003" % sT)
        e("s_lshl_b32 s%d, s%d, 2" % (sT, sT))
        e("s_add_u32 s%d, s%d, s%d" % (sT, sT, sW))
        e("s_mul_i32 s%d, s%d, 56" % (sT, sT))
        e("s_add_u32 s%d, s%d, %d" % (sT, sT, colbase * 2))
        for i in range(8):
            e("v_cvt_pk_bf16_f32 v%d, v%d, v%d" % (D + i, D + 2 * i, D + 2 * i + 1))
        for g in range(4):
            if g == 3: e("s_mov_b32 exec_hi, 0")
            e.vmem("buffer_store_dwordx2 %s, v%d, s[%d:%d], s%d offen offset:%d" % (vr(D + 2 * g, 2), vT, sOUT, sOUT + 3, sT, 16 * g), 'out')
        e("s_mov_b32 exec_hi, -1")

    def fallback(self):
        o = self.ool
        o.label("L_fallback")
        o("s_branch L_fallback_done")

    def finish(self):
        e = self.e
        L = self.lab('gen')
        e("s_cmp_lg_u32 s2, 0")
        e("s_cbranch_scc1 %s" % L)
        e("s_cmp_lg_u32 s%d, 0" % sW)
        e("s_cbranch_scc1 %s" % L)
        e("v_mov_b32 v%d, s%d" % (vT + 7, sNONCE))
        e("v_mov_b32 v%d, %d" % (vT + 6, G_OFF))
        e("s_mov_b64 exec, 1")
        e.vmem("buffer_store_dword v%d, v%d, s[%d:%d], 0 offen" % (vT + 7, vT + 6, sWS, sWS + 3), 'gen', optional=True)
        e("s_mov_b64 exec, -1")
        e.label(L)
        if self.o.get('stamps'):
            self.stamp('end')
            e("s_lshl_b32 s%d, s2, 2" % sT)
            e("s_add_u32 s%d, s%d, s%d" % (sT, sT, sW))
            e("s_lshl_b32 s%d, s%d, 8" % (sT, sT))
            e("s_add_u32 s%d, s%d, %d" % (sT, sT, STAMP_OFF))
            e("v_lshlrev_b32 v%d, 2, v0" % vT)
            e.vmem("buffer_store_dword v15, v%d, s[%d:%d], s%d offen" % (vT, sWS, sWS + 3, sT), 'st')
            if self.o.get('dbg'):
                L = self.lab('dbg')
                e("s_cmp_lg_u32 s%d, 0" % sW)
                e("s_cbranch_scc1 %s" % L)
                e("s_mov_b32 s%d, s20" % sWO)
                e("s_and_b32 s%d, s21, 0xffff" % (sWO + 1))
                e("s_mov_b32 s%d, 256" % (sWO + 2))
                e("s_mov_b32 s%d, 0x20000" % (sWO + 3))
                e("v_not_b32 v%d, v15" % (vT + 1))
                e("v_cmp_eq_u32 vcc, 0, v0")
                e("s_nop 1")
                e("v_cndmask_b32 v%d, v15, v%d, vcc" % (vT + 1, vT + 1))
                e("s_mov_b32 exec_lo, 0xffff")
                e("s_mov_b32 exec_hi, 0")
                e.vmem("buffer_atomic_umax v%d, v%d, s[%d:%d], 0 offen sc1" % (vT + 1, vT, sWO, sWO + 3), 'dbg', optional=True)
                e("s_mov_b64 exec, -1")
                e.label(L)

    def build(self):
        e = self.e
        self.prologue()
        self.stamp('pro')
        def top0():
            e("s_mul_i32 s%d, s%d, 0x9E3779B1" % (sNONCE, sNONCE))
            e("s_add_u32 s%d, s%d, 0x7F4A7C15" % (sNONCE, sNONCE))
        for hc in range(14):
            tops = {0: top0, 7: self.merge_wphi, 8: self.chore_issue, 12: self.chore_store}
            self.body(hc, top=tops.get(hc))
            if hc in (0, 6) and not self.o.get('fine'): self.stamp('hc%d' % hc)
        e.lg_wait('f13_0')
        for m in self.mfmas(13, 0): m()
        e.lg_wait('f13_1')
        for m in self.mfmas(13, 1): m()
        e("s_nop 7")
        self.stamp('gemm')
        e("s_cmp_eq_u32 s%d, 0" % sROLE)
        e("s_cbranch_scc0 L_roleA")
        n0 = self.nstamp
        vm0, lg0 = list(e.vm), list(e.lg)
        self.b_epilogue()
        self.stamp('kvA')
        n1 = self.nstamp
        e("s_branch L_roles_done")
        e.label("L_roleA")
        e.vm, e.lg = vm0, lg0
        names = list(self.stamp_names)
        self.nstamp = n0
        self.a_epilogue()
        self.stamp_names = names
        self.nstamp = n1
        e.label("L_roles_done")
        e.vm, e.lg = [], []
        e("s_waitcnt lgkmcnt(0)")
        e("s_barrier")
        self.attn_prologue()
        self.stamp('apro')
        self.attention()
        self.stamp('attn')
        self.combine()
        self.stamp('comb')
        self.outproj('A', OST_A, lambda ks: aWOA + 4 * ks, 0, 'wo0', mid=lambda: self.o_loads('B', OB_OFF, vX, self.e, True))
        self.stamp('opa')
        self.o_check_stage('B', OB_OFF, vX, OST_B)
        self.e.lg_drain()
        self.e("s_barrier")
        self.stamp('oB_in')
        self.outproj('B', OST_B, lambda ks: (aWOB_LO + 4 * ks) if ks < 16 else (aWOB_HI + 4 * (ks - 16)), 448, 'wo1')
        self.finish()
        self.fallback()

    def text(self):
        self.build()
        hdr = open(os.path.join(os.path.dirname(os.path.abspath(__file__)), '..', 'cdna_kernels', NAME + '.s.ref')).read().split('\n')
        top = [l for l in hdr if l.startswith(';') and '@launch' not in l and 'Override launch' not in l and 'grid=ceil' not in l]
        out = '\n'.join(top) + '\n'
        out += "; @launch grid=(256,1,1) block=(256,1,1) lds=%d\n" % LDS_SIZE
        out += '.amdgcn_target "amdgcn-amd-amdhsa--gfx950"\n.text\n.globl %s_kernel\n.p2align 8\n.type %s_kernel,@function\n%s_kernel:\n' % (NAME, NAME, NAME)
        out += self.e.text()
        out += "L_end:\n  s_endpgm\n"
        out += self.ool.text()
        out += "L_codeend:\n  s_endpgm\n"
        out += """.section .rodata,"a"
.p2align 6
.amdhsa_kernel %s_kernel
  .amdhsa_next_free_vgpr 512
  .amdhsa_next_free_sgpr 102
  .amdhsa_accum_offset 256
  .amdhsa_group_segment_fixed_size 0
  .amdhsa_kernarg_size 80
  .amdhsa_user_sgpr_count 2
  .amdhsa_user_sgpr_kernarg_segment_ptr 1
  .amdhsa_system_sgpr_workgroup_id_x 1
.end_amdhsa_kernel
""" % NAME
        return out

if __name__ == '__main__':
    import argparse, hazard
    ap = argparse.ArgumentParser()
    ap.add_argument('-o', default=os.path.join(os.path.dirname(os.path.abspath(__file__)), '..', 'cdna_kernels', NAME + '.s'))
    ap.add_argument('--stamps', action='store_true')
    ap.add_argument('--fine', action='store_true')
    ap.add_argument('--warm', action='store_true')
    ap.add_argument('--dbg', action='store_true')
    ap.add_argument('--touch', action='store_true')
    a = ap.parse_args()
    g = Gen(dict(stamps=a.stamps, fine=a.fine, warm=a.warm, dbg=a.dbg, touch=a.touch))
    t = g.text()
    open(a.o, 'w').write(t)
    if a.stamps:
        open(a.o + '.stamps', 'w').write('\n'.join(g.stamp_names))
    body = t.split('_kernel:\n')[1].split('.section')[0]
    probs = hazard.check(body.split('\n'))
    for p in probs[:60]: print(p)
    print(len(probs), "hazard problems;", len(t), "bytes,", body.count('\n'), "lines")
```

```python
def vr(b, n=1, p='v'):
    return "%s%d" % (p, b) if n == 1 else "%s[%d:%d]" % (p, b, b + n - 1)
def ar(b, n=1):
    return vr(b, n, 'a')
def sr(b, n=1):
    return vr(b, n, 's')

class Em:
    def __init__(self):
        self.lines = []
        self.vm = []
        self.lg = []
    def __call__(self, s):
        for l in s.split('\n'):
            l = l.strip()
            if l:
                self.lines.append(('' if l.endswith(':') or l.startswith('.') else '  ') + l)
    def c(self, s):
        self.lines.append('  ; ' + s)
    def label(self, s):
        self.lines.append(s + ':')
    def vmem(self, s, tag, optional=False):
        self(s)
        self.vm.append((tag, optional))
    def vm_wait(self, *tags, keep=False):
        idx = -1
        for i, (t, o) in enumerate(self.vm):
            if t in tags:
                idx = i
        if idx < 0:
            return False
        n = sum(1 for (t, o) in self.vm[idx + 1:] if not o)
        self("s_waitcnt vmcnt(%d)" % min(n, 63))
        if n > 63:
            raise ValueError("vmcnt overflow while waiting for %s: %d" % (tags, n))
        if not keep:
            self.vm = self.vm[idx + 1:]
        return True
    def vm_count(self, tags, include_opt=()):
        idx = -1
        for i, (t, o) in enumerate(self.vm):
            if t in tags:
                idx = i
        if idx < 0:
            return None, -1
        n = sum(1 for (t, o) in self.vm[idx + 1:] if (not o) or t in include_opt)
        return n, idx
    def vm_drain(self):
        self("s_waitcnt vmcnt(0)")
        self.vm = []
    def lds(self, s, tag):
        self(s)
        self.lg.append(tag)
    def lg_wait(self, *tags):
        idx = -1
        for i, t in enumerate(self.lg):
            if t in tags:
                idx = i
        if idx < 0:
            return False
        n = len(self.lg) - idx - 1
        if n > 15:
            n = 15
            idx = len(self.lg) - 16
        self("s_waitcnt lgkmcnt(%d)" % n)
        self.lg = self.lg[idx + 1:]
        return True
    def lg_drain(self):
        self("s_waitcnt lgkmcnt(0)")
        self.lg = []
    def text(self):
        return '\n'.join(self.lines) + '\n'

def interleave(primary, filler):
    out = []
    n = len(primary)
    if n == 0:
        return list(filler)
    m = len(filler)
    k = 0
    for i, p in enumerate(primary):
        out.append(p)
        upto = (i + 1) * m // n
        out += filler[k:upto]
        k = upto
    return out
```

```python
import sys, os, math, struct
sys.path.insert(0, os.path.dirname(os.path.abspath(__file__)))
from core import *

NAME = "concat_heads__linear_kernel_hedgehog__mha_block__prompt"

def f2u(x):
    return struct.unpack('<I', struct.pack('<f', x))[0]

G_OFF, F0_OFF, F1_OFF, F2_OFF, F3_OFF = 0, 0x1000, 0x2000, 0x3000, 0x4000
KVF_OFF = 0x10000
KV_OFF, PART_OFF, OA_OFF, OB_OFF, WOF_OFF, QF_OFF = 0x100000, 0x500000, 0x700000, 0x900000, 0xB00000, 0xC00000
STAMP_OFF, WS_SIZE = 0xE00000, 0xE80000
WBASE, WSL = 114688, 8192
PHI, VX = 0, 36864
CB, VERD, OST_B, OST_A = 0, 49152, 53248, 86016
MX = 49664
LDS_SIZE = 155648
sX, sWt, sPH, sWO, sWS, sOUT, sPC = 24, 28, 32, 36, 40, 44, 48
sROLE, sHP, sJ, sW, sNONCE = 52, 53, 54, 55, 56
sH2, sJ2, sTH, sHD = 57, 58, 59, 60
sXROW, sWROW, sLX, sLW, sSX, sSW = 61, 62, 63, 64, 65, 66
sC = 68
sL2P = 70
sT = 72
sKV, sCNT = 80, 81
sT2 = 82
sH1 = 92
sWROW2 = 93
sOL = 98
vL16 = 1
vWD, vWR1, vWR2 = 2, 13, 14
vXR = 5
vXD = 196
vT = 16
vF = 32
vPH, vRAW = 208, 216
vPQ = 224
vS, vP, vO, vQ = 32, 64, 96, 160
vX = 192
vCH = 216
NSETS = 4
aKV, aWOB_LO, aWOB_HI, aWOA = 0, 64, 0, 128

SCALE = (28.0 ** -0.5) * math.log2(math.e)
OFFS = 64.0
LIMIT = 2.0 ** 90

def acc(t, ty):
    return {1: 96, 2: 128, 0: 160}[ty] + 16 * t

class Gen:
    def __init__(self, opt):
        self.o = opt
        self.e = Em()
        self.ool = Em()
        self.nlab = 0
        self.nstamp = 0
        self.stamp_names = []
    def lab(self, p):
        self.nlab += 1
        return "L_%s_%d" % (p, self.nlab)
    def stamp(self, name, k=None):
        if not self.o.get('stamps'):
            return
        e = self.e
        if k is None:
            k = self.nstamp
            self.nstamp += 1
            self.stamp_names.append(name)
        e("s_memrealtime s[94:95]")
        e("s_memtime s[96:97]")
        e("s_waitcnt lgkmcnt(0)")
        e.lg = []
        e("v_writelane_b32 v15, s94, %d" % k)
        e("v_writelane_b32 v8, s96, %d" % k) if False else None
        e("v_writelane_b32 v15, s96, %d" % (32 + k))
        return k

    def srd(self, s, p, n, bias=0):
        e = self.e
        if bias:
            e("s_sub_u32 s%d, s%d, %d" % (s, p, bias))
            e("s_subb_u32 s%d, s%d, 0" % (s + 1, p + 1))
            e("s_and_b32 s%d, s%d, 0xffff" % (s + 1, s + 1))
        else:
            e("s_mov_b32 s%d, s%d" % (s, p))
            e("s_and_b32 s%d, s%d, 0xffff" % (s + 1, p + 1))
        e("s_mov_b32 s%d, %d" % (s + 2, n + bias))
        e("s_mov_b32 s%d, 0x20000" % (s + 3))

    def prologue(self):
        e = self.e
        e("s_getpc_b64 s[%d:%d]" % (sPC, sPC + 1))
        e.label("L_pc")
        e("s_load_dwordx16 s[4:19], s[0:1], 0")
        e("s_load_dwordx4 s[20:23], s[0:1], 64")
        e("s_cmp_ge_u32 s2, 256")
        e("s_cbranch_scc1 L_end")
        e("s_mov_b32 s%d, L_codeend-L_pc" % (sPC + 2))
        e("s_mov_b32 s%d, 0x20000" % (sPC + 3))
        e("v_lshlrev_b32 v%d, 7, v0" % vT)
        e("v_lshrrev_b32 v%d, 6, v0" % (vT + 1))
        e.vmem("buffer_load_dword v%d, v%d, s[%d:%d], 0 offen" % (vT + 2, vT, sPC, sPC + 3), 'pf')
        e("v_readfirstlane_b32 s%d, v%d" % (sW, vT + 1))
        e("v_and_b32 v0, 63, v0")
        e("v_mov_b32 v%d, 0" % (vT + 8))
        if self.o.get('stamps'):
            e("v_mov_b32 v15, 0")
            self.stamp('start')
        e("s_and_b32 s%d, s2, 7" % sT)
        e("s_lshr_b32 s%d, s2, 3" % (sT + 1))
        e("s_and_b32 s%d, s%d, 1" % (sROLE, sT + 1))
        e("s_lshr_b32 s%d, s%d, 1" % (sT + 3, sT + 1))
        e("s_and_b32 s%d, s%d, 1" % (sHP, sT))
        e("s_lshl_b32 s%d, s%d, 2" % (sHP, sHP))
        e("s_and_b32 s%d, s%d, 3" % (sT + 2, sT + 3))
        e("s_add_u32 s%d, s%d, s%d" % (sHP, sHP, sT + 2))
        e("s_lshr_b32 s%d, s%d, 1" % (sJ, sT))
        e("s_lshl_b32 s%d, s%d, 2" % (sJ, sJ))
        e("s_lshr_b32 s%d, s%d, 2" % (sT + 2, sT + 3))
        e("s_add_u32 s%d, s%d, s%d" % (sJ, sJ, sT + 2))
        e("s_lshl_b32 s%d, s%d, 1" % (sH2, sT))
        e("s_and_b32 s%d, s%d, 1" % (sT + 2, sT + 1))
        e("s_add_u32 s%d, s%d, s%d" % (sH2, sH2, sT + 2))
        e("s_lshr_b32 s%d, s%d, 1" % (sJ2, sT + 1))
        e("s_and_b32 s%d, s%d, 1" % (sTH, sW))
        e("s_lshr_b32 s%d, s%d, 1" % (sHD, sW))
        e("s_lshl_b32 s%d, s%d, 1" % (sH1, sHP))
        e("s_add_u32 s%d, s%d, s%d" % (sH1, sH1, sHD))
        e("s_lshl_b32 s%d, s%d, 2" % (sT, sJ))
        e("s_add_u32 s%d, s%d, s%d" % (sT, sT, sW))
        e("s_mul_i32 s%d, s%d, %d" % (sXROW, sT, 32 * 896))
        e("s_mul_i32 s%d, s%d, 112" % (sT + 1, sHP))
        e("s_lshl_b32 s%d, s%d, 3" % (sT, sW))
        e("s_mul_i32 s%d, s%d, 2688" % (sWROW, sT))
        e("s_add_u32 s%d, s%d, s%d" % (sWROW, sWROW, sT + 1))
        e("s_add_u32 s%d, s%d, 896" % (sWROW, sWROW))
        e("s_lshl_b32 s%d, s%d, 4" % (sT, sW))
        e("s_mul_i32 s%d, s%d, 2688" % (sWROW2, sT))
        e("s_add_u32 s%d, s%d, s%d" % (sWROW2, sWROW2, sT + 1))
        e("s_lshl_b32 s%d, s%d, 12" % (sLX, sW))
        e("s_lshl_b32 s%d, s%d, 11" % (sLW, sW))
        e("s_add_u32 s%d, s%d, %d" % (sLW, sLW, WBASE))
        t0, t1, t2, t3 = vT + 3, vT + 4, vT + 5, vT + 6
        e("v_lshlrev_b32 v%d, 4, v0" % vL16)
        e("v_lshrrev_b32 v%d, 3, v0" % t0)
        e("v_lshrrev_b32 v%d, 4, v0" % t1)
        e("v_and_b32 v%d, 7, v0" % t2)
        e("v_and_b32 v%d, 1, v%d" % (t3, t1))
        e("v_lshlrev_b32 v%d, 2, v%d" % (t3, t3))
        e("v_xor_b32 v%d, v%d, v%d" % (t3, t3, t2))
        e("v_min_u32 v%d, 6, v%d" % (t3, t3))
        e("v_mul_u32_u24 v%d, 2688, v%d" % (t0, t0))
        e("v_lshl_add_u32 v%d, v%d, 4, v%d" % (t0, t3, t0))
        e("v_add_u32 v%d, 256, v%d" % (vWD, t0))
        e("v_add_u32 v%d, 128, v%d" % (vWD + 1, t0))
        e("v_add_u32 v%d, %d, v%d" % (vWD + 2, 256 + 8 * 2688 - 1024, t0))
        e("v_lshrrev_b32 v%d, 3, v0" % t0)
        e("v_mul_u32_u24 v%d, 896, v%d" % (t0, t0))
        for i in range(4):
            if i < 2:
                e("v_add_u32 v%d, %d, v%d" % (t3, 4 * i, t1))
                e("v_xor_b32 v%d, v%d, v%d" % (t3, t3, t2))
                e("v_lshl_add_u32 v%d, v%d, 4, v%d" % (vXD + i, t3, t0))
                if i:
                    e("v_add_u32 v%d, %d, v%d" % (vXD + i, 6144 * i, vXD + i))
            else:
                e("v_add_u32 v%d, %d, v%d" % (vXD + i, 2 * 6144, vXD + i - 2))
        e("s_waitcnt lgkmcnt(0)")
        e("s_cmp_eq_u32 s%d, 0" % sROLE)
        e("s_cselect_b32 s%d, s12, s4" % sT)
        e("s_cselect_b32 s%d, s13, s5" % (sT + 1))
        e("s_cselect_b32 s%d, s14, s6" % (sT + 2))
        e("s_cselect_b32 s%d, s15, s7" % (sT + 3))
        self.srd(sX, sT, 2048 * 896)
        self.srd(sWt, sT + 2, 448 * 2688, bias=256)
        if self.o.get('warm'): self.input_prefetch()
        self.dma_x(0); self.dma_w(0); self.dma_w(1)
        self.srd(sWS, 22, WS_SIZE)
        e("s_load_dword s%d, s[22:23], %d" % (sNONCE, G_OFF))
        self.dma_x(1); self.dma_w(2); self.dma_w(3)
        self.srd(sPH, 8, 16 * 28 * 28 * 2)
        self.srd(sOUT, 18, 2048 * 896 * 2)
        e("v_and_b32 v%d, 31, v0" % t0)
        e("v_lshrrev_b32 v%d, 5, v0" % t1)
        e("s_lshl_b32 s%d, s%d, 6" % (sT, sTH))
        e("v_add_u32 v%d, s%d, v%d" % (t2, sT, t0))
        e("v_lshlrev_b32 v%d, 7, v%d" % (t2, t2))
        e("v_bfe_u32 v%d, v0, 1, 3" % t3)
        e("v_xor_b32 v%d, v%d, v%d" % (t3, t3, t1))
        for s_ in range(4):
            e("v_xor_b32 v%d, %d, v%d" % (vT + 7, 2 * s_, t3))
            e("v_lshl_add_u32 v%d, v%d, 4, v%d" % (vXR + s_, vT + 7, t2))
            e("v_add_u32 v%d, 65536, v%d" % (vXR + 4 + s_, vXR + s_))
        e("v_bfe_u32 v%d, v0, 4, 1" % t2)
        e("v_lshlrev_b32 v%d, 5, v%d" % (t2, t2))
        e("v_and_b32 v%d, 3, v0" % t3)
        e("v_lshl_add_u32 v%d, v%d, 3, v%d" % (t2, t3, t2))
        e("s_mul_i32 s%d, s%d, 56" % (sT, sHD))
        e("v_add_u32 v%d, s%d, v%d" % (t2, sT, t2))
        e("v_bfe_u32 v%d, v0, 3, 1" % t3)
        e("v_lshlrev_b32 v%d, 6, v%d" % (t3, t3))
        e("v_xor_b32 v%d, v%d, v%d" % (t2, t2, t3))
        e("v_bfe_u32 v%d, v0, 2, 2" % t3)
        e("v_lshl_add_u32 v%d, v%d, 7, v%d" % (t2, t3, t2))
        e("v_add_u32 v%d, %d, v%d" % (t2, WBASE, t2))
        e("v_lshl_add_u32 v%d, v%d, 11, v%d" % (vWR1, t1, t2))
        e("v_lshl_add_u32 v%d, v%d, 10, v%d" % (vWR2, t1, t2))
        e("s_mov_b32 s%d, 0x%08x" % (sC, f2u(SCALE)))
        e("s_mov_b32 s%d, 0x%08x" % (sC + 1, f2u(SCALE)))
        e("s_mov_b32 s%d, 0x%08x" % (sL2P, f2u(math.log2(math.e))))
        e("s_mov_b32 s%d, 0x%08x" % (sL2P + 1, f2u(math.log2(math.e))))
        e("v_min_u32 v%d, 27, v%d" % (t2, t0))
        e("v_mul_u32_u24 v%d, %d, v%d" % (t3, 4 * 28, t1))
        e("v_add_u32 v%d, v%d, v%d" % (t2, t2, t3))
        e("v_lshlrev_b32 v%d, 1, v%d" % (t2, t2))
        e("s_mul_i32 s%d, s%d, 1568" % (sT, sH1))
        for mf in range(2):
            for j in range(8):
                d = 16 * mf + (j & 3) + 8 * (j >> 2)
                e.vmem("buffer_load_ushort v%d, v%d, s[%d:%d], s%d offen offset:%d" % (vRAW + 8 * mf + j, t2, sPH, sPH + 3, sT, d * 56), 'wphi')

    def input_prefetch(self):
        e = self.e
        S = sWO
        e("s_lshl_b32 s%d, s2, 2" % sT)
        e("s_add_u32 s%d, s%d, s%d" % (sT, sT, sW))
        segs = [(14, 448 * 2688), (6, 448 * 2688), (12, 2048 * 896), (4, 2048 * 896), (16, 448 * 896), (10, 448 * 896)]
        start = 0
        L = self.lab('pfdone')
        labs = [self.lab('pfseg') for _ in segs]
        for (p, n), lb in zip(segs, labs):
            cnt = (n + 8191) // 8192
            e("s_cmp_lt_u32 s%d, %d" % (sT, start + cnt))
            e("s_cselect_b32 s%d, 1, 0" % (sT + 1))
            e("s_cbranch_scc0 %s" % lb)
            e("s_mov_b32 s%d, s%d" % (S, p))
            e("s_and_b32 s%d, s%d, 0xffff" % (S + 1, p + 1))
            e("s_mov_b32 s%d, %d" % (S + 2, n))
            e("s_sub_u32 s%d, s%d, %d" % (sT + 2, sT, start))
            e("s_branch %s" % (L + "_go"))
            e.label(lb)
            start += cnt
        e("s_branch %s" % L)
        e.label(L + "_go")
        e("s_mov_b32 s%d, 0x20000" % (S + 3))
        e("s_lshl_b32 s%d, s%d, 13" % (sT + 2, sT + 2))
        e("v_lshlrev_b32 v%d, 7, v0" % (vT + 9))
        e.vmem("buffer_load_dword v%d, v%d, s[%d:%d], s%d offen" % (vT + 10, vT + 9, S, S + 3, sT + 2), 'pf2', optional=True)
        e.label(L)

    def merge_wphi(self):
        e = self.e
        e.vm_wait('wphi')
        for i in range(8):
            e("v_lshl_or_b32 v%d, v%d, 16, v%d" % (vPH + i, vRAW + 2 * i + 1, vRAW + 2 * i))

    def dma_x(self, c):
        e = self.e
        e("s_add_u32 m0, s%d, %d" % (sLX, c * 16384))
        e("s_add_u32 s%d, s%d, %d" % (sSX, sXROW, c * 128))
        for i in range(4):
            e.vmem("buffer_load_dwordx4 v%d, s[%d:%d], s%d offen offset:%d lds" % (vXD + i, sX, sX + 3, sSX, 1024 * i), 'x%d' % c)
    def dma_w(self, hc):
        e = self.e
        e("s_add_u32 m0, s%d, %d" % (sLW, (hc % 5) * WSL))
        e("s_add_u32 s%d, s%d, %d" % (sSW, sWROW, hc * 32 * 2688))
        for ty in range(2):
            e.vmem("buffer_load_dwordx4 v%d, s[%d:%d], s%d offen offset:%d lds" % (vWD + ty, sWt, sWt + 3, sSW, 1024 * ty), 'w%d' % hc)
    def qslot(self, q): return (q + 4) % 5
    def dma_q(self, q):
        e = self.e
        e("s_add_u32 m0, s%d, %d" % (sLW, self.qslot(q) * WSL))
        e("s_add_u32 s%d, s%d, %d" % (sSW, sWROW2, q * 64 * 2688))
        e.vmem("buffer_load_dwordx4 v%d, s[%d:%d], s%d offen lds" % (vWD, sWt, sWt + 3, sSW), 'q%d_w' % q)
        e.vmem("buffer_load_dwordx4 v%d, s[%d:%d], s%d offen offset:1024 lds" % (vWD + 2, sWt, sWt + 3, sSW), 'q%d_w' % q)

    def x_read(self, F, kstep, t, tag):
        c, s_ = kstep >> 2, kstep & 3
        reg, rel = (vXR + s_, c * 16384) if c < 4 else (vXR + 4 + s_, (c - 4) * 16384)
        return lambda: self.e.lds("ds_read_b128 %s, v%d offset:%d" % (vr(F + 4 * t, 4), reg, rel + 4096 * t), tag)

    def reads1(self, hc, ks):
        e = self.e
        F = vF + 16 * (2 * (hc & 1) + ks)
        tag = 'f%d_%d' % (hc, ks)
        items = [self.x_read(F, 2 * hc + ks, t, tag) for t in range(2)]
        for ty in range(2):
            for hf in range(2):
                off = (hc % 5) * WSL + ks * 4096 + ty * 1024 + 512 * hf
                items.append(lambda ty=ty, hf=hf, off=off: e.lds("ds_read_b64_tr_b16 %s, v%d offset:%d" % (vr(F + 8 + 4 * ty + 2 * hf, 2), vWR1, off), tag))
        return items
    def mfmas1(self, hc, ks):
        e = self.e
        F = vF + 16 * (2 * (hc & 1) + ks)
        first = (hc == 0 and ks == 0)
        items = []
        for t in range(2):
            D = vr(acc(t, 1), 16)
            items.append(lambda D=D, t=t: e("v_mfma_f32_32x32x16_bf16 %s, %s, %s, %s" % (D, vr(F + 8, 4), vr(F + 4 * t, 4), "0" if first else D)))
        for t in range(2):
            D = vr(acc(t, 2), 16)
            items.append(lambda D=D, t=t: e("v_mfma_f32_32x32x16_bf16 %s, %s, %s, %s" % (D, vr(F + 4 * t, 4), vr(F + 12, 4), "0" if first else D)))
        return items
    def body1(self, hc, top=None):
        e = self.e
        e.c("---- K/V projection, half chunk %d ----" % hc)
        e.vm_wait('w%d' % hc, 'x%d' % (hc >> 1))
        e.lg_drain()
        e("s_barrier")
        mf = (self.mfmas1(hc - 1, 0) + self.mfmas1(hc - 1, 1)) if hc > 0 else []
        rd = self.reads1(hc, 0) + self.reads1(hc, 1)
        if mf: mf.pop(0)()
        if hc % 2 == 0 and hc // 2 + 2 < 7: self.dma_x(hc // 2 + 2)
        if hc + 4 < 14: self.dma_w(hc + 4)
        elif hc >= 10: self.dma_q(hc - 10)
        if top: top()
        k = 0
        for i, m in enumerate(mf):
            n = 3 if i < 4 else 0
            for r in rd[k:k + n]: r()
            k += n
            m()
        for r in rd[k:]: r()
    def pass1(self, tops):
        e = self.e
        for hc in range(14):
            self.body1(hc, tops.get(hc))
            if hc in (0, 6) and not self.o.get('fine'): self.stamp('hc%d' % hc)
        e.lg_wait('f13_0')
        for m in self.mfmas1(13, 0): m()
        e.lg_drain()
        e("s_barrier")
        m1 = self.mfmas1(13, 1)
        m1.pop(0)()
        self.dma_q(4)
        for m in m1: m()
        e("s_nop 7")

    def vm_wait_role(self, tag, opt):
        e = self.e
        nA, idx = e.vm_count([tag])
        if idx < 0: return
        nB, _ = e.vm_count([tag], include_opt=[opt])
        if nA == nB:
            e.vm_wait(tag); return
        L1, L2 = self.lab('wA'), self.lab('wD')
        e("s_cmp_eq_u32 s%d, 0" % sROLE)
        e("s_cbranch_scc0 %s" % L1)
        e("s_waitcnt vmcnt(%d)" % nB)
        e("s_branch %s" % L2)
        e.label(L1)
        e("s_waitcnt vmcnt(%d)" % nA)
        e.label(L2)
        e.vm = e.vm[idx + 1:]

    def buf2(self, kstep):
        bi = kstep & 7
        return (vF + 12 * bi) if bi < 5 else ((224 + 12 * (bi - 5)) if bi < 7 else 192)
    def reads2(self, kstep):
        e = self.e
        F = self.buf2(kstep)
        tag = 'g%d' % kstep
        items = [self.x_read(F, kstep, t, tag) for t in range(2)]
        q = kstep >> 2
        for hf in range(2):
            off = self.qslot(q) * WSL + (kstep & 3) * 2048 + 512 * hf
            items.append(lambda hf=hf, off=off: e.lds("ds_read_b64_tr_b16 %s, v%d offset:%d" % (vr(F + 8 + 2 * hf, 2), vWR2, off), tag))
        return items
    def mfmas2(self, kstep):
        e = self.e
        F = self.buf2(kstep)
        items = []
        for t in range(2):
            D = vr(acc(t, 0), 16)
            items.append(lambda D=D, t=t: e("v_mfma_f32_32x32x16_bf16 %s, %s, %s, %s" % (D, vr(F + 8, 4), vr(F + 4 * t, 4), "0" if kstep == 0 else D)))
        return items
    def pass2(self, hooks):
        e = self.e
        for q in range(7):
            e.c("---- Q projection, group %d ----" % q)
            self.vm_wait_role('q%d_w' % q, 'pub')
            e.lg_drain()
            e("s_barrier")
            mf = sum((self.mfmas2(4 * (q - 1) + k) for k in range(4)), []) if q > 0 else []
            rd = sum((self.reads2(4 * q + k) for k in range(4)), [])
            if mf: mf.pop(0)()
            if q in (1, 2): self.dma_q(q + 4)
            if q in hooks: hooks[q]()
            k = 0
            for i, m in enumerate(mf):
                n = 4 if i < 4 else 0
                for r in rd[k:k + n]: r()
                k += n
                m()
            for r in rd[k:]: r()
        for k in range(4):
            e.lg_wait('g%d' % (24 + k))
            for m in self.mfmas2(24 + k): m()
        e("s_nop 9")

    def upper_only(self, on):
        self.e("s_mov_b32 exec_lo, %s" % ("0" if on else "-1"))

    def cross_half(self, op, regs):
        e = self.e
        for v, t in regs:
            e("v_mov_b32 v%d, v%d" % (t, v))
        e("s_nop %d" % (1 if len(regs) == 1 else 0))
        for v, t in regs:
            e("v_permlane32_swap_b32 v%d, v%d" % (v, t))
        for (v, t), o in zip(regs, op):
            e("%s v%d, v%d, v%d" % (o, v, v, t))

    def one_lane_store(self, vaddr, vdata, soff_reg, tag):
        e = self.e
        e("v_mov_b32 v%d, s%d" % (vaddr, soff_reg))
        e("v_mov_b32 v%d, s%d" % (vdata, sNONCE))
        e("s_mov_b64 exec, 1")
        e.vmem("buffer_store_dword v%d, v%d, s[%d:%d], 0 offen sc1" % (vdata, vaddr, sWS, sWS + 3), tag, optional=True)
        e("s_mov_b64 exec, -1")

    def b_pack_kv(self):
        e = self.e
        e.c("---- B: pack K and V ----")
        for t in range(2):
            k, v = acc(t, 1), acc(t, 2)
            for i in range(8):
                e("v_cvt_pk_bf16_f32 v%d, v%d, v%d" % (k + i, k + 2 * i, k + 2 * i + 1))
            for i in range(8):
                e("v_cvt_pk_bf16_f32 v%d, v%d, v%d" % (v + i, v + 2 * i, v + 2 * i + 1))
        self.upper_only(True)
        for t in range(2):
            e("v_mov_b32 v%d, 0x3f80" % (acc(t, 1) + 6))
            e("v_mov_b32 v%d, 0" % (acc(t, 1) + 7))
        e("s_mov_b32 exec_lo, 0x10000000")
        e("s_mov_b32 exec_hi, 0x10000000")
        for t in range(2):
            for i in range(8):
                e("v_mov_b32 v%d, 0x3f803f80" % (acc(t, 2) + i))
        e("s_mov_b64 exec, -1")

    def b_tile_base(self):
        e = self.e
        e("s_lshl_b32 s%d, s%d, 2" % (sT, sJ))
        e("s_lshl_b32 s%d, s%d, 1" % (sT + 1, sTH))
        e("s_add_u32 s%d, s%d, s%d" % (sT, sT, sT + 1))
        e("s_lshl_b32 s%d, s%d, 6" % (sT + 1, sH1))
        e("s_add_u32 s%d, s%d, s%d" % (sT, sT, sT + 1))

    def b_store_kv(self):
        e = self.e
        L = self.lab('nokvst')
        e("s_cmp_lg_u32 s%d, 0" % sROLE)
        e("s_cbranch_scc1 %s" % L)
        self.b_tile_base()
        e("s_lshl_b32 s%d, s%d, 12" % (sT + 2, sT))
        e("s_add_u32 s%d, s%d, %d" % (sT + 2, sT + 2, KV_OFF))
        e("s_add_u32 s%d, s%d, 4096" % (sT + 3, sT + 2))
        for t in range(2):
            k, v = acc(t, 1), acc(t, 2)
            for i, r in enumerate((k, k + 4, v, v + 4)):
                e.vmem("buffer_store_dwordx4 %s, v%d, s[%d:%d], s%d offen offset:%d sc1" % (vr(r, 4), vL16, sWS, sWS + 3, sT + 2 + t, 1024 * i), 'pub', optional=True)
        e.label(L)

    def b_epilogue(self):
        e = self.e
        e.c("---- B epilogue: pack Q, stand-in row max, publish ----")
        St = [32, 48]
        self.chore_store_role('pub')
        for t in range(2):
            q = acc(t, 0)
            for i in range(8):
                e("v_pk_mul_f32 %s, %s, s[%d:%d]" % (vr(q + 2 * i, 2), vr(q + 2 * i, 2), sC, sC + 1))
            for i in range(8):
                e("v_cvt_pk_bf16_f32 v%d, v%d, v%d" % (q + i, q + 2 * i, q + 2 * i + 1))
        self.upper_only(True)
        for t in range(2):
            e("v_mov_b32 v%d, 0" % (acc(t, 0) + 6))
            e("v_mov_b32 v%d, 0" % (acc(t, 0) + 7))
        self.upper_only(False)
        self.b_tile_base()
        e("s_lshl_b32 s%d, s%d, 11" % (sT + 4, sT))
        e("s_add_u32 s%d, s%d, %d" % (sT + 4, sT + 4, QF_OFF))
        for t in range(2):
            q, k = acc(t, 0), acc(t, 1)
            e("v_mfma_f32_32x32x16_bf16 %s, %s, %s, 0" % (vr(St[t], 16), vr(k, 4), vr(q, 4)))
            e("v_mfma_f32_32x32x16_bf16 %s, %s, %s, %s" % (vr(St[t], 16), vr(k + 4, 4), vr(q + 4, 4), vr(St[t], 16)))
        for i in range(2):
            e.vmem("buffer_store_dwordx4 %s, v%d, s[%d:%d], s%d offen offset:%d sc1" % (vr(acc(0, 0), 4) if i == 0 else vr(acc(1, 0), 4), vL16, sWS, sWS + 3, sT + 4, 2048 * i), 'pub')
        e("s_nop 7")
        ms = [(vT, vT + 1), (vT + 2, vT + 3)]
        for t in range(2):
            m = ms[t][0]
            S = St[t]
            e("v_max3_f32 v%d, v%d, v%d, v%d" % (m, S, S + 1, S + 2))
            for i in range(6):
                e("v_max3_f32 v%d, v%d, v%d, v%d" % (m, m, S + 3 + 2 * i, S + 4 + 2 * i))
            e("v_max_f32 v%d, v%d, v%d" % (m, m, S + 15))
        self.cross_half(["v_max_f32", "v_max_f32"], ms)
        for t in range(2):
            e("v_sub_f32 v%d, 0x%08x, v%d" % (ms[t][0], f2u(-OFFS), ms[t][0]))
        self.upper_only(True)
        for t in range(2):
            e("v_cvt_pk_bf16_f32 v%d, v%d, 0" % (acc(t, 0) + 6, ms[t][0]))
        self.upper_only(False)
        for t in range(2):
            e.vmem("buffer_store_dwordx4 %s, v%d, s[%d:%d], s%d offen offset:%d sc1" % (vr(acc(t, 0) + 4, 4), vL16, sWS, sWS + 3, sT + 4, 2048 * t + 1024), 'pub')
        e.vm_drain()
        e("s_barrier")
        L = self.lab('sig1')
        e("s_cmp_lg_u32 s%d, 0" % sW)
        e("s_cbranch_scc1 %s" % L)
        e("s_lshl_b32 s%d, s%d, 7" % (sT, sHP))
        e("s_lshl_b32 s%d, s%d, 2" % (sT + 1, sJ))
        e("s_add_u32 s%d, s%d, s%d" % (sT, sT, sT + 1))
        e("s_add_u32 s%d, s%d, %d" % (sT, sT, F1_OFF))
        self.one_lane_store(vT + 6, vT + 7, sT, 'flag')
        e.label(L)
        self.stamp('pub')

    def chore_issue(self):
        e = self.e
        t0, t1, t2, t3 = vT, vT + 1, vT + 2, vT + 3
        R = vCH
        e("s_lshl_b32 s%d, s2, 2" % sT)
        e("s_add_u32 s%d, s%d, s%d" % (sT, sT, sW))
        e("s_lshr_b32 s%d, s%d, 9" % (sT + 1, sT))
        e("s_cmp_eq_u32 s%d, 0" % (sT + 1))
        e("s_cselect_b32 s%d, s10, s16" % sWO)
        e("s_cselect_b32 s%d, s11, s17" % (sWO + 1))
        e("s_and_b32 s%d, s%d, 0xffff" % (sWO + 1, sWO + 1))
        e("s_mov_b32 s%d, %d" % (sWO + 2, 448 * 896))
        e("s_mov_b32 s%d, 0x20000" % (sWO + 3))
        e("s_bfe_u32 s%d, s%d, 0x40005" % (sT + 1, sT))
        e("s_bfe_u32 s%d, s%d, 0x40001" % (sT + 2, sT))
        e("s_and_b32 s%d, s%d, 1" % (sT + 3, sT))
        e("s_mul_i32 s%d, s%d, 28" % (sT + 2, sT + 2))
        e("s_lshl_b32 s%d, s%d, 4" % (sT + 4, sT + 3))
        e("s_add_u32 s%d, s%d, s%d" % (sT + 2, sT + 2, sT + 4))
        e("s_mul_i32 s%d, s%d, 896" % (sT + 2, sT + 2))
        e("s_mul_i32 s%d, s%d, 56" % (sT + 1, sT + 1))
        e("s_add_u32 s%d, s%d, s%d" % (sT + 2, sT + 2, sT + 1))
        e("s_lshl_b32 s%d, s%d, 30" % (sT + 3, sT + 3))
        e("v_and_b32 v%d, 31, v0" % t0)
        e("v_lshrrev_b32 v%d, 5, v0" % t1)
        e("v_mul_u32_u24 v%d, %d, v%d" % (t2, 4 * 896, t1))
        e("v_lshl_add_u32 v%d, v%d, 1, v%d" % (t2, t0, t2))
        e("v_mul_lo_u32 v%d, v%d, s%d" % (t3, t1, sT + 3))
        e("v_add_u32 v%d, v%d, v%d" % (t3, t3, t2))
        e("v_add_u32 v%d, %d, v%d" % (t3, 8 * 896, t3))
        for j in range(8):
            e.vmem("buffer_load_ushort v%d, v%d, s[%d:%d], s%d offen offset:%d" % (R + j, t2 if j < 4 else t3, sWO, sWO + 3, sT + 2, (j & 3) * 896), 'wog')

    def chore_sentinel(self):
        e = self.e
        for k in range(4):
            e("v_mov_b32 v%d, -1" % (vT + 4 + k))
        e("s_lshl_b32 s%d, s2, 2" % sT)
        e("s_add_u32 s%d, s%d, s%d" % (sT, sT, sW))
        e("s_lshl_b32 s%d, s%d, 12" % (sT + 4, sT))
        e("s_add_u32 s%d, s%d, %d" % (sT + 4, sT + 4, OA_OFF))
        for i in range(4):
            e.vmem("buffer_store_dwordx4 v[%d:%d], v%d, s[%d:%d], s%d offen offset:%d sc1" % (vT + 4, vT + 7, vL16, sWS, sWS + 3, sT + 4, i * 1024), 'chst')

    def chore_store_role(self, opt):
        e = self.e
        R = vCH
        n, idx = e.vm_count(['wog'], include_opt=[opt] if opt else [])
        if idx >= 0:
            e("s_waitcnt vmcnt(%d)" % n)
            e.vm = e.vm[idx + 1:]
        for i in range(4):
            e("v_lshl_or_b32 v%d, v%d, 16, v%d" % (R + i, R + 2 * i + 1, R + 2 * i))
        e("s_lshl_b32 s%d, s2, 2" % sT)
        e("s_add_u32 s%d, s%d, s%d" % (sT, sT, sW))
        e("s_lshl_b32 s%d, s%d, 10" % (sT, sT))
        e("s_add_u32 s%d, s%d, %d" % (sT, sT, WOF_OFF))
        e.vmem("buffer_store_dwordx4 %s, v%d, s[%d:%d], s%d offen sc1" % (vr(R, 4), vL16, sWS, sWS + 3, sT), 'chst')

    def features2(self, a, outs, between=None):
        e = self.e
        X, Pm, Ep, En = [32, 40], [48, 64], 80, 32
        mx, mn, t0, t1, ap, an = vT + 8, vT + 9, vT + 10, vT + 11, vT + 12, vT + 14
        for t in range(2):
            for i in range(8):
                e("v_cvt_pk_bf16_f32 v%d, v%d, v%d" % (X[t] + i, a[t] + 2 * i, a[t] + 2 * i + 1))
        self.upper_only(True)
        for t in range(2):
            e("v_mov_b32 v%d, 0" % (X[t] + 6))
            e("v_mov_b32 v%d, 0" % (X[t] + 7))
        self.upper_only(False)
        e("s_nop 0")
        for t in range(2):
            e("v_mfma_f32_32x32x16_bf16 %s, %s, %s, 0" % (vr(Pm[t], 16), vr(vPH, 4), vr(X[t], 4)))
            e("v_mfma_f32_32x32x16_bf16 %s, %s, %s, %s" % (vr(Pm[t], 16), vr(vPH + 4, 4), vr(X[t] + 4, 4), vr(Pm[t], 16)))
        if between: between()
        else: e("s_nop 10")
        for t in range(2):
            P = Pm[t]
            outp, outn = outs[t]
            for i in range(8):
                e("v_pk_mul_f32 %s, %s, s[%d:%d]" % (vr(P + 2 * i, 2), vr(P + 2 * i, 2), sL2P, sL2P + 1))
            for op, r in (("v_max3_f32", mx), ("v_min3_f32", mn)):
                e("%s v%d, v%d, v%d, v%d" % (op, r, P, P + 1, P + 2))
                for i in range(6):
                    e("%s v%d, v%d, v%d, v%d" % (op, r, r, P + 3 + 2 * i, P + 4 + 2 * i))
                e("%s v%d, v%d, v%d" % (op.replace('3_', '_'), r, r, P + 15))
            self.cross_half(["v_max_f32", "v_min_f32"], [(mx, t0), (mn, t1)])
            e("v_mov_b32 v%d, v%d" % (ap, mx))
            e("v_mov_b32 v%d, v%d" % (an, mn))
            for i in range(8):
                e("v_pk_add_f32 %s, %s, %s op_sel_hi:[1,0] neg_lo:[0,1] neg_hi:[0,1]" % (vr(Ep + 2 * i, 2), vr(P + 2 * i, 2), vr(ap, 2)))
                e("v_pk_add_f32 %s, %s, %s op_sel_hi:[1,0] neg_lo:[1,0] neg_hi:[1,0]" % (vr(En + 2 * i, 2), vr(P + 2 * i, 2), vr(an, 2)))
            for r in range(16):
                e("v_exp_f32 v%d, v%d" % (Ep + r, Ep + r))
            for r in range(16):
                e("v_exp_f32 v%d, v%d" % (En + r, En + r))
            self.upper_only(True)
            for r in range(12, 16):
                e("v_mov_b32 v%d, 0" % (Ep + r))
                e("v_mov_b32 v%d, 0" % (En + r))
            self.upper_only(False)
            for E, s_ in ((Ep, mx), (En, mn)):
                A = P if E == Ep else P + 8
                for i in range(4):
                    e("v_pk_add_f32 %s, %s, %s" % (vr(A + 2 * i, 2), vr(E + 4 * i, 2), vr(E + 4 * i + 2, 2)))
                e("v_pk_add_f32 %s, %s, %s" % (vr(A, 2), vr(A, 2), vr(A + 2, 2)))
                e("v_pk_add_f32 %s, %s, %s" % (vr(A + 4, 2), vr(A + 4, 2), vr(A + 6, 2)))
                e("v_pk_add_f32 %s, %s, %s" % (vr(A, 2), vr(A, 2), vr(A + 4, 2)))
                e("v_add_f32 v%d, v%d, v%d" % (s_, A, A + 1))
            self.cross_half(["v_add_f32", "v_add_f32"], [(mx, t0), (mn, t1)])
            e("v_rcp_f32 v%d, v%d" % (ap, mx))
            e("v_rcp_f32 v%d, v%d" % (an, mn))
            e("s_nop 0")
            for i in range(8):
                e("v_pk_mul_f32 %s, %s, %s op_sel_hi:[1,0]" % (vr(Ep + 2 * i, 2), vr(Ep + 2 * i, 2), vr(ap, 2)))
            for i in range(8):
                e("v_pk_mul_f32 %s, %s, %s op_sel_hi:[1,0]" % (vr(En + 2 * i, 2), vr(En + 2 * i, 2), vr(an, 2)))
            for i in range(8):
                e("v_cvt_pk_bf16_f32 v%d, v%d, v%d" % (outp + i, Ep + 2 * i, Ep + 2 * i + 1))
            for i in range(8):
                e("v_cvt_pk_bf16_f32 v%d, v%d, v%d" % (outn + i, En + 2 * i, En + 2 * i + 1))

    def a_kfeatures(self):
        e = self.e
        e.c("---- A: key features ----")
        def packv():
            for t in range(2):
                v = acc(t, 2)
                for i in range(8):
                    e("v_cvt_pk_bf16_f32 v%d, v%d, v%d" % (v + i, v + 2 * i, v + 2 * i + 1))
            e("s_mov_b32 exec_lo, 0x10000000")
            e("s_mov_b32 exec_hi, 0x10000000")
            for t in range(2):
                for i in range(8):
                    e("v_mov_b32 v%d, 0x3f803f80" % (acc(t, 2) + i))
            e("s_mov_b64 exec, -1")
        self.features2([acc(0, 1), acc(1, 1)], [(acc(t, 1), acc(t, 1) + 8) for t in range(2)], between=packv)

    def a_epilogue(self):
        e = self.e
        e.c("---- A epilogue: kv partial, query features ----")
        t0, t1 = vT, vT + 1
        self.chore_store_role(None)
        e("v_and_b32 v%d, 31, v0" % t0)
        e("s_lshl_b32 s%d, s%d, 6" % (sT, sTH))
        e("v_add_u32 v%d, s%d, v%d" % (t0, sT, t0))
        e("v_mul_u32_u24 v%d, 72, v%d" % (t0, t0))
        e("v_lshrrev_b32 v%d, 5, v0" % t1)
        e("v_lshl_add_u32 v%d, v%d, 3, v%d" % (t0, t1, t0))
        e("s_mul_i32 s%d, s%d, %d" % (sT, sHD, 2 * 9216))
        e("v_add_u32 v%d, s%d, v%d" % (t0, sT, t0))
        e("s_lshl_b32 s%d, s%d, 13" % (sT, sHD))
        e("s_lshl_b32 s%d, s%d, 12" % (sT + 1, sTH))
        e("s_add_u32 s%d, s%d, s%d" % (sT, sT, sT + 1))
        e("s_add_u32 s%d, s%d, %d" % (sT, sT, VX))
        e("v_add_u32 v%d, s%d, v%d" % (t1, sT, vL16))
        e("s_barrier")
        for t in range(2):
            k, v = acc(t, 1), acc(t, 2)
            for sg in range(2):
                for g in range(4):
                    e.lds("ds_write_b64 v%d, %s offset:%d" % (t0, vr(k + 8 * sg + 2 * g, 2), PHI + sg * 9216 + t * 32 * 72 + 16 * g), 'phi')
            for i in range(2):
                e.lds("ds_write_b128 v%d, %s offset:%d" % (t1, vr(v + 4 * i, 4), 2048 * t + 1024 * i), 'phi')
        e.lg_drain()
        e("s_barrier")
        self.stamp('kfeat')
        e("v_lshrrev_b32 v%d, 5, v0" % t0)
        e("v_lshlrev_b32 v%d, 2, v%d" % (t0, t0))
        e("v_bfe_u32 v%d, v0, 2, 2" % t1)
        e("v_add_u32 v%d, v%d, v%d" % (t0, t0, t1))
        e("v_mul_u32_u24 v%d, 72, v%d" % (t0, t0))
        e("v_bfe_u32 v%d, v0, 4, 1" % t1)
        e("v_lshl_add_u32 v%d, v%d, 5, v%d" % (t0, t1, t0))
        e("v_and_b32 v%d, 3, v0" % t1)
        e("v_lshl_add_u32 v%d, v%d, 3, v%d" % (t0, t1, t0))
        e("s_mul_i32 s%d, s%d, 9216" % (sT, sW))
        e("v_add_u32 v%d, s%d, v%d" % (t0, sT, t0))
        e("s_lshl_b32 s%d, s%d, 13" % (sT, sHD))
        e("s_add_u32 s%d, s%d, %d" % (sT, sT, VX))
        e("v_add_u32 v%d, s%d, v%d" % (t1, sT, vL16))
        A, B, Dk = 32, 64, acc(0, 1)
        def mm(jj):
            e.lg_wait('c%d' % jj)
            e("v_mfma_f32_32x32x16_bf16 %s, %s, %s, %s" % (vr(Dk, 16), vr(A + 4 * jj, 4), vr(B + 4 * jj, 4), "0" if jj == 0 else vr(Dk, 16)))
        for T in range(4):
            for mf in range(2):
                i = 2 * T + mf
                row = 32 * T + 16 * mf
                e.lds("ds_read_b64_tr_b16 %s, v%d offset:%d" % (vr(A + 4 * i, 2), t0, row * 72), 'c%d' % i)
                e.lds("ds_read_b64_tr_b16 %s, v%d offset:%d" % (vr(A + 4 * i + 2, 2), t0, (row + 8) * 72), 'c%d' % i)
                e.lds("ds_read_b128 %s, v%d offset:%d" % (vr(B + 4 * i, 4), t1, i * 1024), 'c%d' % i)
                if i >= 3: mm(i - 3)
        for jj in range(5, 8): mm(jj)
        e("s_lshl_b32 s%d, s%d, 4" % (sT, sH1))
        e("s_add_u32 s%d, s%d, s%d" % (sT, sT, sJ))
        e("s_lshl_b32 s%d, s%d, 13" % (sT, sT))
        e("s_lshl_b32 s%d, s%d, 12" % (sT + 1, sTH))
        e("s_add_u32 s%d, s%d, s%d" % (sT, sT, sT + 1))
        e("s_add_u32 s%d, s%d, %d" % (sT, sT, PART_OFF))
        e("s_nop 7")
        for g in range(4):
            e.vmem("buffer_store_dwordx4 %s, v%d, s[%d:%d], s%d offen offset:%d sc1" % (vr(Dk + 4 * g, 4), vL16, sWS, sWS + 3, sT, g * 1024), 'part')
        self.stamp('kv')
        self.features2([acc(0, 0), acc(1, 0)], [(vPQ + 16 * t, vPQ + 16 * t + 8) for t in range(2)])
        e.vm_drain()
        e("s_lshl_b32 s%d, s%d, 7" % (sT, sH1))
        e("s_lshl_b32 s%d, s%d, 3" % (sT + 1, sJ))
        e("s_add_u32 s%d, s%d, s%d" % (sT, sT, sT + 1))
        e("s_lshl_b32 s%d, s%d, 2" % (sT + 1, sTH))
        e("s_add_u32 s%d, s%d, s%d" % (sT, sT, sT + 1))
        e("s_add_u32 s%d, s%d, %d" % (sT, sT, F2_OFF))
        self.one_lane_store(vT + 6, vT + 7, sT, 'flag')

    def flag_compare(self, e, regs):
        r = list(regs)
        if len(r) == 1:
            e("v_cmp_ne_u32 vcc, s%d, v%d" % (sNONCE, r[0]))
        else:
            for x in r:
                e("v_xor_b32 v%d, s%d, v%d" % (x, sNONCE, x))
            e("v_or3_b32 v%d, v%d, v%d, v%d" % (r[0], r[0], r[1], r[2]))
            e("v_or_b32 v%d, v%d, v%d" % (r[0], r[0], r[3]))
            e("v_cmp_ne_u32 vcc, 0, v%d" % r[0])
        e("s_nop 1")
    def flag_issue(self, name, dst, n, vaddr, soff, optional=False):
        op = "buffer_load_dwordx4 %s" % vr(dst, 4) if n == 4 else "buffer_load_dword v%d" % dst
        ld = "%s, v%d, s[%d:%d], s%d offen sc1" % (op, vaddr, sWS, sWS + 3, soff)
        self.e.vmem(ld, name, optional=optional)
        return ld
    def flag_check(self, name, ld, dst, n, keep=False):
        e = self.e
        e.vm_wait(name, keep=keep)
        back = self.lab('back_' + name)
        self.flag_compare(e, range(dst, dst + n))
        o = self.ool
        L = self.lab("spin_" + name)
        o.label(L)
        o("s_mov_b32 s%d, 0x8000" % sCNT)
        o.label(L + "_loop")
        o(ld)
        o("s_waitcnt vmcnt(0)")
        self.flag_compare(o, range(dst, dst + n))
        o("s_cbranch_vccz %s" % back)
        o("s_sub_u32 s%d, s%d, 1" % (sCNT, sCNT))
        o("s_cmp_lg_u32 s%d, 0" % sCNT)
        o("s_cbranch_scc1 %s_loop" % L)
        o("s_branch %s" % back)
        e("s_cbranch_vccnz %s" % L)
        e.label(back)

    def attn_prologue(self):
        e = self.e
        e.c("---- attention prologue ----")
        e("s_lshr_b32 s%d, s%d, 1" % (sT, sH2))
        e("s_lshl_b32 s%d, s%d, 7" % (sT2, sT))
        e("s_add_u32 s%d, s%d, %d" % (sT2, sT2, F1_OFF))
        e("v_and_b32 v%d, 15, v0" % (vT + 3))
        e("v_lshlrev_b32 v%d, 2, v%d" % (vT + 3, vT + 3))
        ld = self.flag_issue('f1', vT + 4, 1, vT + 3, sT2)
        self.flag_check('f1', ld, vT + 4, 1)
        self.stamp('f1ok')
        e("s_lshl_b32 s%d, s%d, 18" % (sKV, sH2))
        e("s_lshl_b32 s%d, s%d, 16" % (sT, sW))
        e("s_add_u32 s%d, s%d, s%d" % (sKV, sKV, sT))
        e("s_add_u32 s%d, s%d, %d" % (sKV, sKV, KV_OFF))
        e("s_lshl_b32 s%d, s%d, 6" % (sT, sH2))
        e("s_lshl_b32 s%d, s%d, 2" % (sT + 1, sJ2))
        e("s_add_u32 s%d, s%d, s%d" % (sT, sT, sT + 1))
        e("s_lshl_b32 s%d, s%d, 11" % (sT, sT))
        e("s_add_u32 s%d, s%d, %d" % (sT, sT, QF_OFF))
        for t in range(4):
            e("s_add_u32 s%d, s%d, %d" % (sT + 1, sW, t))
            e("s_and_b32 s%d, s%d, 3" % (sT + 1, sT + 1))
            e("s_lshl_b32 s%d, s%d, 11" % (sT + 1, sT + 1))
            e("s_add_u32 s%d, s%d, s%d" % (sT2 + 1 + t, sT, sT + 1))
        self.kv_loads(0)
        for t in range(4):
            for i in range(2):
                e.vmem("buffer_load_dwordx4 %s, v%d, s[%d:%d], s%d offen offset:%d sc1" % (vr(vQ + 8 * t + 4 * i, 4), vL16, sWS, sWS + 3, sT2 + 1 + t, 1024 * i), 'q%d' % t)
        for kt in range(1, NSETS - 1):
            self.kv_loads(kt)

    def kv_loads(self, kt):
        e = self.e
        base = aKV + 16 * (kt % NSETS)
        e("s_add_u32 s%d, s%d, %d" % (sSX, sKV, kt * 4096))
        for i in range(4):
            e.vmem("buffer_load_dwordx4 %s, v%d, s[%d:%d], s%d offen offset:%d sc1" % (ar(base + 4 * i, 4), vL16, sWS, sWS + 3, sSX, 1024 * i), 'kv%d' % kt)

    def qk(self, i):
        kt, t = i >> 2, i & 3
        S = vS + 16 * (i & 1)
        K = aKV + 16 * (kt % NSETS)
        return ["v_mfma_f32_32x32x16_bf16 %s, %s, %s, 0" % (vr(S, 16), ar(K, 4), vr(vQ + 8 * t, 4)),
                "v_mfma_f32_32x32x16_bf16 %s, %s, %s, %s" % (vr(S, 16), ar(K + 4, 4), vr(vQ + 8 * t + 4, 4), vr(S, 16))]
    def pv(self, i):
        kt, t = i >> 2, i & 3
        P = vP + 8 * (i & 1)
        V = aKV + 16 * (kt % NSETS) + 8
        O = vO + 16 * t
        return ["v_mfma_f32_32x32x16_bf16 %s, %s, %s, %s" % (vr(O, 16), ar(V, 4), vr(P, 4), "0" if kt == 0 else vr(O, 16)),
                "v_mfma_f32_32x32x16_bf16 %s, %s, %s, %s" % (vr(O, 16), ar(V + 4, 4), vr(P + 4, 4), vr(O, 16))]

    def attention(self):
        e = self.e
        e.c("---- attention ----")
        e.vm_wait('kv0', 'q0')
        for m in self.qk(0): e(m)
        e("s_nop 10")
        extras = self.attn_extras()
        N = 64
        for i in range(N):
            kt, t = i >> 2, i & 3
            S = vS + 16 * (i & 1)
            P = vP + 8 * (i & 1)
            if self.o.get('fine') and i in (4, 8, 12, 16, 20, 24, 28, 32, 36, 40, 48, 52, 56, 60): self.stamp('s%d' % i)
            if i < 3: e.vm_wait('q%d' % (i + 1))
            if t == 3 and kt + 1 < 16: e.vm_wait('kv%d' % (kt + 1))
            mq = self.qk(i + 1) if i + 1 < N else [None, None]
            mp = self.pv(i - 1) if i > 0 else [None, None]
            ex = lambda r: e("v_exp_f32 v%d, v%d" % (S + r, S + r))
            cv = lambda c: e("v_cvt_pk_bf16_f32 v%d, v%d, v%d" % (P + c, S + 2 * c, S + 2 * c + 1))
            def grp(g, m, seq, fill=()):
                if m: e(m)
                for f in fill: f()
                for s in seq:
                    (ex if s[0] == 'e' else cv)(s[1])
            fill = list(extras.get(i, []))
            late = []
            if t == 1 and kt + NSETS - 1 < 16:
                late = [lambda kt=kt: self.kv_loads(kt + NSETS - 1)]
            grp(0, mq[0], [('e', 0), ('e', 1), ('e', 2), ('e', 3), ('c', 0)], fill)
            grp(1, mq[1], [('e', 4), ('e', 5), ('c', 1), ('e', 6), ('e', 7), ('c', 2)], late)
            grp(2, mp[0], [('e', 8), ('e', 9), ('c', 3), ('e', 10), ('e', 11), ('c', 4)])
            grp(3, mp[1], [('e', 12), ('e', 13), ('c', 5), ('e', 14), ('e', 15), ('c', 6), ('c', 7)])
        e("s_nop 0")
        for m in self.pv(N - 1): e(m)

    def wo_loads(self, branch, ks0, n, areg):
        e = self.e
        for ks in range(ks0, ks0 + n):
            if (ks - ks0) % 4 == 0:
                e("s_add_u32 s%d, s%d, %d" % (sT2 + 6, sT2 + 5, branch * 512 * 1024 + ks * 1024))
            e.vmem("buffer_load_dwordx4 %s, v%d, s[%d:%d], s%d offen offset:%d sc1" % (ar(areg + 4 * (ks - ks0), 4), vL16, sWS, sWS + 3, sT2 + 6, ((ks - ks0) % 4) * 1024), 'wo%d' % branch)

    def attn_extras(self):
        e = self.e
        X = {}
        def add(slot, f): X.setdefault(slot, []).append(f)
        st = {}
        FA = 80
        def all_loads(em, track):
            l1 = "buffer_load_dwordx2 v[82:83], v80, s[%d:%d], s%d offen sc1" % (sWS, sWS + 3, sT2 + 7)
            l2 = "buffer_load_dwordx4 v[84:87], v%d, s[%d:%d], s%d offen sc1" % (vL16, sWS, sWS + 3, sT2 + 8)
            l3 = "buffer_load_dwordx4 v[88:91], v%d, s[%d:%d], s%d offen offset:1024 sc1" % (vL16, sWS, sWS + 3, sT2 + 8)
            for l in (l1, l2, l3):
                if track: em.vmem(l, 'fall')
                else: em(l)
        def all_cmp(em):
            for r in range(82, 92):
                em("v_xor_b32 v%d, s%d, v%d" % (r, sNONCE, r))
            em("v_or3_b32 v82, v82, v83, v84")
            em("v_or3_b32 v85, v85, v86, v87")
            em("v_or3_b32 v88, v88, v89, v90")
            em("v_or3_b32 v82, v82, v85, v88")
            em("v_or_b32 v82, v82, v91")
            em("v_cmp_ne_u32 vcc, 0, v82")
            em("s_nop 1")
        def all_issue():
            e("v_lshrrev_b32 v80, 3, v0")
            e("v_lshlrev_b32 v80, 7, v80")
            e("v_and_b32 v81, 7, v0")
            e("v_lshl_add_u32 v80, v81, 3, v80")
            e("s_mov_b32 s%d, %d" % (sT2 + 7, F1_OFF))
            e("s_mov_b32 s%d, %d" % (sT2 + 8, F2_OFF))
            all_loads(e, True)
        add(7, all_issue)
        def all_check():
            e.vm_wait('fall')
            all_cmp(e)
            back = self.lab('back_all'); L = self.lab('spin_all')
            o = self.ool
            o.label(L)
            o("s_mov_b32 s%d, 0x8000" % sCNT)
            o.label(L + "_loop")
            all_loads(o, False)
            o("s_waitcnt vmcnt(0)")
            all_cmp(o)
            o("s_cbranch_vccz %s" % back)
            o("s_sub_u32 s%d, s%d, 1" % (sCNT, sCNT))
            o("s_cmp_lg_u32 s%d, 0" % sCNT)
            o("s_cbranch_scc1 %s_loop" % L)
            o("s_branch %s" % back)
            e("s_cbranch_vccnz %s" % L)
            e.label(back)
            e("s_bfe_u32 s%d, s2, 0x20003" % (sT2 + 5))
            e("s_lshl_b32 s%d, s%d, 2" % (sT2 + 5, sT2 + 5))
            e("s_add_u32 s%d, s%d, s%d" % (sT2 + 5, sT2 + 5, sW))
            e("s_lshl_b32 s%d, s%d, 15" % (sT2 + 5, sT2 + 5))
            e("s_add_u32 s%d, s%d, %d" % (sT2 + 5, sT2 + 5, WOF_OFF))
        add(13, all_check)
        for g in range(4):
            add(18 + 4 * g, lambda g=g: self.wo_loads(0, 8 * g, 8, aWOA + 32 * g))
        for g in range(2):
            add(34 + 4 * g, lambda g=g: self.wo_loads(1, 8 * g, 8, aWOB_LO + 32 * g))
        def cond_reducer():
            L = self.lab('nored')
            e("s_lshl_b32 s%d, s%d, 2" % (sT, sROLE))
            e("s_add_u32 s%d, s%d, s%d" % (sT, sT, sW))
            e("s_sub_u32 s%d, s%d, 2" % (sT, sT))
            e("s_cmp_ge_u32 s%d, 2" % sT)
            e("s_cbranch_scc1 %s" % L)
            return L
        def red_b():
            L = cond_reducer()
            e("s_lshl_b32 s%d, s%d, 1" % (sT2 + 9, sHP))
            e("s_add_u32 s%d, s%d, s%d" % (sT2 + 9, sT2 + 9, sT))
            e("s_lshl_b32 s%d, s%d, 17" % (sT + 1, sT2 + 9))
            e("s_lshr_b32 s%d, s%d, 1" % (sT + 2, sJ))
            e("s_lshl_b32 s%d, s%d, 10" % (sT + 2, sT + 2))
            e("s_add_u32 s%d, s%d, s%d" % (sT + 1, sT + 1, sT + 2))
            e("s_and_b32 s%d, s%d, 1" % (sT + 2, sJ))
            e("s_lshl_b32 s%d, s%d, 3" % (sT + 2, sT + 2))
            e("s_add_u32 s%d, s%d, s%d" % (sT + 1, sT + 1, sT + 2))
            e("s_add_u32 s%d, s%d, %d" % (sT + 1, sT + 1, PART_OFF))
            for jj in range(16):
                if jj: e("s_add_u32 s%d, s%d, 8192" % (sT + 1, sT + 1))
                e.vmem("buffer_load_dwordx2 %s, v%d, s[%d:%d], s%d offen sc1" % (vr(vX + 2 * jj, 2), vL16, sWS, sWS + 3, sT + 1), 'red', optional=True)
            e.label(L)
        add(14, red_b)
        def red_c():
            L = cond_reducer()
            e.vm_wait('red', keep=True)
            for jj in range(1, 16):
                e("v_add_f32 v%d, v%d, v%d" % (vX, vX, vX + 2 * jj))
                e("v_add_f32 v%d, v%d, v%d" % (vX + 1, vX + 1, vX + 2 * jj + 1))
            e("v_cvt_pk_bf16_f32 v%d, v%d, v%d" % (vX, vX, vX + 1))
            e("s_lshl_b32 s%d, s%d, 12" % (sT + 1, sT2 + 9))
            e("s_lshr_b32 s%d, s%d, 2" % (sT + 2, sJ))
            e("s_lshl_b32 s%d, s%d, 10" % (sT + 2, sT + 2))
            e("s_add_u32 s%d, s%d, s%d" % (sT + 1, sT + 1, sT + 2))
            e("s_and_b32 s%d, s%d, 3" % (sT + 2, sJ))
            e("s_lshl_b32 s%d, s%d, 2" % (sT + 2, sT + 2))
            e("s_add_u32 s%d, s%d, s%d" % (sT + 1, sT + 1, sT + 2))
            e("s_add_u32 s%d, s%d, %d" % (sT + 1, sT + 1, KVF_OFF))
            e.vmem("buffer_store_dword v%d, v%d, s[%d:%d], s%d offen sc1" % (vX, vL16, sWS, sWS + 3, sT + 1), 'redst', optional=True)
            e.label(L)
        add(21, red_c)
        def red_d():
            L = cond_reducer()
            e.vm_wait('redst', keep=True)
            e("s_lshl_b32 s%d, s%d, 7" % (sT + 1, sT2 + 9))
            e("s_lshl_b32 s%d, s%d, 2" % (sT + 2, sJ))
            e("s_add_u32 s%d, s%d, s%d" % (sT + 1, sT + 1, sT + 2))
            e("s_add_u32 s%d, s%d, %d" % (sT + 1, sT + 1, F3_OFF))
            self.one_lane_store(vT + 6, vT + 7, sT + 1, 'flag')
            e.label(L)
        add(27, red_d)
        def cond_a():
            L = self.lab('noA')
            e("s_cmp_eq_u32 s%d, 0" % sROLE)
            e("s_cbranch_scc1 %s" % L)
            return L
        def f3_issue():
            L = cond_a()
            e("s_lshl_b32 s%d, s%d, 7" % (sT2 + 9, sH1))
            e("s_add_u32 s%d, s%d, %d" % (sT2 + 9, sT2 + 9, F3_OFF))
            e("v_and_b32 v%d, 15, v0" % (vT + 8))
            e("v_lshlrev_b32 v%d, 2, v%d" % (vT + 8, vT + 8))
            st['f3'] = self.flag_issue('f3', vT + 9, 1, vT + 8, sT2 + 9, optional=True)
            e.label(L)
        add(31, f3_issue)
        def f3_check():
            L = cond_a()
            self.flag_check('f3', st['f3'], vT + 9, 1, keep=True)
            e("s_lshl_b32 s%d, s%d, 12" % (sT, sH1))
            e("s_add_u32 s%d, s%d, %d" % (sT, sT, KVF_OFF))
            for i in range(4):
                e.vmem("buffer_load_dwordx4 %s, v%d, s[%d:%d], s%d offen offset:%d sc1" % (vr(vX + 4 * i, 4), vL16, sWS, sWS + 3, sT, 1024 * i), 'kvf', optional=True)
            e.label(L)
        add(37, f3_check)
        D = vX + 16
        def a2_mm(t):
            def f():
                L = cond_a()
                if t == 0: e.vm_wait('kvf', keep=True)
                for i in range(4):
                    e("v_mfma_f32_32x32x16_bf16 %s, %s, %s, %s" % (vr(D, 16), vr(vX + 4 * i, 4), vr(vPQ + 16 * t + 4 * i, 4), "0" if i == 0 else vr(D, 16)))
                e.label(L)
            return f
        def a2_fin(t):
            def f():
                L = cond_a()
                e("s_lshl_b32 s%d, s%d, 2" % (sT, sJ))
                e("s_lshl_b32 s%d, s%d, 1" % (sT + 1, sTH))
                e("s_add_u32 s%d, s%d, s%d" % (sT, sT, sT + 1))
                e("s_lshl_b32 s%d, s%d, 4" % (sT, sT))
                e("s_add_u32 s%d, s%d, s%d" % (sT, sT, sH1))
                e("s_lshl_b32 s%d, s%d, 11" % (sT, sT))
                e("s_add_u32 s%d, s%d, %d" % (sT + 3, sT, OA_OFF + 32768 * t))
                self.normalize_store(D, 1e-6, sT + 3, 'oa', optional=True)
                e.label(L)
            return f
        add(42, a2_mm(0)); add(43, a2_fin(0)); add(44, a2_mm(1)); add(45, a2_fin(1))
        add(58, lambda: self.o_loads('A', OA_OFF, OST_A, e, True))
        return X

    def op_tile(self):
        e = self.e
        e("s_lshr_b32 s%d, s2, 5" % (sT2 + 7))
        e("s_lshl_b32 s%d, s%d, 3" % (sT2 + 7, sT2 + 7))
        e("s_and_b32 s%d, s2, 7" % sT)
        e("s_add_u32 s%d, s%d, s%d" % (sT2 + 7, sT2 + 7, sT))

    def o_loads(self, name, off, ost, em, track):
        so = (sT2 + 1) if name == 'A' else (sT2 + 3)
        if track:
            e = self.e
            self.op_tile()
            e("s_lshl_b32 s%d, s%d, 15" % (sT, sT2 + 7))
            e("s_lshl_b32 s%d, s%d, 13" % (sT + 1, sW))
            e("s_add_u32 s%d, s%d, s%d" % (sT, sT, sT + 1))
            e("s_add_u32 s%d, s%d, %d" % (so, sT, off))
            e("s_add_u32 s%d, s%d, 4096" % (so + 1, so))
            e("s_add_u32 s%d, s%d, %d" % (sOL + (0 if name == 'A' else 1), sT + 1, ost))
        ml = sOL + (0 if name == 'A' else 1)
        for i in range(8):
            if i % 4 == 0:
                em("s_add_u32 m0, s%d, %d" % (ml, 4096 * (i // 4)))
                em("s_nop 0")
            s = "buffer_load_dwordx4 v%d, s[%d:%d], s%d offen offset:%d sc1 lds" % (vL16, sWS, sWS + 3, so + (i // 4), (i % 4) * 1024)
            if track: em.vmem(s, 'o' + name)
            else: em(s)

    def o_readback(self, name, R, em, track):
        ml = sOL + (0 if name == 'A' else 1)
        em("v_add_u32 v%d, s%d, v%d" % (vT + 11, ml, vL16))
        for i in range(8):
            s = "ds_read_b128 %s, v%d offset:%d" % (vr(R + 4 * i, 4), vT + 11, i * 1024)
            if track: em.lds(s, 'ob' + name)
            else: em(s)

    def o_check(self, name, off, R, ost):
        e = self.e
        back = self.lab('oback'); loop = self.lab('oloop')
        def check(em):
            em("v_max3_u32 v%d, v%d, v%d, v%d" % (vT + 10, R, R + 1, R + 2))
            for i in range(14):
                em("v_max3_u32 v%d, v%d, v%d, v%d" % (vT + 10, vT + 10, R + 3 + 2 * i, R + 4 + 2 * i))
            em("v_max_u32 v%d, v%d, v%d" % (vT + 10, vT + 10, R + 31))
            em("v_cmp_eq_u32 vcc, -1, v%d" % (vT + 10))
            em("s_nop 1")
        e.lg_wait('ob' + name)
        check(e)
        e("s_cbranch_vccnz %s" % loop)
        e.label(back)
        o = self.ool
        o.label(loop)
        o("s_mov_b32 s%d, 0x8000" % sCNT)
        o.label(loop + "_l")
        self.o_loads(name, off, ost, o, False)
        o("s_waitcnt vmcnt(0)")
        self.o_readback(name, R, o, False)
        o("s_waitcnt lgkmcnt(0)")
        check(o)
        o("s_cbranch_vccz %s" % back)
        o("s_sub_u32 s%d, s%d, 1" % (sCNT, sCNT))
        o("s_cmp_lg_u32 s%d, 0" % sCNT)
        o("s_cbranch_scc1 %s_l" % loop)
        o("s_branch %s" % back)

    def combine(self):
        e = self.e
        e.c("---- combine the four key ranges ----")
        t0 = vT
        e.vm_wait('oA')
        self.o_readback('A', vX, e, True)
        for t in range(1, 4):
            e("s_add_u32 s%d, s%d, %d" % (sT, sW, t))
            e("s_and_b32 s%d, s%d, 3" % (sT, sT))
            e("s_mul_i32 s%d, s%d, 12288" % (sT, sT))
            e("s_add_u32 s%d, s%d, %d" % (sT, sT, CB + (t - 1) * 4096))
            e("v_add_u32 v%d, s%d, v%d" % (vT + t, sT, vL16))
        e("s_mul_i32 s%d, s%d, 12288" % (sT, sW))
        e("s_add_u32 s%d, s%d, %d" % (sT, sT, CB))
        e("v_add_u32 v%d, s%d, v%d" % (vT + 4, sT, vL16))
        for t in range(1, 4):
            if t == 3: e("s_nop 3")
            for g in range(4):
                e.lds("ds_write_b128 v%d, %s offset:%d" % (vT + t, vr(vO + 16 * t + 4 * g, 4), g * 1024), 'cw')
        e("v_max3_f32 v%d, v%d, v%d, v%d" % (t0, vO + 12, vO + 28, vO + 44))
        e("v_max_f32 v%d, v%d, v%d" % (t0, t0, vO + 60))
        e("v_mov_b32 v%d, 0x%08x" % (vT + 5, f2u(LIMIT)))
        self.upper_only(True)
        e("v_cmp_nle_f32 vcc, v%d, v%d" % (t0, vT + 5))
        self.upper_only(False)
        e("s_nop 0")
        e("s_cmp_lg_u32 vcc_hi, 0")
        e("s_cselect_b32 s%d, 1, 0" % sT)
        e("v_mov_b32 v%d, s%d" % (vT + 5, sT))
        e("s_lshl_b32 s%d, s%d, 2" % (sT + 1, sW))
        e("s_add_u32 s%d, s%d, %d" % (sT + 1, sT + 1, VERD))
        e("v_mov_b32 v%d, s%d" % (vT + 6, sT + 1))
        e.lds("ds_write_b32 v%d, v%d" % (vT + 6, vT + 5), 'cw')
        self.o_check('A', OA_OFF, vX, OST_A)
        e.lg_drain()
        e("s_barrier")
        R = vS
        for idx in range(3):
            for g in range(4):
                e.lds("ds_read_b128 %s, v%d offset:%d" % (vr(R + 16 * idx + 4 * g, 4), vT + 4, idx * 4096 + g * 1024), 'cr%d' % idx)
        e("v_mov_b32 v%d, %d" % (vT + 6, VERD))
        e.lds("ds_read_b128 %s, v%d" % (vr(vT, 4), vT + 6), 'verd')
        for idx in range(3):
            e.lg_wait('cr%d' % idx)
            for i in range(8):
                e("v_pk_add_f32 %s, %s, %s" % (vr(vO + 2 * i, 2), vr(vO + 2 * i, 2), vr(R + 16 * idx + 2 * i, 2)))
        e.lg_wait('verd')
        e("v_or3_b32 v%d, v%d, v%d, v%d" % (vT, vT, vT + 1, vT + 2))
        e("v_or_b32 v%d, v%d, v%d" % (vT, vT, vT + 3))
        e("s_nop 0")
        e("v_readfirstlane_b32 s%d, v%d" % (sT, vT))
        e("s_nop 0")
        e("s_cmp_lg_u32 s%d, 0" % sT)
        e("s_cbranch_scc1 L_fallback")
        e.label("L_fallback_done")
        e("s_lshl_b32 s%d, s%d, 2" % (sT, sJ2))
        e("s_add_u32 s%d, s%d, s%d" % (sT, sT, sW))
        e("s_lshl_b32 s%d, s%d, 4" % (sT, sT))
        e("s_add_u32 s%d, s%d, s%d" % (sT, sT, sH2))
        e("s_lshl_b32 s%d, s%d, 11" % (sT, sT))
        e("s_add_u32 s%d, s%d, %d" % (sT, sT, OB_OFF))
        self.normalize_store(vO, 0.0, sT, 'ob')

    def normalize_store(self, O, eps, soff, tag, optional=False):
        e = self.e
        t, u = vT, vT + 1
        e("v_mov_b32 v%d, v%d" % (t, O + 12))
        e("v_mov_b32 v%d, v%d" % (u, O + 12))
        e("s_nop 1")
        e("v_permlane32_swap_b32 v%d, v%d" % (t, u))
        if eps:
            e("v_add_f32 v%d, 0x%08x, v%d" % (u, f2u(eps), u))
        e("v_rcp_f32 v%d, v%d" % (vT + 2, u))
        e("s_nop 0")
        for i in range(8):
            e("v_pk_mul_f32 %s, %s, %s op_sel_hi:[1,0]" % (vr(O + 2 * i, 2), vr(O + 2 * i, 2), vr(vT + 2, 2)))
        for i in range(8):
            e("v_cvt_pk_bf16_f32 v%d, v%d, v%d" % (O + i, O + 2 * i, O + 2 * i + 1))
        self.upper_only(True)
        e("v_mov_b32 v%d, 0" % (O + 6))
        e("v_mov_b32 v%d, 0" % (O + 7))
        self.upper_only(False)
        e.vmem("buffer_store_dwordx4 %s, v%d, s[%d:%d], s%d offen sc1" % (vr(O, 4), vL16, sWS, sWS + 3, soff), tag, optional=optional)
        e.vmem("buffer_store_dwordx4 %s, v%d, s[%d:%d], s%d offen offset:1024 sc1" % (vr(O + 4, 4), vL16, sWS, sWS + 3, soff), tag, optional=optional)

    def out_address(self):
        e = self.e
        self.op_tile()
        e("v_and_b32 v%d, 31, v0" % (vT + 12))
        e("s_lshl_b32 s%d, s%d, 5" % (sT, sT2 + 7))
        e("v_add_u32 v%d, s%d, v%d" % (vT + 12, sT, vT + 12))
        e("v_mul_u32_u24 v%d, 1792, v%d" % (vT + 12, vT + 12))
        e("v_lshrrev_b32 v%d, 5, v0" % (vT + 13))
        e("v_lshl_add_u32 v%d, v%d, 3, v%d" % (vT + 12, vT + 13, vT + 12))
        e("s_bfe_u32 s%d, s2, 0x20003" % sT)
        e("s_lshl_b32 s%d, s%d, 2" % (sT, sT))
        e("s_add_u32 s%d, s%d, s%d" % (sT, sT, sW))
        e("s_mul_i32 s%d, s%d, 56" % (sT2 + 9, sT))
        e("s_add_u32 s%d, s%d, 896" % (sT2 + 8, sT2 + 9))

    def outproj(self, name, ost, wreg, wtag, inloop=None, mid=None):
        e = self.e
        e.c("---- output projection %s ----" % name)
        R = vS
        e("v_add_u32 v%d, %d, v%d" % (vT + 2, ost, vL16))
        D = vO + 48
        NB = 8
        def rd(ks):
            e.lds("ds_read_b128 %s, v%d offset:%d" % (vr(R + 4 * (ks % NB), 4), vT + 2, ks * 1024), 'of%d' % ks)
        for ks in range(NB - 1): rd(ks)
        e.vm_wait(wtag)
        for ks in range(32):
            e.lg_wait('of%d' % ks)
            e("v_mfma_f32_32x32x16_bf16 %s, %s, %s, %s" % (vr(D, 16), ar(wreg(ks), 4), vr(R + 4 * (ks % NB), 4), "0" if ks == 0 else vr(D, 16)))
            if ks + NB - 1 < 32: rd(ks + NB - 1)
            if inloop and ks in inloop: inloop[ks]()
        if mid: mid()
        else: e("s_nop 11")
        for i in range(8):
            e("v_cvt_pk_bf16_f32 v%d, v%d, v%d" % (D + i, D + 2 * i, D + 2 * i + 1))
        so = sT2 + 9 if name == 'A' else sT2 + 8
        for g in range(4):
            if g == 3: e("s_mov_b32 exec_hi, 0")
            e.vmem("buffer_store_dwordx2 %s, v%d, s[%d:%d], s%d offen offset:%d" % (vr(D + 2 * g, 2), vT + 12, sOUT, sOUT + 3, so, 16 * g), 'out')
        e("s_mov_b32 exec_hi, -1")

    def fallback(self):
        o = self.ool
        o.label("L_fallback")
        o("s_branch L_fallback_done")

    def finish(self):
        e = self.e
        L = self.lab('gen')
        e("s_cmp_lg_u32 s2, 0")
        e("s_cbranch_scc1 %s" % L)
        e("s_cmp_lg_u32 s%d, 0" % sW)
        e("s_cbranch_scc1 %s" % L)
        e("v_mov_b32 v%d, s%d" % (vT + 7, sNONCE))
        e("v_mov_b32 v%d, %d" % (vT + 6, G_OFF))
        e("s_mov_b64 exec, 1")
        e.vmem("buffer_store_dword v%d, v%d, s[%d:%d], 0 offen" % (vT + 7, vT + 6, sWS, sWS + 3), 'gen', optional=True)
        e("s_mov_b64 exec, -1")
        e.label(L)
        if self.o.get('stamps'):
            self.stamp('end')
            e("s_lshl_b32 s%d, s2, 2" % sT)
            e("s_add_u32 s%d, s%d, s%d" % (sT, sT, sW))
            e("s_lshl_b32 s%d, s%d, 8" % (sT, sT))
            e("s_add_u32 s%d, s%d, %d" % (sT, sT, STAMP_OFF))
            e("v_lshlrev_b32 v%d, 2, v0" % vT)
            e.vmem("buffer_store_dword v15, v%d, s[%d:%d], s%d offen" % (vT, sWS, sWS + 3, sT), 'st')
            if self.o.get('dbg'):
                L = self.lab('dbg')
                e("s_cmp_lg_u32 s%d, 0" % sW)
                e("s_cbranch_scc1 %s" % L)
                e("s_mov_b32 s%d, s20" % sWO)
                e("s_and_b32 s%d, s21, 0xffff" % (sWO + 1))
                e("s_mov_b32 s%d, 256" % (sWO + 2))
                e("s_mov_b32 s%d, 0x20000" % (sWO + 3))
                e("v_not_b32 v%d, v15" % (vT + 1))
                e("v_cmp_eq_u32 vcc, 0, v0")
                e("s_nop 1")
                e("v_cndmask_b32 v%d, v15, v%d, vcc" % (vT + 1, vT + 1))
                e("s_mov_b32 exec_lo, 0xffff")
                e("s_mov_b32 exec_hi, 0")
                e.vmem("buffer_atomic_umax v%d, v%d, s[%d:%d], 0 offen sc1" % (vT + 1, vT, sWO, sWO + 3), 'dbg', optional=True)
                e("s_mov_b64 exec, -1")
                e.label(L)

    def build(self):
        e = self.e
        self.prologue()
        self.stamp('pro')
        def top0():
            e("s_mul_i32 s%d, s%d, 0x9E3779B1" % (sNONCE, sNONCE))
            e("s_add_u32 s%d, s%d, 0x7F4A7C15" % (sNONCE, sNONCE))
        self.pass1({0: top0, 7: self.merge_wphi})
        self.stamp('gemm1')
        e("s_cmp_eq_u32 s%d, 0" % sROLE)
        e("s_cbranch_scc0 L_roleA1")
        self.b_pack_kv()
        e("s_branch L_roles1_done")
        e.label("L_roleA1")
        self.a_kfeatures()
        e.label("L_roles1_done")
        self.stamp('epi1')
        def p3():
            self.b_store_kv()
            self.chore_sentinel()
        def p2():
            self.chore_issue()
        self.pass2({2: p2, 3: p3})
        self.stamp('gemm2')
        e("s_cmp_eq_u32 s%d, 0" % sROLE)
        e("s_cbranch_scc0 L_roleA")
        n0 = self.nstamp
        vm0, lg0 = list(e.vm), list(e.lg)
        self.b_epilogue()
        self.stamp('kvA')
        n1 = self.nstamp
        e("s_branch L_roles_done")
        e.label("L_roleA")
        e.vm, e.lg = vm0, lg0
        names = list(self.stamp_names)
        self.nstamp = n0
        self.a_epilogue()
        self.stamp_names = names
        self.nstamp = n1
        e.label("L_roles_done")
        e.vm, e.lg = [], []
        e("s_waitcnt lgkmcnt(0)")
        e("s_barrier")
        self.attn_prologue()
        self.stamp('apro')
        self.attention()
        self.stamp('attn')
        self.combine()
        self.stamp('comb')
        inl = {1: self.out_address}
        for g in range(4):
            inl[3 + 5 * g] = (lambda g=g: self.wo_loads(1, 16 + 4 * g, 4, aWOB_HI + 16 * g))
        self.outproj('A', OST_A, lambda ks: aWOA + 4 * ks, 'wo0', inloop=inl, mid=lambda: self.o_loads('B', OB_OFF, OST_B, self.e, True))
        self.stamp('opa')
        self.e.vm_wait('oB')
        self.o_readback('B', vX, self.e, True)
        self.o_check('B', OB_OFF, vX, OST_B)
        self.e("s_barrier")
        self.stamp('oB_in')
        self.outproj('B', OST_B, lambda ks: (aWOB_LO + 4 * ks) if ks < 16 else (aWOB_HI + 4 * (ks - 16)), 'wo1')
        self.finish()
        self.fallback()

    def text(self):
        self.build()
        hdr = open(os.path.join(os.path.dirname(os.path.abspath(__file__)), '..', 'cdna_kernels', NAME + '.s.ref')).read().split('\n')
        top = [l for l in hdr if l.startswith(';') and '@launch' not in l and 'Override launch' not in l and 'grid=ceil' not in l]
        out = '\n'.join(top) + '\n'
        out += "; @launch grid=(256,1,1) block=(256,1,1) lds=%d\n" % LDS_SIZE
        out += '.amdgcn_target "amdgcn-amd-amdhsa--gfx950"\n.text\n.globl %s_kernel\n.p2align 8\n.type %s_kernel,@function\n%s_kernel:\n' % (NAME, NAME, NAME)
        out += self.e.text()
        out += "L_end:\n  s_endpgm\n"
        out += self.ool.text()
        out += "L_codeend:\n  s_endpgm\n"
        out += """.section .rodata,"a"
.p2align 6
.amdhsa_kernel %s_kernel
  .amdhsa_next_free_vgpr 512
  .amdhsa_next_free_sgpr 102
  .amdhsa_accum_offset 256
  .amdhsa_group_segment_fixed_size 0
  .amdhsa_kernarg_size 80
  .amdhsa_user_sgpr_count 2
  .amdhsa_user_sgpr_kernarg_segment_ptr 1
  .amdhsa_system_sgpr_workgroup_id_x 1
.end_amdhsa_kernel
""" % NAME
        return out

if __name__ == '__main__':
    import argparse, hazard
    ap = argparse.ArgumentParser()
    ap.add_argument('-o', default=os.path.join(os.path.dirname(os.path.abspath(__file__)), '..', 'cdna_kernels', NAME + '.s'))
    ap.add_argument('--stamps', action='store_true')
    ap.add_argument('--fine', action='store_true')
    ap.add_argument('--warm', action='store_true')
    ap.add_argument('--dbg', action='store_true')
    ap.add_argument('--touch', action='store_true')
    a = ap.parse_args()
    g = Gen(dict(stamps=a.stamps, fine=a.fine, warm=a.warm, dbg=a.dbg, touch=a.touch))
    t = g.text()
    open(a.o, 'w').write(t)
    if a.stamps:
        open(a.o + '.stamps', 'w').write('\n'.join(g.stamp_names))
    body = t.split('_kernel:\n')[1].split('.section')[0]
    probs = hazard.check(body.split('\n'))
    for p in probs[:60]: print(p)
    print(len(probs), "hazard problems;", len(t), "bytes,", body.count('\n'), "lines")
```

```python
import sys, os, math, struct
sys.path.insert(0, os.path.dirname(os.path.abspath(__file__)))
from core import *

NAME = "concat_heads__linear_kernel_hedgehog__mha_block__prompt"

def f2u(x):
    return struct.unpack('<I', struct.pack('<f', x))[0]

G_OFF, F0_OFF, F1_OFF, F2_OFF, F3_OFF = 0, 0x1000, 0x2000, 0x3000, 0x4000
KVF_OFF = 0x10000
KV_OFF, PART_OFF, OA_OFF, OB_OFF, WOF_OFF, QF_OFF = 0x100000, 0x500000, 0x700000, 0x900000, 0xB00000, 0xC00000
STAMP_OFF, WS_SIZE = 0xE00000, 0xE80000
WBASE, WSL = 114688, 8192
PHI, VX = 0, 36864
CB, VERD, OST_B, OST_A = 0, 49152, 53248, 86016
MX = 49664
LDS_SIZE = 155648
sX, sWt, sPH, sWO, sWS, sOUT, sPC = 24, 28, 32, 36, 40, 44, 48
sROLE, sHP, sJ, sW, sNONCE = 52, 53, 54, 55, 56
sH2, sJ2, sTH, sHD = 57, 58, 59, 60
sXROW, sWROW, sLX, sLW, sSX, sSW = 61, 62, 63, 64, 65, 66
sC = 68
sL2P = 70
sT = 72
sKV, sCNT = 80, 81
sT2 = 82
sH1 = 92
sWROW2 = 93
sCH = 34
sFB = 100
sOL = 98
vL16 = 1
vWD, vWR1, vWR2 = 2, 13, 14
vXR = 5
vXD = 196
vT = 16
vF = 32
vPH, vRAW = 208, 216
vPQ = 224
vS, vP, vO, vQ = 32, 64, 96, 160
vX = 192
vCH = 216
NSETS = 4
aKV, aWOB_LO, aWOB_HI, aWOA = 0, 64, 0, 128

SCALE = (28.0 ** -0.5) * math.log2(math.e)
OFFS = 64.0
LIMIT = 2.0 ** 90

def acc(t, ty):
    return {1: 96, 2: 128, 0: 160}[ty] + 16 * t

class Gen:
    def __init__(self, opt):
        self.o = opt
        self.e = Em()
        self.ool = Em()
        self.nlab = 0
        self.nstamp = 0
        self.stamp_names = []
    def lab(self, p):
        self.nlab += 1
        return "L_%s_%d" % (p, self.nlab)
    def stamp(self, name, k=None):
        if not self.o.get('stamps'):
            return
        e = self.e
        if k is None:
            k = self.nstamp
            self.nstamp += 1
            self.stamp_names.append(name)
        e("s_memrealtime s[94:95]")
        e("s_memtime s[96:97]")
        e("s_waitcnt lgkmcnt(0)")
        e.lg = []
        e("v_writelane_b32 v15, s94, %d" % k)
        e("v_writelane_b32 v8, s96, %d" % k) if False else None
        e("v_writelane_b32 v15, s96, %d" % (32 + k))
        return k

    def capture(self, fn):
        old = self.e
        cap = Em()
        self.e = cap
        fn()
        self.e = old
        atoms, cur = [], None
        for l in cap.lines:
            t = l.strip()
            if cur is not None:
                cur.append(l)
                if t in ('s_mov_b32 exec_lo, -1', 's_mov_b64 exec, -1'):
                    atoms.append(cur); cur = None
            elif t.startswith('s_mov_b32 exec_lo, 0'):
                cur = [l]
            else:
                atoms.append([l])
        assert cur is None
        return atoms
    @staticmethod
    def atom_cost(a):
        c = 0
        for l in a:
            op = l.split()[0]
            if op.startswith('v_exp') or op.startswith('v_rcp') or op.startswith('v_mfma'): c += 8
            elif op == 's_nop': c += 4 * (int(l.split()[1]) + 1)
            elif op == ';': c += 0
            else: c += 4
        return c
    def pump(self, atoms, budget):
        while atoms and budget > 0:
            a = atoms.pop(0)
            self.e.lines += a
            budget -= self.atom_cost(a)

    def srd(self, s, p, n, bias=0):
        e = self.e
        if bias:
            e("s_sub_u32 s%d, s%d, %d" % (s, p, bias))
            e("s_subb_u32 s%d, s%d, 0" % (s + 1, p + 1))
            e("s_and_b32 s%d, s%d, 0xffff" % (s + 1, s + 1))
        else:
            e("s_mov_b32 s%d, s%d" % (s, p))
            e("s_and_b32 s%d, s%d, 0xffff" % (s + 1, p + 1))
        e("s_mov_b32 s%d, %d" % (s + 2, n + bias))
        e("s_mov_b32 s%d, 0x20000" % (s + 3))

    def prologue(self):
        e = self.e
        e("s_getpc_b64 s[%d:%d]" % (sPC, sPC + 1))
        e.label("L_pc")
        e("s_load_dwordx16 s[4:19], s[0:1], 0")
        e("s_load_dwordx4 s[20:23], s[0:1], 64")
        e("s_cmp_ge_u32 s2, 256")
        e("s_cbranch_scc1 L_end")
        e("s_mov_b32 s%d, L_codeend-L_pc" % (sPC + 2))
        e("s_mov_b32 s%d, 0x20000" % (sPC + 3))
        e("v_lshlrev_b32 v%d, 7, v0" % vT)
        e("v_lshrrev_b32 v%d, 6, v0" % (vT + 1))
        e.vmem("buffer_load_dword v%d, v%d, s[%d:%d], 0 offen" % (vT + 2, vT, sPC, sPC + 3), 'pf')
        e("v_add_u32 v%d, 0x8000, v%d" % (vT, vT))
        e.vmem("buffer_load_dword v%d, v%d, s[%d:%d], 0 offen" % (vT + 15, vT, sPC, sPC + 3), 'pf')
        e("v_readfirstlane_b32 s%d, v%d" % (sW, vT + 1))
        e("v_and_b32 v0, 63, v0")
        e("v_mov_b32 v%d, 0" % (vT + 8))
        e("s_mov_b32 s%d, 0" % sFB)
        if self.o.get('stamps'):
            e("v_mov_b32 v15, 0")
            self.stamp('start')
        e("s_and_b32 s%d, s2, 7" % sT)
        e("s_lshr_b32 s%d, s2, 3" % (sT + 1))
        e("s_and_b32 s%d, s%d, 1" % (sROLE, sT + 1))
        e("s_lshr_b32 s%d, s%d, 1" % (sT + 3, sT + 1))
        e("s_and_b32 s%d, s%d, 1" % (sHP, sT))
        e("s_lshl_b32 s%d, s%d, 2" % (sHP, sHP))
        e("s_and_b32 s%d, s%d, 3" % (sT + 2, sT + 3))
        e("s_add_u32 s%d, s%d, s%d" % (sHP, sHP, sT + 2))
        e("s_lshr_b32 s%d, s%d, 1" % (sJ, sT))
        e("s_lshl_b32 s%d, s%d, 2" % (sJ, sJ))
        e("s_lshr_b32 s%d, s%d, 2" % (sT + 2, sT + 3))
        e("s_add_u32 s%d, s%d, s%d" % (sJ, sJ, sT + 2))
        e("s_lshl_b32 s%d, s%d, 1" % (sH2, sT))
        e("s_and_b32 s%d, s%d, 1" % (sT + 2, sT + 1))
        e("s_add_u32 s%d, s%d, s%d" % (sH2, sH2, sT + 2))
        e("s_lshr_b32 s%d, s%d, 1" % (sJ2, sT + 1))
        e("s_and_b32 s%d, s%d, 1" % (sTH, sW))
        e("s_lshr_b32 s%d, s%d, 1" % (sHD, sW))
        e("s_lshl_b32 s%d, s%d, 1" % (sH1, sHP))
        e("s_add_u32 s%d, s%d, s%d" % (sH1, sH1, sHD))
        e("s_lshl_b32 s%d, s%d, 2" % (sT, sJ))
        e("s_add_u32 s%d, s%d, s%d" % (sT, sT, sW))
        e("s_mul_i32 s%d, s%d, %d" % (sXROW, sT, 32 * 896))
        e("s_mul_i32 s%d, s%d, 112" % (sT + 1, sHP))
        e("s_lshl_b32 s%d, s%d, 3" % (sT, sW))
        e("s_mul_i32 s%d, s%d, 2688" % (sWROW, sT))
        e("s_add_u32 s%d, s%d, s%d" % (sWROW, sWROW, sT + 1))
        e("s_add_u32 s%d, s%d, 896" % (sWROW, sWROW))
        e("s_lshl_b32 s%d, s%d, 4" % (sT, sW))
        e("s_mul_i32 s%d, s%d, 2688" % (sWROW2, sT))
        e("s_add_u32 s%d, s%d, s%d" % (sWROW2, sWROW2, sT + 1))
        e("s_lshl_b32 s%d, s%d, 12" % (sLX, sW))
        e("s_lshl_b32 s%d, s%d, 11" % (sLW, sW))
        e("s_add_u32 s%d, s%d, %d" % (sLW, sLW, WBASE))
        t0, t1, t2, t3 = vT + 3, vT + 4, vT + 5, vT + 6
        e("v_lshlrev_b32 v%d, 4, v0" % vL16)
        e("v_lshrrev_b32 v%d, 3, v0" % t0)
        e("v_lshrrev_b32 v%d, 4, v0" % t1)
        e("v_and_b32 v%d, 7, v0" % t2)
        e("v_and_b32 v%d, 1, v%d" % (t3, t1))
        e("v_lshlrev_b32 v%d, 2, v%d" % (t3, t3))
        e("v_xor_b32 v%d, v%d, v%d" % (t3, t3, t2))
        e("v_min_u32 v%d, 6, v%d" % (t3, t3))
        e("v_mul_u32_u24 v%d, 2688, v%d" % (t0, t0))
        e("v_lshl_add_u32 v%d, v%d, 4, v%d" % (t0, t3, t0))
        e("v_add_u32 v%d, 256, v%d" % (vWD, t0))
        e("v_add_u32 v%d, 128, v%d" % (vWD + 1, t0))
        e("v_add_u32 v%d, %d, v%d" % (vWD + 2, 256 + 8 * 2688 - 1024, t0))
        e("v_lshrrev_b32 v%d, 3, v0" % t0)
        e("v_mul_u32_u24 v%d, 896, v%d" % (t0, t0))
        for i in range(4):
            if i < 2:
                e("v_add_u32 v%d, %d, v%d" % (t3, 4 * i, t1))
                e("v_xor_b32 v%d, v%d, v%d" % (t3, t3, t2))
                e("v_lshl_add_u32 v%d, v%d, 4, v%d" % (vXD + i, t3, t0))
                if i:
                    e("v_add_u32 v%d, %d, v%d" % (vXD + i, 6144 * i, vXD + i))
            else:
                e("v_add_u32 v%d, %d, v%d" % (vXD + i, 2 * 6144, vXD + i - 2))
        e("s_waitcnt lgkmcnt(0)")
        e("s_cmp_eq_u32 s%d, 0" % sROLE)
        e("s_cselect_b32 s%d, s12, s4" % sT)
        e("s_cselect_b32 s%d, s13, s5" % (sT + 1))
        e("s_cselect_b32 s%d, s14, s6" % (sT + 2))
        e("s_cselect_b32 s%d, s15, s7" % (sT + 3))
        self.srd(sX, sT, 2048 * 896)
        self.srd(sWt, sT + 2, 448 * 2688, bias=256)
        if self.o.get('warm'): self.input_prefetch()
        self.dma_x(0); self.dma_w(0); self.dma_w(1)
        self.srd(sWS, 22, WS_SIZE)
        e("s_load_dword s%d, s[22:23], %d" % (sNONCE, G_OFF))
        self.dma_x(1); self.dma_w(2); self.dma_w(3)
        self.srd(sPH, 8, 16 * 28 * 28 * 2)
        self.srd(sOUT, 18, 2048 * 896 * 2)
        e("v_and_b32 v%d, 31, v0" % t0)
        e("v_lshrrev_b32 v%d, 5, v0" % t1)
        e("s_lshl_b32 s%d, s%d, 6" % (sT, sTH))
        e("v_add_u32 v%d, s%d, v%d" % (t2, sT, t0))
        e("v_lshlrev_b32 v%d, 7, v%d" % (t2, t2))
        e("v_bfe_u32 v%d, v0, 1, 3" % t3)
        e("v_xor_b32 v%d, v%d, v%d" % (t3, t3, t1))
        for s_ in range(4):
            e("v_xor_b32 v%d, %d, v%d" % (vT + 7, 2 * s_, t3))
            e("v_lshl_add_u32 v%d, v%d, 4, v%d" % (vXR + s_, vT + 7, t2))
            e("v_add_u32 v%d, 65536, v%d" % (vXR + 4 + s_, vXR + s_))
        e("v_bfe_u32 v%d, v0, 4, 1" % t2)
        e("v_lshlrev_b32 v%d, 5, v%d" % (t2, t2))
        e("v_and_b32 v%d, 3, v0" % t3)
        e("v_lshl_add_u32 v%d, v%d, 3, v%d" % (t2, t3, t2))
        e("s_mul_i32 s%d, s%d, 56" % (sT, sHD))
        e("v_add_u32 v%d, s%d, v%d" % (t2, sT, t2))
        e("v_bfe_u32 v%d, v0, 3, 1" % t3)
        e("v_lshlrev_b32 v%d, 6, v%d" % (t3, t3))
        e("v_xor_b32 v%d, v%d, v%d" % (t2, t2, t3))
        e("v_bfe_u32 v%d, v0, 2, 2" % t3)
        e("v_lshl_add_u32 v%d, v%d, 7, v%d" % (t2, t3, t2))
        e("v_add_u32 v%d, %d, v%d" % (t2, WBASE, t2))
        e("v_lshl_add_u32 v%d, v%d, 11, v%d" % (vWR1, t1, t2))
        e("v_lshl_add_u32 v%d, v%d, 10, v%d" % (vWR2, t1, t2))
        e("s_mov_b32 s%d, 0x%08x" % (sC, f2u(SCALE)))
        e("s_mov_b32 s%d, 0x%08x" % (sC + 1, f2u(SCALE)))
        e("s_mov_b32 s%d, 0x%08x" % (sL2P, f2u(math.log2(math.e))))
        e("s_mov_b32 s%d, 0x%08x" % (sL2P + 1, f2u(math.log2(math.e))))
        e("v_min_u32 v%d, 27, v%d" % (t2, t0))
        e("v_mul_u32_u24 v%d, %d, v%d" % (t3, 4 * 28, t1))
        e("v_add_u32 v%d, v%d, v%d" % (t2, t2, t3))
        e("v_lshlrev_b32 v%d, 1, v%d" % (t2, t2))
        e("s_mul_i32 s%d, s%d, 1568" % (sT, sH1))
        for mf in range(2):
            for j in range(8):
                d = 16 * mf + (j & 3) + 8 * (j >> 2)
                e.vmem("buffer_load_ushort v%d, v%d, s[%d:%d], s%d offen offset:%d" % (vRAW + 8 * mf + j, t2, sPH, sPH + 3, sT, d * 56), 'wphi')

    def input_prefetch(self):
        e = self.e
        S = sWO
        e("s_lshl_b32 s%d, s2, 2" % sT)
        e("s_add_u32 s%d, s%d, s%d" % (sT, sT, sW))
        segs = [(14, 448 * 2688), (6, 448 * 2688), (12, 2048 * 896), (4, 2048 * 896), (16, 448 * 896), (10, 448 * 896)]
        start = 0
        L = self.lab('pfdone')
        labs = [self.lab('pfseg') for _ in segs]
        for (p, n), lb in zip(segs, labs):
            cnt = (n + 8191) // 8192
            e("s_cmp_lt_u32 s%d, %d" % (sT, start + cnt))
            e("s_cselect_b32 s%d, 1, 0" % (sT + 1))
            e("s_cbranch_scc0 %s" % lb)
            e("s_mov_b32 s%d, s%d" % (S, p))
            e("s_and_b32 s%d, s%d, 0xffff" % (S + 1, p + 1))
            e("s_mov_b32 s%d, %d" % (S + 2, n))
            e("s_sub_u32 s%d, s%d, %d" % (sT + 2, sT, start))
            e("s_branch %s" % (L + "_go"))
            e.label(lb)
            start += cnt
        e("s_branch %s" % L)
        e.label(L + "_go")
        e("s_mov_b32 s%d, 0x20000" % (S + 3))
        e("s_lshl_b32 s%d, s%d, 13" % (sT + 2, sT + 2))
        e("v_lshlrev_b32 v%d, 7, v0" % (vT + 9))
        e.vmem("buffer_load_dword v%d, v%d, s[%d:%d], s%d offen" % (vT + 10, vT + 9, S, S + 3, sT + 2), 'pf2', optional=True)
        e.label(L)

    def merge_wphi(self):
        e = self.e
        e.vm_wait('wphi')
        for i in range(8):
            e("v_lshl_or_b32 v%d, v%d, 16, v%d" % (vPH + i, vRAW + 2 * i + 1, vRAW + 2 * i))

    def dma_x(self, c):
        e = self.e
        e("s_add_u32 m0, s%d, %d" % (sLX, c * 16384))
        e("s_add_u32 s%d, s%d, %d" % (sSX, sXROW, c * 128))
        for i in range(4):
            e.vmem("buffer_load_dwordx4 v%d, s[%d:%d], s%d offen offset:%d lds" % (vXD + i, sX, sX + 3, sSX, 1024 * i), 'x%d' % c)
    def dma_w(self, hc):
        e = self.e
        e("s_add_u32 m0, s%d, %d" % (sLW, (hc % 5) * WSL))
        e("s_add_u32 s%d, s%d, %d" % (sSW, sWROW, hc * 32 * 2688))
        for ty in range(2):
            e.vmem("buffer_load_dwordx4 v%d, s[%d:%d], s%d offen offset:%d lds" % (vWD + ty, sWt, sWt + 3, sSW, 1024 * ty), 'w%d' % hc)
    def qslot(self, q): return (q + 4) % 5
    def dma_q(self, q):
        e = self.e
        e("s_add_u32 m0, s%d, %d" % (sLW, self.qslot(q) * WSL))
        e("s_add_u32 s%d, s%d, %d" % (sSW, sWROW2, q * 64 * 2688))
        e.vmem("buffer_load_dwordx4 v%d, s[%d:%d], s%d offen lds" % (vWD, sWt, sWt + 3, sSW), 'q%d_w' % q)
        e.vmem("buffer_load_dwordx4 v%d, s[%d:%d], s%d offen offset:1024 lds" % (vWD + 2, sWt, sWt + 3, sSW), 'q%d_w' % q)

    def x_read(self, F, kstep, t, tag):
        c, s_ = kstep >> 2, kstep & 3
        reg, rel = (vXR + s_, c * 16384) if c < 4 else (vXR + 4 + s_, (c - 4) * 16384)
        return lambda: self.e.lds("ds_read_b128 %s, v%d offset:%d" % (vr(F + 4 * t, 4), reg, rel + 4096 * t), tag)

    def reads1(self, hc, ks):
        e = self.e
        F = vF + 16 * (2 * (hc & 1) + ks)
        tag = 'f%d_%d' % (hc, ks)
        items = [self.x_read(F, 2 * hc + ks, t, tag) for t in range(2)]
        for ty in range(2):
            for hf in range(2):
                off = (hc % 5) * WSL + ks * 4096 + ty * 1024 + 512 * hf
                items.append(lambda ty=ty, hf=hf, off=off: e.lds("ds_read_b64_tr_b16 %s, v%d offset:%d" % (vr(F + 8 + 4 * ty + 2 * hf, 2), vWR1, off), tag))
        return items
    def mfmas1(self, hc, ks):
        e = self.e
        F = vF + 16 * (2 * (hc & 1) + ks)
        first = (hc == 0 and ks == 0)
        items = []
        for t in range(2):
            D = vr(acc(t, 1), 16)
            items.append(lambda D=D, t=t: e("v_mfma_f32_32x32x16_bf16 %s, %s, %s, %s" % (D, vr(F + 8, 4), vr(F + 4 * t, 4), "0" if first else D)))
        for t in range(2):
            D = vr(acc(t, 2), 16)
            items.append(lambda D=D, t=t: e("v_mfma_f32_32x32x16_bf16 %s, %s, %s, %s" % (D, vr(F + 4 * t, 4), vr(F + 12, 4), "0" if first else D)))
        return items
    def body1(self, hc, top=None):
        e = self.e
        e.c("---- K/V projection, half chunk %d ----" % hc)
        e.vm_wait('w%d' % hc, 'x%d' % (hc >> 1))
        e.lg_drain()
        e("s_barrier")
        mf = (self.mfmas1(hc - 1, 0) + self.mfmas1(hc - 1, 1)) if hc > 0 else []
        rd = self.reads1(hc, 0) + self.reads1(hc, 1)
        if mf: mf.pop(0)()
        if hc % 2 == 0 and hc // 2 + 2 < 7: self.dma_x(hc // 2 + 2)
        if hc + 4 < 14: self.dma_w(hc + 4)
        elif hc >= 10: self.dma_q(hc - 10)
        if top: top()
        k = 0
        for i, m in enumerate(mf):
            n = 3 if i < 4 else 0
            for r in rd[k:k + n]: r()
            k += n
            m()
        for r in rd[k:]: r()
    def pass1(self, tops):
        e = self.e
        for hc in range(14):
            self.body1(hc, tops.get(hc))
            if hc in (0, 6) and not self.o.get('fine'): self.stamp('hc%d' % hc)
        e.lg_wait('f13_0')
        for m in self.mfmas1(13, 0): m()
        e.lg_drain()
        e("s_barrier")
        m1 = self.mfmas1(13, 1)
        m1.pop(0)()
        self.dma_q(4)
        for m in m1: m()
        e("s_nop 7")

    def vm_wait_role(self, tag, opt):
        e = self.e
        nA, idx = e.vm_count([tag])
        if idx < 0: return
        nB, _ = e.vm_count([tag], include_opt=[opt])
        if nA == nB:
            e.vm_wait(tag); return
        L1, L2 = self.lab('wA'), self.lab('wD')
        e("s_cmp_eq_u32 s%d, 0" % sROLE)
        e("s_cbranch_scc0 %s" % L1)
        e("s_waitcnt vmcnt(%d)" % nB)
        e("s_branch %s" % L2)
        e.label(L1)
        e("s_waitcnt vmcnt(%d)" % nA)
        e.label(L2)
        e.vm = e.vm[idx + 1:]

    def buf2(self, kstep):
        return 12 * (kstep & 7)
    def reads2(self, kstep):
        e = self.e
        F = self.buf2(kstep)
        tag = 'g%d' % kstep
        c, s_ = kstep >> 2, kstep & 3
        reg, rel = (vXR + s_, c * 16384) if c < 4 else (vXR + 4 + s_, (c - 4) * 16384)
        items = [(lambda t=t: e.lds("ds_read_b128 %s, v%d offset:%d" % (ar(F + 4 * t, 4), reg, rel + 4096 * t), tag)) for t in range(2)]
        q = kstep >> 2
        for hf in range(2):
            off = self.qslot(q) * WSL + (kstep & 3) * 2048 + 512 * hf
            items.append(lambda hf=hf, off=off: e.lds("ds_read_b64_tr_b16 %s, v%d offset:%d" % (ar(F + 8 + 2 * hf, 2), vWR2, off), tag))
        return items
    def mfmas2(self, kstep):
        e = self.e
        F = self.buf2(kstep)
        items = []
        for t in range(2):
            D = vr(acc(t, 0), 16)
            items.append(lambda D=D, t=t: e("v_mfma_f32_32x32x16_bf16 %s, %s, %s, %s" % (D, ar(F + 8, 4), ar(F + 4 * t, 4), "0" if kstep == 0 else D)))
        return items
    def pass2(self, side, budget, after=None):
        e = self.e
        n = 0
        for q in range(7):
            e.c("---- Q projection, group %d ----" % q)
            e.vm_wait('q%d_w' % q)
            e.lg_drain()
            e("s_barrier")
            mf = sum((self.mfmas2(4 * (q - 1) + k) for k in range(4)), []) if q > 0 else []
            rd = sum((self.reads2(4 * q + k) for k in range(4)), [])
            if mf: mf.pop(0)()
            if q in (1, 2): self.dma_q(q + 4)
            k = 0
            for i, m in enumerate(mf):
                nr = 4 if i < 4 else 0
                for r in rd[k:k + nr]: r()
                k += nr
                self.pump(side, budget)
                m()
                n += 1
                if after and n in after:
                    assert not side
                    after[n]()
            for r in rd[k:]: r()
            self.pump(side, budget if q else 4 * budget)
        for k in range(4):
            e.lg_wait('g%d' % (24 + k))
            for m in self.mfmas2(24 + k):
                m()
                self.pump(side, budget)
        self.pump(side, 1 << 30)
        e("s_nop 10")

    def upper_only(self, on):
        self.e("s_mov_b32 exec_lo, %s" % ("0" if on else "-1"))

    def cross_half(self, op, regs):
        e = self.e
        for v, t in regs:
            e("v_mov_b32 v%d, v%d" % (t, v))
        e("s_nop %d" % (1 if len(regs) == 1 else 0))
        for v, t in regs:
            e("v_permlane32_swap_b32 v%d, v%d" % (v, t))
        for (v, t), o in zip(regs, op):
            e("%s v%d, v%d, v%d" % (o, v, v, t))

    def one_lane_store(self, vaddr, vdata, soff_reg, tag):
        e = self.e
        e("v_mov_b32 v%d, s%d" % (vaddr, soff_reg))
        e("v_mov_b32 v%d, s%d" % (vdata, sNONCE))
        e("s_mov_b64 exec, 1")
        e.vmem("buffer_store_dword v%d, v%d, s[%d:%d], 0 offen sc1" % (vdata, vaddr, sWS, sWS + 3), tag, optional=True)
        e("s_mov_b64 exec, -1")

    def b_pack_kv(self):
        e = self.e
        e.c("---- B: pack K and V ----")
        for t in range(2):
            k, v = acc(t, 1), acc(t, 2)
            for i in range(8):
                e("v_cvt_pk_bf16_f32 v%d, v%d, v%d" % (k + i, k + 2 * i, k + 2 * i + 1))
            for i in range(8):
                e("v_cvt_pk_bf16_f32 v%d, v%d, v%d" % (v + i, v + 2 * i, v + 2 * i + 1))
        self.upper_only(True)
        for t in range(2):
            e("v_mov_b32 v%d, 0x3f80" % (acc(t, 1) + 6))
            e("v_mov_b32 v%d, 0" % (acc(t, 1) + 7))
        e("s_mov_b32 exec_lo, 0x10000000")
        e("s_mov_b32 exec_hi, 0x10000000")
        for t in range(2):
            for i in range(8):
                e("v_mov_b32 v%d, 0x3f803f80" % (acc(t, 2) + i))
        e("s_mov_b64 exec, -1")

    def b_tile_base(self):
        e = self.e
        e("s_lshl_b32 s%d, s%d, 2" % (sT, sJ))
        e("s_lshl_b32 s%d, s%d, 1" % (sT + 1, sTH))
        e("s_add_u32 s%d, s%d, s%d" % (sT, sT, sT + 1))
        e("s_lshl_b32 s%d, s%d, 6" % (sT + 1, sH1))
        e("s_add_u32 s%d, s%d, s%d" % (sT, sT, sT + 1))

    def b_store_items(self):
        e = self.e
        def setup():
            self.b_tile_base()
            e("s_lshl_b32 s%d, s%d, 12" % (sT + 2, sT))
            e("s_add_u32 s%d, s%d, %d" % (sT + 2, sT + 2, KV_OFF))
            e("s_add_u32 s%d, s%d, 4096" % (sT + 3, sT + 2))
        items = []
        for t in range(2):
            k, v = acc(t, 1), acc(t, 2)
            for i, r in enumerate((k, k + 4, v, v + 4)):
                items.append(lambda r=r, t=t, i=i: e.vmem("buffer_store_dwordx4 %s, v%d, s[%d:%d], s%d offen offset:%d sc1" % (vr(r, 4), vL16, sWS, sWS + 3, sT + 2 + t, 1024 * i), 'pub'))
        return setup, items

    def b_epilogue(self):
        e = self.e
        e.c("---- B epilogue: pack Q, stand-in row max, publish ----")
        St = [32, 48]
        for t in range(2):
            q = acc(t, 0)
            for i in range(8):
                e("v_pk_mul_f32 %s, %s, s[%d:%d]" % (vr(q + 2 * i, 2), vr(q + 2 * i, 2), sC, sC + 1))
            for i in range(8):
                e("v_cvt_pk_bf16_f32 v%d, v%d, v%d" % (q + i, q + 2 * i, q + 2 * i + 1))
        self.upper_only(True)
        for t in range(2):
            e("v_mov_b32 v%d, 0" % (acc(t, 0) + 6))
            e("v_mov_b32 v%d, 0" % (acc(t, 0) + 7))
        self.upper_only(False)
        self.b_tile_base()
        e("s_lshl_b32 s%d, s%d, 11" % (sT + 4, sT))
        e("s_add_u32 s%d, s%d, %d" % (sT + 4, sT + 4, QF_OFF))
        for t in range(2):
            q, k = acc(t, 0), acc(t, 1)
            e("v_mfma_f32_32x32x16_bf16 %s, %s, %s, 0" % (vr(St[t], 16), vr(k, 4), vr(q, 4)))
            e("v_mfma_f32_32x32x16_bf16 %s, %s, %s, %s" % (vr(St[t], 16), vr(k + 4, 4), vr(q + 4, 4), vr(St[t], 16)))
        for i in range(2):
            e.vmem("buffer_store_dwordx4 %s, v%d, s[%d:%d], s%d offen offset:%d sc1" % (vr(acc(0, 0), 4) if i == 0 else vr(acc(1, 0), 4), vL16, sWS, sWS + 3, sT + 4, 2048 * i), 'pub')
        e("s_nop 7")
        ms = [(vT, vT + 1), (vT + 2, vT + 3)]
        for t in range(2):
            m = ms[t][0]
            S = St[t]
            e("v_max3_f32 v%d, v%d, v%d, v%d" % (m, S, S + 1, S + 2))
            for i in range(6):
                e("v_max3_f32 v%d, v%d, v%d, v%d" % (m, m, S + 3 + 2 * i, S + 4 + 2 * i))
            e("v_max_f32 v%d, v%d, v%d" % (m, m, S + 15))
        self.cross_half(["v_max_f32", "v_max_f32"], ms)
        for t in range(2):
            e("v_sub_f32 v%d, 0x%08x, v%d" % (ms[t][0], f2u(-OFFS), ms[t][0]))
        self.upper_only(True)
        for t in range(2):
            e("v_cvt_pk_bf16_f32 v%d, v%d, 0" % (acc(t, 0) + 6, ms[t][0]))
        self.upper_only(False)
        for t in range(2):
            e.vmem("buffer_store_dwordx4 %s, v%d, s[%d:%d], s%d offen offset:%d sc1" % (vr(acc(t, 0) + 4, 4), vL16, sWS, sWS + 3, sT + 4, 2048 * t + 1024), 'pub')
        e.vm_drain()
        e("s_barrier")
        L = self.lab('sig1')
        e("s_cmp_lg_u32 s%d, 0" % sW)
        e("s_cbranch_scc1 %s" % L)
        e("s_lshl_b32 s%d, s%d, 7" % (sT, sHP))
        e("s_lshl_b32 s%d, s%d, 2" % (sT + 1, sJ))
        e("s_add_u32 s%d, s%d, s%d" % (sT, sT, sT + 1))
        e("s_add_u32 s%d, s%d, %d" % (sT, sT, F1_OFF))
        self.one_lane_store(vT + 6, vT + 7, sT, 'flag')
        e.label(L)
        self.stamp('pub')

    def chores(self):
        e = self.e
        e.c("---- chores: Wo fragments, sentinels ----")
        t0, t1, t2, t3 = vT, vT + 1, vT + 2, vT + 5
        R = 32
        e("s_lshl_b32 s%d, s%d, 4" % (sT, sHP))
        e("s_add_u32 s%d, s%d, s%d" % (sT, sT, sJ))
        e("s_lshl_b32 s%d, s%d, 2" % (sT, sT))
        e("s_add_u32 s%d, s%d, s%d" % (sT, sT, sW))
        e("s_lshr_b32 s%d, s%d, 8" % (sT + 1, sT))
        e("s_cmp_eq_u32 s%d, 0" % (sT + 1))
        e("s_cselect_b32 s%d, s10, s16" % sWO)
        e("s_cselect_b32 s%d, s11, s17" % (sWO + 1))
        e("s_and_b32 s%d, s%d, 0xffff" % (sWO + 1, sWO + 1))
        e("s_mov_b32 s%d, %d" % (sWO + 2, 448 * 896))
        e("s_mov_b32 s%d, 0x20000" % (sWO + 3))
        e("s_bfe_u32 s%d, s%d, 0x40004" % (sT + 1, sT))
        e("s_and_b32 s%d, s%d, 15" % (sT + 2, sT))
        e("s_mul_i32 s%d, s%d, %d" % (sT + 2, sT + 2, 28 * 896))
        e("s_mul_i32 s%d, s%d, 56" % (sT + 1, sT + 1))
        e("s_add_u32 s%d, s%d, s%d" % (sT + 2, sT + 2, sT + 1))
        e("v_and_b32 v%d, 31, v0" % t0)
        e("v_lshrrev_b32 v%d, 5, v0" % t1)
        e("v_mul_u32_u24 v%d, %d, v%d" % (t2, 4 * 896, t1))
        e("v_lshl_add_u32 v%d, v%d, 1, v%d" % (t2, t0, t2))
        e("v_lshlrev_b32 v%d, 30, v%d" % (t3, t1))
        e("v_add_u32 v%d, v%d, v%d" % (t3, t3, t2))
        for mf in range(2):
            for half in range(2):
                rows = 16 * mf + 8 * half
                e("s_add_u32 s%d, s%d, %d" % (sT + 3, sT + 2, rows * 896))
                va = t3 if (mf == 1 and half == 1) else t2
                for jx in range(4):
                    e.vmem("buffer_load_ushort v%d, v%d, s[%d:%d], s%d offen offset:%d" % (R + 8 * mf + 4 * half + jx, va, sWO, sWO + 3, sT + 3, jx * 896), 'wog')
        e.vm_wait('wog')
        for i in range(8):
            e("v_lshl_or_b32 v%d, v%d, 16, v%d" % (84 + i, R + 2 * i + 1, R + 2 * i))
        for k in range(4):
            e("v_mov_b32 v%d, -1" % (92 + k))
        e("s_lshl_b32 s%d, s%d, 13" % (sCH, sT))
        e("s_add_u32 s%d, s%d, %d" % (sCH, sCH, OA_OFF))
        e("s_lshl_b32 s%d, s%d, 11" % (sCH + 1, sT))
        e("s_add_u32 s%d, s%d, %d" % (sCH + 1, sCH + 1, WOF_OFF))

    def chore_store(self, k):
        e = self.e
        L = self.lab('nochst')
        e("s_cmp_lg_u32 s%d, 0" % sROLE)
        e("s_cbranch_scc1 %s" % L)
        if k < 2:
            e.vmem("buffer_store_dwordx4 %s, v%d, s[%d:%d], s%d offen offset:%d sc1" % (vr(84 + 4 * k, 4), vL16, sWS, sWS + 3, sCH + 1, 1024 * k), 'chst', optional=True)
        else:
            i = k - 2
            if i == 4: e("s_add_u32 s%d, s%d, 4096" % (sCH, sCH))
            e.vmem("buffer_store_dwordx4 v[92:95], v%d, s[%d:%d], s%d offen offset:%d sc1" % (vL16, sWS, sWS + 3, sCH, (i % 4) * 1024), 'chst', optional=True)
        e.label(L)

    def f1_issue(self):
        e = self.e
        e("s_lshr_b32 s%d, s%d, 1" % (sT2, sH2))
        e("s_lshl_b32 s%d, s%d, 7" % (sT2, sT2))
        e("s_add_u32 s%d, s%d, %d" % (sT2, sT2, F1_OFF))
        e("v_and_b32 v%d, 15, v0" % (vT + 3))
        e("v_lshlrev_b32 v%d, 2, v%d" % (vT + 3, vT + 3))
        self.f1_ld = self.flag_issue('f1', vT + 4, 1, vT + 3, sT2)

    def features2(self, a, outs, between=None):
        e = self.e
        X, Pm, Ep, En = [32, 40], [48, 64], 80, 32
        mx, mn, t0, t1, ap, an = vT + 8, vT + 9, vT + 10, vT + 11, vT + 12, vT + 14
        for t in range(2):
            for i in range(8):
                e("v_cvt_pk_bf16_f32 v%d, v%d, v%d" % (X[t] + i, a[t] + 2 * i, a[t] + 2 * i + 1))
        self.upper_only(True)
        for t in range(2):
            e("v_mov_b32 v%d, 0" % (X[t] + 6))
            e("v_mov_b32 v%d, 0" % (X[t] + 7))
        self.upper_only(False)
        e("s_nop 0")
        for t in range(2):
            e("v_mfma_f32_32x32x16_bf16 %s, %s, %s, 0" % (vr(Pm[t], 16), vr(vPH, 4), vr(X[t], 4)))
            e("v_mfma_f32_32x32x16_bf16 %s, %s, %s, %s" % (vr(Pm[t], 16), vr(vPH + 4, 4), vr(X[t] + 4, 4), vr(Pm[t], 16)))
        if between: between()
        else: e("s_nop 10")
        for t in range(2):
            P = Pm[t]
            outp, outn = outs[t]
            for i in range(8):
                e("v_pk_mul_f32 %s, %s, s[%d:%d]" % (vr(P + 2 * i, 2), vr(P + 2 * i, 2), sL2P, sL2P + 1))
            for op, r in (("v_max3_f32", mx), ("v_min3_f32", mn)):
                e("%s v%d, v%d, v%d, v%d" % (op, r, P, P + 1, P + 2))
                for i in range(6):
                    e("%s v%d, v%d, v%d, v%d" % (op, r, r, P + 3 + 2 * i, P + 4 + 2 * i))
                e("%s v%d, v%d, v%d" % (op.replace('3_', '_'), r, r, P + 15))
            self.cross_half(["v_max_f32", "v_min_f32"], [(mx, t0), (mn, t1)])
            e("v_mov_b32 v%d, v%d" % (ap, mx))
            e("v_mov_b32 v%d, v%d" % (an, mn))
            for i in range(8):
                e("v_pk_add_f32 %s, %s, %s op_sel_hi:[1,0] neg_lo:[0,1] neg_hi:[0,1]" % (vr(Ep + 2 * i, 2), vr(P + 2 * i, 2), vr(ap, 2)))
                e("v_pk_add_f32 %s, %s, %s op_sel_hi:[1,0] neg_lo:[1,0] neg_hi:[1,0]" % (vr(En + 2 * i, 2), vr(P + 2 * i, 2), vr(an, 2)))
            for r in range(16):
                e("v_exp_f32 v%d, v%d" % (Ep + r, Ep + r))
            for r in range(16):
                e("v_exp_f32 v%d, v%d" % (En + r, En + r))
            self.upper_only(True)
            for r in range(12, 16):
                e("v_mov_b32 v%d, 0" % (Ep + r))
                e("v_mov_b32 v%d, 0" % (En + r))
            self.upper_only(False)
            for E, s_ in ((Ep, mx), (En, mn)):
                A = P if E == Ep else P + 8
                for i in range(4):
                    e("v_pk_add_f32 %s, %s, %s" % (vr(A + 2 * i, 2), vr(E + 4 * i, 2), vr(E + 4 * i + 2, 2)))
                e("v_pk_add_f32 %s, %s, %s" % (vr(A, 2), vr(A, 2), vr(A + 2, 2)))
                e("v_pk_add_f32 %s, %s, %s" % (vr(A + 4, 2), vr(A + 4, 2), vr(A + 6, 2)))
                e("v_pk_add_f32 %s, %s, %s" % (vr(A, 2), vr(A, 2), vr(A + 4, 2)))
                e("v_add_f32 v%d, v%d, v%d" % (s_, A, A + 1))
            self.cross_half(["v_add_f32", "v_add_f32"], [(mx, t0), (mn, t1)])
            e("v_rcp_f32 v%d, v%d" % (ap, mx))
            e("v_rcp_f32 v%d, v%d" % (an, mn))
            e("s_nop 0")
            for i in range(8):
                e("v_pk_mul_f32 %s, %s, %s op_sel_hi:[1,0]" % (vr(Ep + 2 * i, 2), vr(Ep + 2 * i, 2), vr(ap, 2)))
            for i in range(8):
                e("v_pk_mul_f32 %s, %s, %s op_sel_hi:[1,0]" % (vr(En + 2 * i, 2), vr(En + 2 * i, 2), vr(an, 2)))
            for i in range(8):
                e("v_cvt_pk_bf16_f32 v%d, v%d, v%d" % (outp + i, Ep + 2 * i, Ep + 2 * i + 1))
            for i in range(8):
                e("v_cvt_pk_bf16_f32 v%d, v%d, v%d" % (outn + i, En + 2 * i, En + 2 * i + 1))

    def a_kfeatures(self):
        e = self.e
        def packv():
            e = self.e
            for t in range(2):
                v = acc(t, 2)
                for i in range(8):
                    e("v_cvt_pk_bf16_f32 v%d, v%d, v%d" % (v + i, v + 2 * i, v + 2 * i + 1))
            e("s_mov_b32 exec_lo, 0x10000000")
            e("s_mov_b32 exec_hi, 0x10000000")
            for t in range(2):
                for i in range(8):
                    e("v_mov_b32 v%d, 0x3f803f80" % (acc(t, 2) + i))
            e("s_mov_b64 exec, -1")
        self.features2([acc(0, 1), acc(1, 1)], [(acc(t, 1), acc(t, 1) + 8) for t in range(2)], between=packv)

    def a_epilogue(self):
        e = self.e
        e.c("---- A epilogue: kv partial, query features ----")
        t0, t1 = vT, vT + 1
        side = self.capture(lambda: self.features2([acc(0, 0), acc(1, 0)], [(vPQ + 16 * t, vPQ + 16 * t + 8) for t in range(2)]))
        e("v_and_b32 v%d, 31, v0" % t0)
        e("s_lshl_b32 s%d, s%d, 6" % (sT, sTH))
        e("v_add_u32 v%d, s%d, v%d" % (t0, sT, t0))
        e("v_mul_u32_u24 v%d, 72, v%d" % (t0, t0))
        e("v_lshrrev_b32 v%d, 5, v0" % t1)
        e("v_lshl_add_u32 v%d, v%d, 3, v%d" % (t0, t1, t0))
        e("s_mul_i32 s%d, s%d, %d" % (sT, sHD, 2 * 9216))
        e("v_add_u32 v%d, s%d, v%d" % (t0, sT, t0))
        e("s_lshl_b32 s%d, s%d, 13" % (sT, sHD))
        e("s_lshl_b32 s%d, s%d, 12" % (sT + 1, sTH))
        e("s_add_u32 s%d, s%d, s%d" % (sT, sT, sT + 1))
        e("s_add_u32 s%d, s%d, %d" % (sT, sT, VX))
        e("v_add_u32 v%d, s%d, v%d" % (t1, sT, vL16))
        e("s_barrier")
        for t in range(2):
            k, v = acc(t, 1), acc(t, 2)
            for sg in range(2):
                for g in range(4):
                    e.lds("ds_write_b64 v%d, %s offset:%d" % (t0, vr(k + 8 * sg + 2 * g, 2), PHI + sg * 9216 + t * 32 * 72 + 16 * g), 'phi')
                    self.pump(side, 8)
            for i in range(2):
                e.lds("ds_write_b128 v%d, %s offset:%d" % (t1, vr(v + 4 * i, 4), 2048 * t + 1024 * i), 'phi')
                self.pump(side, 12)
        self.pump(side, 120)
        e("v_lshrrev_b32 v%d, 5, v0" % t0)
        e("v_lshlrev_b32 v%d, 2, v%d" % (t0, t0))
        e("v_bfe_u32 v%d, v0, 2, 2" % t1)
        e("v_add_u32 v%d, v%d, v%d" % (t0, t0, t1))
        e("v_mul_u32_u24 v%d, 72, v%d" % (t0, t0))
        e("v_bfe_u32 v%d, v0, 4, 1" % t1)
        e("v_lshl_add_u32 v%d, v%d, 5, v%d" % (t0, t1, t0))
        e("v_and_b32 v%d, 3, v0" % t1)
        e("v_lshl_add_u32 v%d, v%d, 3, v%d" % (t0, t1, t0))
        e("s_mul_i32 s%d, s%d, 9216" % (sT, sW))
        e("v_add_u32 v%d, s%d, v%d" % (t0, sT, t0))
        e("s_lshl_b32 s%d, s%d, 13" % (sT, sHD))
        e("s_add_u32 s%d, s%d, %d" % (sT, sT, VX))
        e("v_add_u32 v%d, s%d, v%d" % (t1, sT, vL16))
        e.lg_drain()
        e("s_barrier")
        self.stamp('kfeat')
        A, B, Dk = 0, 32, acc(0, 1)
        for T in range(4):
            for mf in range(2):
                i = 2 * T + mf
                row = 32 * T + 16 * mf
                e.lds("ds_read_b64_tr_b16 %s, v%d offset:%d" % (ar(A + 4 * i, 2), t0, row * 72), 'c%d' % i)
                e.lds("ds_read_b64_tr_b16 %s, v%d offset:%d" % (ar(A + 4 * i + 2, 2), t0, (row + 8) * 72), 'c%d' % i)
                e.lds("ds_read_b128 %s, v%d offset:%d" % (ar(B + 4 * i, 4), t1, i * 1024), 'c%d' % i)
                if i == 4: self.pump(side, 60)
        self.pump(side, 60)
        for jj in range(8):
            e.lg_wait('c%d' % jj)
            e("v_mfma_f32_32x32x16_bf16 %s, %s, %s, %s" % (vr(Dk, 16), ar(A + 4 * jj, 4), ar(B + 4 * jj, 4), "0" if jj == 0 else vr(Dk, 16)))
            self.pump(side, 24)
        self.pump(side, 60)
        e("s_lshl_b32 s%d, s%d, 4" % (sT, sH1))
        e("s_add_u32 s%d, s%d, s%d" % (sT, sT, sJ))
        e("s_lshl_b32 s%d, s%d, 13" % (sT, sT))
        e("s_lshl_b32 s%d, s%d, 12" % (sT + 1, sTH))
        e("s_add_u32 s%d, s%d, s%d" % (sT, sT, sT + 1))
        e("s_add_u32 s%d, s%d, %d" % (sT, sT, PART_OFF))
        for g in range(4):
            e.vmem("buffer_store_dwordx4 %s, v%d, s[%d:%d], s%d offen offset:%d sc1" % (vr(Dk + 4 * g, 4), vL16, sWS, sWS + 3, sT, g * 1024), 'part')
        self.stamp('kv')
        self.pump(side, 300)
        self.f1_issue()
        self.pump(side, 1 << 30)

    def f2_signal(self):
        e = self.e
        L = self.lab('nof2')
        e("s_cmp_eq_u32 s%d, 0" % sROLE)
        e("s_cbranch_scc1 %s" % L)
        e("s_lshl_b32 s%d, s%d, 7" % (sT, sH1))
        e("s_lshl_b32 s%d, s%d, 3" % (sT + 1, sJ))
        e("s_add_u32 s%d, s%d, s%d" % (sT, sT, sT + 1))
        e("s_lshl_b32 s%d, s%d, 2" % (sT + 1, sTH))
        e("s_add_u32 s%d, s%d, s%d" % (sT, sT, sT + 1))
        e("s_add_u32 s%d, s%d, %d" % (sT, sT, F2_OFF))
        self.one_lane_store(vT + 6, vT + 7, sT, 'flag')
        e.label(L)

    def flag_compare(self, e, regs):
        r = list(regs)
        if len(r) == 1:
            e("v_cmp_ne_u32 vcc, s%d, v%d" % (sNONCE, r[0]))
        else:
            for x in r:
                e("v_xor_b32 v%d, s%d, v%d" % (x, sNONCE, x))
            e("v_or3_b32 v%d, v%d, v%d, v%d" % (r[0], r[0], r[1], r[2]))
            e("v_or_b32 v%d, v%d, v%d" % (r[0], r[0], r[3]))
            e("v_cmp_ne_u32 vcc, 0, v%d" % r[0])
        e("s_nop 1")
    def flag_issue(self, name, dst, n, vaddr, soff, optional=False):
        op = "buffer_load_dwordx4 %s" % vr(dst, 4) if n == 4 else "buffer_load_dword v%d" % dst
        ld = "%s, v%d, s[%d:%d], s%d offen sc1" % (op, vaddr, sWS, sWS + 3, soff)
        self.e.vmem(ld, name, optional=optional)
        return ld
    def flag_check(self, name, ld, dst, n, keep=False):
        e = self.e
        e.vm_wait(name, keep=keep)
        back = self.lab('back_' + name)
        self.flag_compare(e, range(dst, dst + n))
        o = self.ool
        L = self.lab("spin_" + name)
        o.label(L)
        o("s_mov_b32 s%d, 0x8000" % sCNT)
        o.label(L + "_loop")
        o(ld)
        o("s_waitcnt vmcnt(0)")
        self.flag_compare(o, range(dst, dst + n))
        o("s_cbranch_vccz %s" % back)
        o("s_sub_u32 s%d, s%d, 1" % (sCNT, sCNT))
        o("s_cmp_lg_u32 s%d, 0" % sCNT)
        o("s_cbranch_scc1 %s_loop" % L)
        o("s_branch %s" % back)
        e("s_cbranch_vccnz %s" % L)
        e.label(back)

    def attn_prologue(self):
        e = self.e
        e.c("---- attention prologue ----")
        self.flag_check('f1', self.f1_ld, vT + 4, 1)
        self.f2_signal()
        self.stamp('f1ok')
        e("s_lshl_b32 s%d, s%d, 18" % (sKV, sH2))
        e("s_lshl_b32 s%d, s%d, 16" % (sT, sW))
        e("s_add_u32 s%d, s%d, s%d" % (sKV, sKV, sT))
        e("s_add_u32 s%d, s%d, %d" % (sKV, sKV, KV_OFF))
        e("s_lshl_b32 s%d, s%d, 6" % (sT, sH2))
        e("s_lshl_b32 s%d, s%d, 2" % (sT + 1, sJ2))
        e("s_add_u32 s%d, s%d, s%d" % (sT, sT, sT + 1))
        e("s_lshl_b32 s%d, s%d, 11" % (sT, sT))
        e("s_add_u32 s%d, s%d, %d" % (sT, sT, QF_OFF))
        for t in range(4):
            e("s_add_u32 s%d, s%d, %d" % (sT + 1, sW, t))
            e("s_and_b32 s%d, s%d, 3" % (sT + 1, sT + 1))
            e("s_lshl_b32 s%d, s%d, 11" % (sT + 1, sT + 1))
            e("s_add_u32 s%d, s%d, s%d" % (sT2 + 1 + t, sT, sT + 1))
        self.kv_loads(0)
        for t in range(4):
            for i in range(2):
                e.vmem("buffer_load_dwordx4 %s, v%d, s[%d:%d], s%d offen offset:%d sc1" % (vr(vQ + 8 * t + 4 * i, 4), vL16, sWS, sWS + 3, sT2 + 1 + t, 1024 * i), 'q%d' % t)
        for kt in range(1, NSETS - 1):
            self.kv_loads(kt)

    def kv_loads(self, kt):
        e = self.e
        base = aKV + 16 * (kt % NSETS)
        e("s_add_u32 s%d, s%d, %d" % (sSX, sKV, kt * 4096))
        for i in range(4):
            e.vmem("buffer_load_dwordx4 %s, v%d, s[%d:%d], s%d offen offset:%d sc1" % (ar(base + 4 * i, 4), vL16, sWS, sWS + 3, sSX, 1024 * i), 'kv%d' % kt)

    def qk(self, i):
        kt, t = i >> 2, i & 3
        S = vS + 16 * (i & 1)
        K = aKV + 16 * (kt % NSETS)
        return ["v_mfma_f32_32x32x16_bf16 %s, %s, %s, 0" % (vr(S, 16), ar(K, 4), vr(vQ + 8 * t, 4)),
                "v_mfma_f32_32x32x16_bf16 %s, %s, %s, %s" % (vr(S, 16), ar(K + 4, 4), vr(vQ + 8 * t + 4, 4), vr(S, 16))]
    def pv(self, i):
        kt, t = i >> 2, i & 3
        P = vP + 8 * (i & 1)
        V = aKV + 16 * (kt % NSETS) + 8
        O = vO + 16 * t
        return ["v_mfma_f32_32x32x16_bf16 %s, %s, %s, %s" % (vr(O, 16), ar(V, 4), vr(P, 4), "0" if kt == 0 else vr(O, 16)),
                "v_mfma_f32_32x32x16_bf16 %s, %s, %s, %s" % (vr(O, 16), ar(V + 4, 4), vr(P + 4, 4), vr(O, 16))]

    def attention(self):
        e = self.e
        e.c("---- attention ----")
        e.vm_wait('kv0', 'q0')
        for m in self.qk(0): e(m)
        e("s_nop 10")
        extras = self.attn_extras()
        N = 64
        for i in range(N):
            kt, t = i >> 2, i & 3
            S = vS + 16 * (i & 1)
            P = vP + 8 * (i & 1)
            if self.o.get('fine') and i in (4, 8, 12, 16, 20, 24, 28, 32, 36, 40, 48, 52, 56, 60): self.stamp('s%d' % i)
            if i < 3: self.vm_wait_role('q%d' % (i + 1), 'chst')
            if t == 3 and kt + 1 < 16: self.vm_wait_role('kv%d' % (kt + 1), 'chst')
            mq = self.qk(i + 1) if i + 1 < N else [None, None]
            mp = self.pv(i - 1) if i > 0 else [None, None]
            ex = lambda r: e("v_exp_f32 v%d, v%d" % (S + r, S + r))
            cv = lambda c: e("v_cvt_pk_bf16_f32 v%d, v%d, v%d" % (P + c, S + 2 * c, S + 2 * c + 1))
            def grp(g, m, seq, fill=()):
                if m: e(m)
                for f in fill: f()
                for s in seq:
                    (ex if s[0] == 'e' else cv)(s[1])
            fill = list(extras.get(i, []))
            late = []
            if t == 1 and kt + NSETS - 1 < 16:
                late = [lambda kt=kt: self.kv_loads(kt + NSETS - 1)]
            grp(0, mq[0], [('e', 0), ('e', 1), ('e', 2), ('e', 3), ('c', 0)], fill)
            grp(1, mq[1], [('e', 4), ('e', 5), ('c', 1), ('e', 6), ('e', 7), ('c', 2)], late)
            grp(2, mp[0], [('e', 8), ('e', 9), ('c', 3), ('e', 10), ('e', 11), ('c', 4)])
            grp(3, mp[1], [('e', 12), ('e', 13), ('c', 5), ('e', 14), ('e', 15), ('c', 6), ('c', 7)])
        e("s_nop 0")
        for m in self.pv(N - 1): e(m)

    def wo_loads(self, branch, ks0, n, areg):
        e = self.e
        for ks in range(ks0, ks0 + n):
            if (ks - ks0) % 4 == 0:
                e("s_add_u32 s%d, s%d, %d" % (sT2 + 6, sT2 + 5, branch * 512 * 1024 + ks * 1024))
            e.vmem("buffer_load_dwordx4 %s, v%d, s[%d:%d], s%d offen offset:%d sc1" % (ar(areg + 4 * (ks - ks0), 4), vL16, sWS, sWS + 3, sT2 + 6, ((ks - ks0) % 4) * 1024), 'wo%d' % branch)

    def attn_extras(self):
        e = self.e
        X = {}
        def add(slot, f): X.setdefault(slot, []).append(f)
        st = {}
        for k in range(10):
            add(1 + k, lambda k=k: self.chore_store(k))
        def f0_signal():
            L = self.lab('nof0')
            e("s_cmp_lg_u32 s%d, 0" % sROLE)
            e("s_cbranch_scc1 %s" % L)
            n, idx = e.vm_count(['chst'])
            if idx >= 0: e("s_waitcnt vmcnt(%d)" % n)
            e("s_barrier")
            e("s_cmp_lg_u32 s%d, 0" % sW)
            e("s_cbranch_scc1 %s" % L)
            e("s_lshl_b32 s%d, s%d, 7" % (sT, sHP))
            e("s_lshl_b32 s%d, s%d, 2" % (sT + 1, sJ))
            e("s_add_u32 s%d, s%d, s%d" % (sT, sT, sT + 1))
            e("s_add_u32 s%d, s%d, %d" % (sT, sT, F0_OFF))
            self.one_lane_store(vT + 6, vT + 7, sT, 'flag')
            e.label(L)
        add(18, f0_signal)
        def f0_issue():
            e("v_lshrrev_b32 v80, 3, v0")
            e("v_lshlrev_b32 v80, 7, v80")
            e("v_and_b32 v81, 7, v0")
            e("v_lshl_add_u32 v80, v81, 3, v80")
            e("s_mov_b32 s%d, %d" % (sT2 + 7, F0_OFF))
            st['f0'] = "buffer_load_dwordx2 v[82:83], v80, s[%d:%d], s%d offen sc1" % (sWS, sWS + 3, sT2 + 7)
            e.vmem(st['f0'], 'f0')
        add(26, f0_issue)
        def f0_cmp(em):
            em("v_xor_b32 v82, s%d, v82" % sNONCE)
            em("v_xor_b32 v83, s%d, v83" % sNONCE)
            em("v_or_b32 v82, v82, v83")
            em("v_cmp_ne_u32 vcc, 0, v82")
            em("s_nop 1")
        def f0_check():
            e.vm_wait('f0')
            f0_cmp(e)
            back = self.lab('back_f0'); L = self.lab('spin_f0')
            o = self.ool
            o.label(L)
            o("s_mov_b32 s%d, 0x8000" % sCNT)
            o.label(L + "_loop")
            o(st['f0'])
            o("s_waitcnt vmcnt(0)")
            f0_cmp(o)
            o("s_cbranch_vccz %s" % back)
            o("s_sub_u32 s%d, s%d, 1" % (sCNT, sCNT))
            o("s_cmp_lg_u32 s%d, 0" % sCNT)
            o("s_cbranch_scc1 %s_loop" % L)
            o("s_branch %s" % back)
            e("s_cbranch_vccnz %s" % L)
            e.label(back)
            e("s_bfe_u32 s%d, s2, 0x20003" % (sT2 + 5))
            e("s_lshl_b32 s%d, s%d, 2" % (sT2 + 5, sT2 + 5))
            e("s_add_u32 s%d, s%d, s%d" % (sT2 + 5, sT2 + 5, sW))
            e("s_lshl_b32 s%d, s%d, 15" % (sT2 + 5, sT2 + 5))
            e("s_add_u32 s%d, s%d, %d" % (sT2 + 5, sT2 + 5, WOF_OFF))
        add(32, f0_check)
        for g in range(4):
            add(33 + 4 * g, lambda g=g: self.wo_loads(0, 8 * g, 8, aWOA + 32 * g))
        for g in range(2):
            add(50 + 4 * g, lambda g=g: self.wo_loads(1, 8 * g, 8, aWOB_LO + 32 * g))
        def cond_reducer():
            L = self.lab('nored')
            e("s_lshl_b32 s%d, s%d, 2" % (sT, sROLE))
            e("s_add_u32 s%d, s%d, s%d" % (sT, sT, sW))
            e("s_sub_u32 s%d, s%d, 2" % (sT, sT))
            e("s_cmp_ge_u32 s%d, 2" % sT)
            e("s_cbranch_scc1 %s" % L)
            return L
        def red_a():
            L = cond_reducer()
            e("s_lshl_b32 s%d, s%d, 1" % (sT2 + 9, sHP))
            e("s_add_u32 s%d, s%d, s%d" % (sT2 + 9, sT2 + 9, sT))
            e("s_lshl_b32 s%d, s%d, 7" % (sT + 1, sT2 + 9))
            e("s_add_u32 s%d, s%d, %d" % (sT2 + 8, sT + 1, F2_OFF))
            e("v_and_b32 v%d, 31, v0" % (vT + 8))
            e("v_lshlrev_b32 v%d, 2, v%d" % (vT + 8, vT + 8))
            st['f2'] = self.flag_issue('f2', vT + 9, 1, vT + 8, sT2 + 8, optional=True)
            e.label(L)
        add(11, red_a)
        def red_b():
            L = cond_reducer()
            self.flag_check('f2', st['f2'], vT + 9, 1, keep=True)
            e("s_lshl_b32 s%d, s%d, 17" % (sT + 1, sT2 + 9))
            e("s_lshr_b32 s%d, s%d, 1" % (sT + 2, sJ))
            e("s_lshl_b32 s%d, s%d, 10" % (sT + 2, sT + 2))
            e("s_add_u32 s%d, s%d, s%d" % (sT + 1, sT + 1, sT + 2))
            e("s_and_b32 s%d, s%d, 1" % (sT + 2, sJ))
            e("s_lshl_b32 s%d, s%d, 3" % (sT + 2, sT + 2))
            e("s_add_u32 s%d, s%d, s%d" % (sT + 1, sT + 1, sT + 2))
            e("s_add_u32 s%d, s%d, %d" % (sT + 1, sT + 1, PART_OFF))
            for jj in range(16):
                if jj: e("s_add_u32 s%d, s%d, 8192" % (sT + 1, sT + 1))
                e.vmem("buffer_load_dwordx2 %s, v%d, s[%d:%d], s%d offen sc1" % (vr(vX + 2 * jj, 2), vL16, sWS, sWS + 3, sT + 1), 'red', optional=True)
            e.label(L)
        add(16, red_b)
        def red_c():
            L = cond_reducer()
            e.vm_wait('red', keep=True)
            for jj in range(1, 16):
                e("v_add_f32 v%d, v%d, v%d" % (vX, vX, vX + 2 * jj))
                e("v_add_f32 v%d, v%d, v%d" % (vX + 1, vX + 1, vX + 2 * jj + 1))
            e("v_cvt_pk_bf16_f32 v%d, v%d, v%d" % (vX, vX, vX + 1))
            e("s_lshl_b32 s%d, s%d, 12" % (sT + 1, sT2 + 9))
            e("s_lshr_b32 s%d, s%d, 2" % (sT + 2, sJ))
            e("s_lshl_b32 s%d, s%d, 10" % (sT + 2, sT + 2))
            e("s_add_u32 s%d, s%d, s%d" % (sT + 1, sT + 1, sT + 2))
            e("s_and_b32 s%d, s%d, 3" % (sT + 2, sJ))
            e("s_lshl_b32 s%d, s%d, 2" % (sT + 2, sT + 2))
            e("s_add_u32 s%d, s%d, s%d" % (sT + 1, sT + 1, sT + 2))
            e("s_add_u32 s%d, s%d, %d" % (sT + 1, sT + 1, KVF_OFF))
            e.vmem("buffer_store_dword v%d, v%d, s[%d:%d], s%d offen sc1" % (vX, vL16, sWS, sWS + 3, sT + 1), 'redst', optional=True)
            e.label(L)
        add(23, red_c)
        def red_d():
            L = cond_reducer()
            e.vm_wait('redst', keep=True)
            e("s_lshl_b32 s%d, s%d, 7" % (sT + 1, sT2 + 9))
            e("s_lshl_b32 s%d, s%d, 2" % (sT + 2, sJ))
            e("s_add_u32 s%d, s%d, s%d" % (sT + 1, sT + 1, sT + 2))
            e("s_add_u32 s%d, s%d, %d" % (sT + 1, sT + 1, F3_OFF))
            self.one_lane_store(vT + 6, vT + 7, sT + 1, 'flag')
            e.label(L)
        add(29, red_d)
        def cond_a():
            L = self.lab('noA')
            e("s_cmp_eq_u32 s%d, 0" % sROLE)
            e("s_cbranch_scc1 %s" % L)
            return L
        def f3_issue():
            L = cond_a()
            e("s_lshl_b32 s%d, s%d, 7" % (sT2 + 9, sH1))
            e("s_add_u32 s%d, s%d, %d" % (sT2 + 9, sT2 + 9, F3_OFF))
            e("v_and_b32 v%d, 15, v0" % (vT + 8))
            e("v_lshlrev_b32 v%d, 2, v%d" % (vT + 8, vT + 8))
            st['f3'] = self.flag_issue('f3', vT + 9, 1, vT + 8, sT2 + 9, optional=True)
            e.label(L)
        add(36, f3_issue)
        def f3_check():
            L = cond_a()
            self.flag_check('f3', st['f3'], vT + 9, 1, keep=True)
            e("s_lshl_b32 s%d, s%d, 12" % (sT, sH1))
            e("s_add_u32 s%d, s%d, %d" % (sT, sT, KVF_OFF))
            for i in range(4):
                e.vmem("buffer_load_dwordx4 %s, v%d, s[%d:%d], s%d offen offset:%d sc1" % (vr(vX + 4 * i, 4), vL16, sWS, sWS + 3, sT, 1024 * i), 'kvf', optional=True)
            e.label(L)
        add(42, f3_check)
        D = vX + 16
        def a2_mm(t):
            def f():
                L = cond_a()
                if t == 0: e.vm_wait('kvf', keep=True)
                for i in range(4):
                    e("v_mfma_f32_32x32x16_bf16 %s, %s, %s, %s" % (vr(D, 16), vr(vX + 4 * i, 4), vr(vPQ + 16 * t + 4 * i, 4), "0" if i == 0 else vr(D, 16)))
                e.label(L)
            return f
        def a2_fin(t):
            def f():
                L = cond_a()
                e("s_lshl_b32 s%d, s%d, 2" % (sT, sJ))
                e("s_lshl_b32 s%d, s%d, 1" % (sT + 1, sTH))
                e("s_add_u32 s%d, s%d, s%d" % (sT, sT, sT + 1))
                e("s_lshl_b32 s%d, s%d, 4" % (sT, sT))
                e("s_add_u32 s%d, s%d, s%d" % (sT, sT, sH1))
                e("s_lshl_b32 s%d, s%d, 11" % (sT, sT))
                e("s_add_u32 s%d, s%d, %d" % (sT + 3, sT, OA_OFF + 32768 * t))
                self.normalize_store(D, 1e-6, sT + 3, 'oa', optional=True)
                e.label(L)
            return f
        add(47, a2_mm(0)); add(48, a2_fin(0)); add(49, a2_mm(1)); add(50, a2_fin(1))
        add(60, lambda: self.o_loads('A', OA_OFF, OST_A, e, True))
        return X

    def op_tile(self):
        e = self.e
        e("s_lshr_b32 s%d, s2, 5" % (sT2 + 7))
        e("s_lshl_b32 s%d, s%d, 3" % (sT2 + 7, sT2 + 7))
        e("s_and_b32 s%d, s2, 7" % sT)
        e("s_add_u32 s%d, s%d, s%d" % (sT2 + 7, sT2 + 7, sT))

    def o_loads(self, name, off, ost, em, track):
        so = (sT2 + 1) if name == 'A' else (sT2 + 3)
        if track:
            e = self.e
            self.op_tile()
            e("s_lshl_b32 s%d, s%d, 15" % (sT, sT2 + 7))
            e("s_lshl_b32 s%d, s%d, 13" % (sT + 1, sW))
            e("s_add_u32 s%d, s%d, s%d" % (sT, sT, sT + 1))
            e("s_add_u32 s%d, s%d, %d" % (so, sT, off))
            e("s_add_u32 s%d, s%d, 4096" % (so + 1, so))
            e("s_add_u32 s%d, s%d, %d" % (sOL + (0 if name == 'A' else 1), sT + 1, ost))
        ml = sOL + (0 if name == 'A' else 1)
        for i in range(8):
            if i % 4 == 0:
                em("s_add_u32 m0, s%d, %d" % (ml, 4096 * (i // 4)))
                em("s_nop 0")
            s = "buffer_load_dwordx4 v%d, s[%d:%d], s%d offen offset:%d sc1 lds" % (vL16, sWS, sWS + 3, so + (i // 4), (i % 4) * 1024)
            if track: em.vmem(s, 'o' + name)
            else: em(s)

    def o_readback(self, name, R, em, track):
        ml = sOL + (0 if name == 'A' else 1)
        em("v_add_u32 v%d, s%d, v%d" % (vT + 11, ml, vL16))
        for i in range(8):
            s = "ds_read_b128 %s, v%d offset:%d" % (vr(R + 4 * i, 4), vT + 11, i * 1024)
            if track: em.lds(s, 'ob' + name)
            else: em(s)

    def o_check(self, name, off, R, ost):
        e = self.e
        back = self.lab('oback'); loop = self.lab('oloop')
        def check(em):
            em("v_max3_u32 v%d, v%d, v%d, v%d" % (vT + 10, R, R + 1, R + 2))
            for i in range(14):
                em("v_max3_u32 v%d, v%d, v%d, v%d" % (vT + 10, vT + 10, R + 3 + 2 * i, R + 4 + 2 * i))
            em("v_max_u32 v%d, v%d, v%d" % (vT + 10, vT + 10, R + 31))
            em("v_cmp_eq_u32 vcc, -1, v%d" % (vT + 10))
            em("s_nop 1")
        e.lg_wait('ob' + name)
        check(e)
        e("s_cbranch_vccnz %s" % loop)
        e.label(back)
        o = self.ool
        o.label(loop)
        o("s_mov_b32 s%d, 0x8000" % sCNT)
        o.label(loop + "_l")
        self.o_loads(name, off, ost, o, False)
        o("s_waitcnt vmcnt(0)")
        self.o_readback(name, R, o, False)
        o("s_waitcnt lgkmcnt(0)")
        check(o)
        o("s_cbranch_vccz %s" % back)
        o("s_sub_u32 s%d, s%d, 1" % (sCNT, sCNT))
        o("s_cmp_lg_u32 s%d, 0" % sCNT)
        o("s_cbranch_scc1 %s_l" % loop)
        o("s_branch %s" % back)

    def combine(self):
        e = self.e
        e.c("---- combine the four key ranges ----")
        t0 = vT
        e.label("L_combine")
        e.vm_wait('oA')
        self.o_readback('A', vX, e, True)
        for t in range(1, 4):
            e("s_add_u32 s%d, s%d, %d" % (sT, sW, t))
            e("s_and_b32 s%d, s%d, 3" % (sT, sT))
            e("s_mul_i32 s%d, s%d, 12288" % (sT, sT))
            e("s_add_u32 s%d, s%d, %d" % (sT, sT, CB + (t - 1) * 4096))
            e("v_add_u32 v%d, s%d, v%d" % (vT + t, sT, vL16))
        e("s_mul_i32 s%d, s%d, 12288" % (sT, sW))
        e("s_add_u32 s%d, s%d, %d" % (sT, sT, CB))
        e("v_add_u32 v%d, s%d, v%d" % (vT + 4, sT, vL16))
        for t in range(1, 4):
            if t == 3: e("s_nop 3")
            for g in range(4):
                e.lds("ds_write_b128 v%d, %s offset:%d" % (vT + t, vr(vO + 16 * t + 4 * g, 4), g * 1024), 'cw')
        e("v_max3_f32 v%d, v%d, v%d, v%d" % (t0, vO + 12, vO + 28, vO + 44))
        e("v_max_f32 v%d, v%d, v%d" % (t0, t0, vO + 60))
        e("v_mov_b32 v%d, 0x%08x" % (vT + 5, f2u(0.0 if self.o.get('forcefb') else LIMIT)))
        self.upper_only(True)
        e("v_cmp_nle_f32 vcc, v%d, v%d" % (t0, vT + 5))
        self.upper_only(False)
        e("s_nop 0")
        e("s_cmp_lg_u32 vcc_hi, 0")
        e("s_cselect_b32 s%d, 1, 0" % sT)
        e("v_mov_b32 v%d, s%d" % (vT + 5, sT))
        e("s_lshl_b32 s%d, s%d, 2" % (sT + 1, sW))
        e("s_add_u32 s%d, s%d, %d" % (sT + 1, sT + 1, VERD))
        e("v_mov_b32 v%d, s%d" % (vT + 6, sT + 1))
        e.lds("ds_write_b32 v%d, v%d" % (vT + 6, vT + 5), 'cw')
        self.o_check('A', OA_OFF, vX, OST_A)
        e.lg_drain()
        e("s_barrier")
        R = vS
        for idx in range(3):
            for g in range(4):
                e.lds("ds_read_b128 %s, v%d offset:%d" % (vr(R + 16 * idx + 4 * g, 4), vT + 4, idx * 4096 + g * 1024), 'cr%d' % idx)
        e("v_mov_b32 v%d, %d" % (vT + 6, VERD))
        e.lds("ds_read_b128 %s, v%d" % (vr(vT, 4), vT + 6), 'verd')
        for idx in range(3):
            e.lg_wait('cr%d' % idx)
            for i in range(8):
                e("v_pk_add_f32 %s, %s, %s" % (vr(vO + 2 * i, 2), vr(vO + 2 * i, 2), vr(R + 16 * idx + 2 * i, 2)))
        e.lg_wait('verd')
        e("v_or3_b32 v%d, v%d, v%d, v%d" % (vT, vT, vT + 1, vT + 2))
        e("v_or_b32 v%d, v%d, v%d" % (vT, vT, vT + 3))
        e("s_nop 0")
        e("v_readfirstlane_b32 s%d, v%d" % (sT, vT))
        e("s_nop 0")
        e("s_andn2_b32 s%d, s%d, s%d" % (sT, sT, sFB))
        e("s_cbranch_scc1 L_fallback")
        e("s_lshl_b32 s%d, s%d, 2" % (sT, sJ2))
        e("s_add_u32 s%d, s%d, s%d" % (sT, sT, sW))
        e("s_lshl_b32 s%d, s%d, 4" % (sT, sT))
        e("s_add_u32 s%d, s%d, s%d" % (sT, sT, sH2))
        e("s_lshl_b32 s%d, s%d, 11" % (sT, sT))
        e("s_add_u32 s%d, s%d, %d" % (sT, sT, OB_OFF))
        self.normalize_store(vO, 0.0, sT, 'ob')

    def normalize_store(self, O, eps, soff, tag, optional=False):
        e = self.e
        t, u = vT, vT + 1
        e("v_mov_b32 v%d, v%d" % (t, O + 12))
        e("v_mov_b32 v%d, v%d" % (u, O + 12))
        e("s_nop 1")
        e("v_permlane32_swap_b32 v%d, v%d" % (t, u))
        if eps:
            e("v_add_f32 v%d, 0x%08x, v%d" % (u, f2u(eps), u))
        e("v_rcp_f32 v%d, v%d" % (vT + 2, u))
        e("s_nop 0")
        for i in range(8):
            e("v_pk_mul_f32 %s, %s, %s op_sel_hi:[1,0]" % (vr(O + 2 * i, 2), vr(O + 2 * i, 2), vr(vT + 2, 2)))
        for i in range(8):
            e("v_cvt_pk_bf16_f32 v%d, v%d, v%d" % (O + i, O + 2 * i, O + 2 * i + 1))
        self.upper_only(True)
        e("v_mov_b32 v%d, 0" % (O + 6))
        e("v_mov_b32 v%d, 0" % (O + 7))
        self.upper_only(False)
        e.vmem("buffer_store_dwordx4 %s, v%d, s[%d:%d], s%d offen sc1" % (vr(O, 4), vL16, sWS, sWS + 3, soff), tag, optional=optional)
        e.vmem("buffer_store_dwordx4 %s, v%d, s[%d:%d], s%d offen offset:1024 sc1" % (vr(O + 4, 4), vL16, sWS, sWS + 3, soff), tag, optional=optional)

    def out_address(self):
        e = self.e
        self.op_tile()
        e("v_and_b32 v%d, 31, v0" % (vT + 12))
        e("s_lshl_b32 s%d, s%d, 5" % (sT, sT2 + 7))
        e("v_add_u32 v%d, s%d, v%d" % (vT + 12, sT, vT + 12))
        e("v_mul_u32_u24 v%d, 1792, v%d" % (vT + 12, vT + 12))
        e("v_lshrrev_b32 v%d, 5, v0" % (vT + 13))
        e("v_lshl_add_u32 v%d, v%d, 3, v%d" % (vT + 12, vT + 13, vT + 12))
        e("s_bfe_u32 s%d, s2, 0x20003" % sT)
        e("s_lshl_b32 s%d, s%d, 2" % (sT, sT))
        e("s_add_u32 s%d, s%d, s%d" % (sT, sT, sW))
        e("s_mul_i32 s%d, s%d, 56" % (sT2 + 9, sT))
        e("s_add_u32 s%d, s%d, 896" % (sT2 + 8, sT2 + 9))

    def outproj(self, name, ost, wreg, wtag, inloop=None, mid=None):
        e = self.e
        e.c("---- output projection %s ----" % name)
        R = vS
        e("v_add_u32 v%d, %d, v%d" % (vT + 2, ost, vL16))
        D = vO + 48
        NB = 8
        def rd(ks):
            e.lds("ds_read_b128 %s, v%d offset:%d" % (vr(R + 4 * (ks % NB), 4), vT + 2, ks * 1024), 'of%d' % ks)
        for ks in range(NB - 1): rd(ks)
        e.vm_wait(wtag)
        for ks in range(32):
            e.lg_wait('of%d' % ks)
            e("v_mfma_f32_32x32x16_bf16 %s, %s, %s, %s" % (vr(D, 16), ar(wreg(ks), 4), vr(R + 4 * (ks % NB), 4), "0" if ks == 0 else vr(D, 16)))
            if ks + NB - 1 < 32: rd(ks + NB - 1)
            if inloop and ks in inloop: inloop[ks]()
        if mid: mid()
        else: e("s_nop 11")
        for i in range(8):
            e("v_cvt_pk_bf16_f32 v%d, v%d, v%d" % (D + i, D + 2 * i, D + 2 * i + 1))
        so = sT2 + 9 if name == 'A' else sT2 + 8
        for g in range(4):
            if g == 3: e("s_mov_b32 exec_hi, 0")
            e.vmem("buffer_store_dwordx2 %s, v%d, s[%d:%d], s%d offen offset:%d" % (vr(D + 2 * g, 2), vT + 12, sOUT, sOUT + 3, so, 16 * g), 'out')
        e("s_mov_b32 exec_hi, -1")

    def fallback(self):
        o = self.ool
        KV, S, P, M = 32, 48, 64, 80
        o.label("L_fallback")
        o("s_waitcnt vmcnt(0) lgkmcnt(0)")
        o("s_barrier")
        for t in range(4):
            o("v_mov_b32 v%d, 0xff800000" % (M + t))
        o("s_mov_b32 s%d, 0" % sCNT)
        o.label("L_fb_max")
        o("s_lshl_b32 s%d, s%d, 12" % (sT, sCNT))
        o("s_add_u32 s%d, s%d, s%d" % (sT, sT, sKV))
        for i in range(2):
            o("buffer_load_dwordx4 %s, v%d, s[%d:%d], s%d offen offset:%d sc1" % (vr(KV + 4 * i, 4), vL16, sWS, sWS + 3, sT, 1024 * i))
        o("s_waitcnt vmcnt(0)")
        for t in range(4):
            o("v_mfma_f32_32x32x16_bf16 %s, %s, %s, 0" % (vr(S, 16), vr(KV, 4), vr(vQ + 8 * t, 4)))
            o("v_mfma_f32_32x32x16_bf16 %s, %s, %s, %s" % (vr(S, 16), vr(KV + 4, 4), vr(vQ + 8 * t + 4, 4), vr(S, 16)))
            o("s_nop 11")
            for i in range(8):
                o("v_max3_f32 v%d, v%d, v%d, v%d" % (M + t, M + t, S + 2 * i, S + 2 * i + 1))
        o("s_add_u32 s%d, s%d, 1" % (sCNT, sCNT))
        o("s_cmp_lt_u32 s%d, 16" % sCNT)
        o("s_cbranch_scc1 L_fb_max")
        for t in range(4):
            o("v_mov_b32 v%d, v%d" % (M + 4 + t, M + t))
        o("s_nop 0")
        for t in range(4):
            o("v_permlane32_swap_b32 v%d, v%d" % (M + t, M + 4 + t))
        for t in range(4):
            o("v_max_f32 v%d, v%d, v%d" % (M + t, M + t, M + 4 + t))
        o("v_and_b32 v%d, 31, v0" % (M + 8))
        o("v_lshlrev_b32 v%d, 2, v%d" % (M + 8, M + 8))
        for t in range(4):
            o("s_add_u32 s%d, s%d, %d" % (sT, sW, t))
            o("s_and_b32 s%d, s%d, 3" % (sT, sT))
            o("s_lshl_b32 s%d, s%d, 7" % (sT, sT))
            o("s_add_u32 s%d, s%d, %d" % (sT, sT, MX))
            o("v_add_u32 v%d, s%d, v%d" % (M + 9 + t, sT, M + 8))
        o("s_lshl_b32 s%d, s%d, 9" % (sT, sW))
        for t in range(4):
            o("v_add_u32 v%d, s%d, v%d" % (M + 13, sT, M + 9 + t))
            o("ds_write_b32 v%d, v%d" % (M + 13, M + t))
        o("s_waitcnt lgkmcnt(0)")
        o("s_barrier")
        for t in range(4):
            for w in range(4):
                o("ds_read_b32 v%d, v%d offset:%d" % (S + 4 * t + w, M + 9 + t, 512 * w))
        o("s_waitcnt lgkmcnt(0)")
        for t in range(4):
            o("v_max3_f32 v%d, v%d, v%d, v%d" % (M + t, S + 4 * t, S + 4 * t + 1, S + 4 * t + 2))
            o("v_max_f32 v%d, v%d, v%d" % (M + t, M + t, S + 4 * t + 3))
            o("v_lshlrev_b32 v%d, 16, v%d" % (M + 4 + t, vQ + 8 * t + 6))
            o("v_sub_f32 v%d, v%d, v%d" % (M + 4 + t, M + 4 + t, M + t))
        self_e, self.e = self.e, o
        self.upper_only(True)
        for t in range(4):
            o("v_cvt_pk_bf16_f32 v%d, v%d, 0" % (vQ + 8 * t + 6, M + 4 + t))
        self.upper_only(False)
        self.e = self_e
        for r in range(64):
            o("v_mov_b32 v%d, 0" % (vO + r))
        o("s_mov_b32 s%d, 0" % sCNT)
        o.label("L_fb_main")
        o("s_lshl_b32 s%d, s%d, 12" % (sT, sCNT))
        o("s_add_u32 s%d, s%d, s%d" % (sT, sT, sKV))
        for i in range(4):
            o("buffer_load_dwordx4 %s, v%d, s[%d:%d], s%d offen offset:%d sc1" % (vr(KV + 4 * i, 4), vL16, sWS, sWS + 3, sT, 1024 * i))
        o("s_waitcnt vmcnt(0)")
        for t in range(4):
            O = vO + 16 * t
            o("v_mfma_f32_32x32x16_bf16 %s, %s, %s, 0" % (vr(S, 16), vr(KV, 4), vr(vQ + 8 * t, 4)))
            o("v_mfma_f32_32x32x16_bf16 %s, %s, %s, %s" % (vr(S, 16), vr(KV + 4, 4), vr(vQ + 8 * t + 4, 4), vr(S, 16)))
            o("s_nop 11")
            for r in range(16):
                o("v_exp_f32 v%d, v%d" % (S + r, S + r))
            o("s_nop 0")
            for c in range(8):
                o("v_cvt_pk_bf16_f32 v%d, v%d, v%d" % (P + c, S + 2 * c, S + 2 * c + 1))
            o("s_nop 1")
            o("v_mfma_f32_32x32x16_bf16 %s, %s, %s, %s" % (vr(O, 16), vr(KV + 8, 4), vr(P, 4), vr(O, 16)))
            o("v_mfma_f32_32x32x16_bf16 %s, %s, %s, %s" % (vr(O, 16), vr(KV + 12, 4), vr(P + 4, 4), vr(O, 16)))
        o("s_add_u32 s%d, s%d, 1" % (sCNT, sCNT))
        o("s_cmp_lt_u32 s%d, 16" % sCNT)
        o("s_cbranch_scc1 L_fb_main")
        o("s_nop 11")
        o("s_mov_b32 s%d, -1" % sFB)
        o("s_barrier")
        o("s_branch L_combine")

    def finish(self):
        e = self.e
        L = self.lab('gen')
        e("s_cmp_lg_u32 s2, 0")
        e("s_cbranch_scc1 %s" % L)
        e("s_cmp_lg_u32 s%d, 0" % sW)
        e("s_cbranch_scc1 %s" % L)
        e("v_mov_b32 v%d, s%d" % (vT + 7, sNONCE))
        e("v_mov_b32 v%d, %d" % (vT + 6, G_OFF))
        e("s_mov_b64 exec, 1")
        e.vmem("buffer_store_dword v%d, v%d, s[%d:%d], 0 offen" % (vT + 7, vT + 6, sWS, sWS + 3), 'gen', optional=True)
        e("s_mov_b64 exec, -1")
        e.label(L)
        if self.o.get('stamps'):
            self.stamp('end')
            e("s_lshl_b32 s%d, s2, 2" % sT)
            e("s_add_u32 s%d, s%d, s%d" % (sT, sT, sW))
            e("s_lshl_b32 s%d, s%d, 8" % (sT, sT))
            e("s_add_u32 s%d, s%d, %d" % (sT, sT, STAMP_OFF))
            e("v_lshlrev_b32 v%d, 2, v0" % vT)
            e.vmem("buffer_store_dword v15, v%d, s[%d:%d], s%d offen" % (vT, sWS, sWS + 3, sT), 'st')
            if self.o.get('dbg'):
                L = self.lab('dbg')
                e("s_cmp_lg_u32 s%d, 0" % sW)
                e("s_cbranch_scc1 %s" % L)
                e("s_mov_b32 s%d, s20" % sWO)
                e("s_and_b32 s%d, s21, 0xffff" % (sWO + 1))
                e("s_mov_b32 s%d, 256" % (sWO + 2))
                e("s_mov_b32 s%d, 0x20000" % (sWO + 3))
                e("v_not_b32 v%d, v15" % (vT + 1))
                e("v_cmp_eq_u32 vcc, 0, v0")
                e("s_nop 1")
                e("v_cndmask_b32 v%d, v15, v%d, vcc" % (vT + 1, vT + 1))
                e("s_mov_b32 exec_lo, 0xffff")
                e("s_mov_b32 exec_hi, 0")
                e.vmem("buffer_atomic_umax v%d, v%d, s[%d:%d], 0 offen sc1" % (vT + 1, vT, sWO, sWO + 3), 'dbg', optional=True)
                e("s_mov_b64 exec, -1")
                e.label(L)

    def build(self):
        e = self.e
        self.prologue()
        self.stamp('pro')
        def top0():
            e("s_mul_i32 s%d, s%d, 0x9E3779B1" % (sNONCE, sNONCE))
            e("s_add_u32 s%d, s%d, 0x7F4A7C15" % (sNONCE, sNONCE))
        self.pass1({0: top0, 7: self.merge_wphi})
        self.stamp('gemm1')
        e("s_cmp_eq_u32 s%d, 0" % sROLE)
        e("s_cbranch_scc0 L_roleA")
        n0 = self.nstamp
        vm0, lg0 = list(e.vm), list(e.lg)
        side = self.capture(self.b_pack_kv)
        setup, items = self.b_store_items()
        after = {12: setup}
        for i, it in enumerate(items): after[14 + 4 * i] = it
        self.pass2(side, 24, after)
        self.stamp('gemm2')
        self.b_epilogue()
        self.chores()
        self.f1_issue()
        self.stamp('kvA')
        n1 = self.nstamp
        e("s_branch L_roles_done")
        e.label("L_roleA")
        e.vm, e.lg = vm0, lg0
        names = list(self.stamp_names)
        self.nstamp = n0
        side = self.capture(self.a_kfeatures)
        self.pass2(side, 30)
        self.stamp('gemm2')
        self.a_epilogue()
        self.stamp_names = names
        self.nstamp = n1
        e.label("L_roles_done")
        e.vm, e.lg = [('f1', False)], []
        e("s_waitcnt lgkmcnt(0)")
        e("s_barrier")
        self.attn_prologue()
        self.stamp('apro')
        self.attention()
        self.stamp('attn')
        self.combine()
        self.stamp('comb')
        inl = {1: self.out_address}
        for g in range(4):
            inl[3 + 5 * g] = (lambda g=g: self.wo_loads(1, 16 + 4 * g, 4, aWOB_HI + 16 * g))
        self.outproj('A', OST_A, lambda ks: aWOA + 4 * ks, 'wo0', inloop=inl, mid=lambda: self.o_loads('B', OB_OFF, OST_B, self.e, True))
        self.stamp('opa')
        self.e.vm_wait('oB')
        self.o_readback('B', vX, self.e, True)
        self.o_check('B', OB_OFF, vX, OST_B)
        self.e("s_barrier")
        self.stamp('oB_in')
        self.outproj('B', OST_B, lambda ks: (aWOB_LO + 4 * ks) if ks < 16 else (aWOB_HI + 4 * (ks - 16)), 'wo1')
        self.finish()
        self.fallback()

    def text(self):
        self.build()
        hdr = open(os.path.join(os.path.dirname(os.path.abspath(__file__)), '..', 'cdna_kernels', NAME + '.s.ref')).read().split('\n')
        top = [l for l in hdr if l.startswith(';') and '@launch' not in l and 'Override launch' not in l and 'grid=ceil' not in l]
        out = '\n'.join(top) + '\n'
        out += "; @launch grid=(256,1,1) block=(256,1,1) lds=%d\n" % LDS_SIZE
        out += '.amdgcn_target "amdgcn-amd-amdhsa--gfx950"\n.text\n.globl %s_kernel\n.p2align 8\n.type %s_kernel,@function\n%s_kernel:\n' % (NAME, NAME, NAME)
        out += self.e.text()
        out += "L_end:\n  s_endpgm\n"
        out += self.ool.text()
        out += "L_codeend:\n  s_endpgm\n"
        out += """.section .rodata,"a"
.p2align 6
.amdhsa_kernel %s_kernel
  .amdhsa_next_free_vgpr 512
  .amdhsa_next_free_sgpr 102
  .amdhsa_accum_offset 256
  .amdhsa_group_segment_fixed_size 0
  .amdhsa_kernarg_size 80
  .amdhsa_user_sgpr_count 2
  .amdhsa_user_sgpr_kernarg_segment_ptr 1
  .amdhsa_system_sgpr_workgroup_id_x 1
.end_amdhsa_kernel
""" % NAME
        return out

if __name__ == '__main__':
    import argparse, hazard
    ap = argparse.ArgumentParser()
    ap.add_argument('-o', default=os.path.join(os.path.dirname(os.path.abspath(__file__)), '..', 'cdna_kernels', NAME + '.s'))
    ap.add_argument('--stamps', action='store_true')
    ap.add_argument('--fine', action='store_true')
    ap.add_argument('--warm', action='store_true')
    ap.add_argument('--dbg', action='store_true')
    ap.add_argument('--touch', action='store_true')
    ap.add_argument('--forcefb', action='store_true')
    a = ap.parse_args()
    g = Gen(dict(stamps=a.stamps, fine=a.fine, warm=a.warm, dbg=a.dbg, touch=a.touch, forcefb=a.forcefb))
    t = g.text()
    open(a.o, 'w').write(t)
    if a.stamps:
        open(a.o + '.stamps', 'w').write('\n'.join(g.stamp_names))
    body = t.split('_kernel:\n')[1].split('.section')[0]
    probs = hazard.check(body.split('\n'))
    for p in probs[:60]: print(p)
    print(len(probs), "hazard problems;", len(t), "bytes,", body.count('\n'), "lines")
```
